```python
import torch

def _softmax(x, axis=-1):
    return torch.softmax(x, dim=axis)
def _gelu(x):
    return torch.nn.functional.gelu(x, approximate="tanh")
def _silu(x):
    return torch.nn.functional.silu(x)
def _sigmoid(x):
    return torch.sigmoid(x)
def _layernorm(x, axis=-1, eps=1e-5):
    m = x.mean(dim=axis, keepdim=True)
    v = x.var(dim=axis, keepdim=True, unbiased=False)
    return (x - m) / torch.sqrt(v + eps)
def _scatter_add(tgt, idx, src, axis=0):
    return tgt.clone().index_add_(axis, idx, src)
def _segment_sum(src, seg, n):
    out = torch.zeros((n,) + src.shape[1:], dtype=src.dtype)
    return out.index_add_(0, seg, src)
def _pad(x, pw):
    flat = tuple(v for pair in reversed(pw) for v in pair)
    return torch.nn.functional.pad(x, flat)

kernel_name = 'gated_mix__sliding_block_cached__dense_activation_squared_relu__decode'

def setup_inputs():

    _w = (lambda a: (lambda t: t.to(torch.bfloat16) if t.is_floating_point() else t)(torch.as_tensor(a)))
    def _A_setup():
        B, Sq, D = 2, 1, 576
        Hq, Hkv, Sk, Dh = 32, 16, 32768, 128
        assert Hq % Hkv == 0, (Hq, Hkv)
        return {
            "x": _w((lambda *s: torch.randn(*s, dtype=torch.bfloat16) * 0.05)(B, Sq, D)),
            "k_cache": _w((lambda *s: torch.randn(*s, dtype=torch.bfloat16) * 6.4)(B, Hkv, Sk, Dh)),
            "v_cache": _w((lambda *s: torch.randn(*s, dtype=torch.bfloat16) * 0.4)(B, Hkv, Sk, Dh)),
            "wq": _w((lambda *s: torch.randn(*s, dtype=torch.bfloat16) * 6.4)(D, Hq * Dh) * (D ** -0.5)),
            "wo": _w((lambda *s: torch.randn(*s, dtype=torch.bfloat16) * 0.4)(Hq * Dh, D) * ((Hq * Dh) ** -0.5)),
        }
    _A_in = _A_setup()

    def _B_setup():
        B, S, D, F = 2, 1, 576, 4608
        return {
            "x": _w((lambda *s: torch.randn(*s, dtype=torch.bfloat16) * 0.05)(B, S, D)),
            "w1": _w((lambda *s: torch.randn(*s, dtype=torch.bfloat16) * 0.05)(D, F)),
            "b1": _w((lambda *s: torch.randn(*s, dtype=torch.bfloat16) * 0.05)(F)),
            "w2": _w((lambda *s: torch.randn(*s, dtype=torch.bfloat16) * 0.05)(F, D)),
            "b2": _w((lambda *s: torch.randn(*s, dtype=torch.bfloat16) * 0.05)(D)),
        }
    _B_in = _B_setup()

    return {
        "A_x": _A_in["x"],
        "A_k_cache": _A_in["k_cache"],
        "A_v_cache": _A_in["v_cache"],
        "A_wq": _A_in["wq"],
        "A_wo": _A_in["wo"],
        "B_x": _B_in["x"],
        "B_w1": _B_in["w1"],
        "B_b1": _B_in["b1"],
        "B_w2": _B_in["w2"],
        "B_b2": _B_in["b2"],
        "gate_w": _w((lambda *s: torch.randn(*s, dtype=torch.bfloat16) * 0.05)(576) * 16.0),
    }

def reference(A_x, A_k_cache, A_v_cache, A_wq, A_wo, B_x, B_w1, B_b1, B_w2, B_b2, gate_w):
    def _A_ref(x, k_cache, v_cache, wq, wo):
        B, Sq, D = x.shape
        Hq, Dh = 32, 128
        Hkv, Sk = k_cache.shape[1], k_cache.shape[2]
        W = min(4096, max(256, Sk // 4))
        rep = Hq // Hkv
        q = (lambda x, *d: x.permute(*d))((x @ wq).reshape(B, Sq, Hq, Dh), 0, 2, 1, 3)
        k = (lambda x, n, axis: torch.repeat_interleave(x, n, dim=axis))(k_cache[:, :, Sk - W:, :], rep, axis=1)
        v = (lambda x, n, axis: torch.repeat_interleave(x, n, dim=axis))(v_cache[:, :, Sk - W:, :], rep, axis=1)
        scores = torch.einsum("bhqd,bhkd->bhqk", q, k) * (Dh ** -0.5)
        p = _softmax(scores, axis=-1)
        o = torch.einsum("bhqk,bhkd->bhqd", p, v)
        return (lambda x, *d: x.permute(*d))(o, 0, 2, 1, 3).reshape(B, Sq, Hq * Dh) @ wo

    def _B_ref(x, w1, b1, w2, b2):
        h = torch.einsum("bsd,df->bsf", x, w1) + b1
        zero = torch.zeros_like(h)
        r = torch.where(h > zero, h, zero)
        h = r * r
        out = torch.einsum("bsf,fd->bsd", h, w2) + b2
        return out

    x = A_x
    g = _sigmoid((x * gate_w).sum(-1, keepdims=True))
    a = _A_ref(x, A_k_cache, A_v_cache, A_wq, A_wo)
    b = _B_ref(x, B_w1, B_b1, B_w2, B_b2)
    return g * a + (1 - g) * b
```

```python
KNAME = "gated_mix__sliding_block_cached__dense_activation_squared_relu__decode_kernel"
HEADER = open("gated_mix__sliding_block_cached__dense_activation_squared_relu__decode.s.ref").read().split("; Override launch")[0]

def wrap(body, grid, block, lds, vgpr=256, sgpr=102, accum=None):
    if accum is None:
        accum = (vgpr + 3)//4*4
        accum = min(accum, 256)
    s = HEADER
    s += f"; @launch grid=({grid},1,1) block=({block},1,1) lds={lds}\n"
    s += f""".amdgcn_target "amdgcn-amd-amdhsa--gfx950"
.text
.globl {KNAME}
.p2align 8
.type {KNAME},@function
{KNAME}:
{body}
.section .rodata,"a"
.p2align 6
.amdhsa_kernel {KNAME}
  .amdhsa_next_free_vgpr {vgpr}
  .amdhsa_next_free_sgpr {sgpr}
  .amdhsa_accum_offset {accum}
  .amdhsa_group_segment_fixed_size 0
  .amdhsa_kernarg_size 112
  .amdhsa_user_sgpr_count 2
  .amdhsa_user_sgpr_kernarg_segment_ptr 1
  .amdhsa_system_sgpr_workgroup_id_x 1
.end_amdhsa_kernel
"""
    return s
```

```python
import sys
from gen_common import KNAME, HEADER

QP   = 0x1000
HP   = 0x100000
OPT  = 0x200000
OP   = 0x300000
WS_BYTES = 0x400000
QB, HB, GB, MW, LW, QF_FLAG, KB = 0, 512, 1088, 1152, 1216, 1280, 10240
RED0 = 2048
RED1 = KB
LDS_BYTES = KB + 131072
LOG2E = 0x3fb8aa3b
SCALE = 0x3db504f3
SEL = 16

class G:
    def __init__(s, diag=False, spin=100000):
        s.L = []; s.diag = diag; s.spin = spin
    def __call__(s, x): s.L.append("    " + x)
    def label(s, x): s.L.append(x + ":")
    def srd(s, d, lo, nbytes):
        s(f"s_mov_b64 s[{d}:{d+1}], s[{lo}:{lo+1}]")
        s(f"s_mov_b32 s{d+2}, {nbytes}"); s(f"s_mov_b32 s{d+3}, 0x20000")
    def stamp(s, k):
        if s.diag:
            s(f"s_memrealtime s[{76+2*k}:{77+2*k}]")
            s("s_waitcnt lgkmcnt(0)")
    def dump_stamps(s, role, n):
        if not s.diag: return
        s.srd(68, 40, 0x40000)
        s("s_lshl_b32 s72, s2, 10")
        if role is None:
            s("s_lshl_b32 s73, s3, 6"); s("s_add_u32 s72, s72, s73")
        else:
            s(f"s_add_u32 s72, s72, {role*64}")
        s("s_mov_b64 exec, 1")
        s("v_mov_b32 v4, 0")
        for k in range(n):
            s(f"v_mov_b32 v5, s{76+2*k}")
            s(f"buffer_store_dword v5, v4, s[68:71], s72 offen offset:{4*k}")
            s("s_nop 1")
    def tag(s):
        s("s_mul_i32 s47, s47, 0x9E3779B1")
        s("s_add_u32 s47, s47, 0x7F4A7C15")
    def selectors(s, t0):
        a, b, c, d, e = t0, t0+1, t0+2, t0+3, t0+4
        s(f"v_and_b32 v{a}, 1, v0")
        s(f"v_lshlrev_b32 v{a}, 4, v{a}")
        s(f"v_bfe_u32 v{b}, v0, 1, 2")
        s(f"v_mov_b32 v{c}, 0x0d0c")
        s(f"v_mov_b32 v{d}, 0x0f0e")
        s(f"v_mov_b32 v{e}, 0x0c0c0c0c")
        s(f"v_lshlrev_b32 v{c}, v{a}, v{c}")
        s(f"v_lshlrev_b32 v{d}, v{a}, v{d}")
        s(f"v_xor_b32 v{c}, v{c}, v{e}")
        s(f"v_xor_b32 v{d}, v{d}, v{e}")
        for k in range(4):
            s(f"v_cmp_eq_u32 vcc, {k}, v{b}")
            s("s_nop 1")
            s(f"v_cndmask_b32 v{SEL+k}, v{e}, v{c}, vcc")
            s(f"v_cndmask_b32 v{SEL+4+k}, v{e}, v{d}, vcc")
    def perm4(s, dst, src, par):
        for k in range(4):
            s(f"v_perm_b32 v{dst+k}, v{src}, v{src}, v{SEL+4*par+k}")
    def gemv_chain(s, n, xreg, data, aset, acc, waitfn):
        dreg = (lambda t: data[t]) if isinstance(data, list) else (lambda t: data + 4*t)
        s.perm4(aset, xreg, 0)
        for t in range(n):
            cur = aset + 4*(t & 1); nxt = aset + 4*((t+1) & 1)
            if t+1 < n: s.perm4(nxt, xreg + ((t+1) >> 1), (t+1) & 1)
            else: s("s_nop 1")
            w = waitfn(t)
            if w is not None: s(f"s_waitcnt vmcnt({w})")
            c = "0" if t == 0 else f"v[{acc}:{acc+3}]"
            s(f"v_mfma_f32_16x16x32_bf16 v[{acc}:{acc+3}], v[{cur}:{cur+3}], v[{dreg(t)}:{dreg(t)+3}], {c}")
    def bf16r(s, dst, src):
        s(f"v_cvt_pk_bf16_f32 v{dst}, v{src}, v{src}")
        s(f"v_and_b32 v{dst}, 0xffff0000, v{dst}")
    def swap_reduce(s, op, r, t, which):
        s(f"v_mov_b32 v{t}, v{r}")
        s("s_nop 1")
        s(f"v_permlane{which}_swap_b32 v{r}, v{t}")
        s("s_nop 1")
        s(f"{op} v{r}, v{r}, v{t}")
    def dpp(s, op, dst, src, ctl):
        s(f"{op}_dpp v{dst}, v{src}, v{src} {ctl} row_mask:0xf bank_mask:0xf")
    def poll(s, name, issue, tags, full, sleep_few=2, sleep_many=8, many=16, first_issue=True, masked=True, st=None):
        if first_issue: issue()
        if st is not None and s.diag:
            s("s_waitcnt vmcnt(0)")
            s.stamp(st)
            s(f"s_mov_b32 s{76+2*(st+1)}, s75")
        s.label(f"L_poll_{name}")
        s("s_waitcnt vmcnt(0)")
        s(f"s_mov_b64 exec, {full}")
        for r in tags:
            s(f"v_cmpx_eq_u32 vcc, s47, v{r}")
        s("s_nop 1")
        s(f"s_andn2_b64 exec, {full}, exec")
        s(f"s_cbranch_scc0 L_ok_{name}")
        s("s_bcnt1_i32_b64 s74, exec")
        if not masked: s(f"s_mov_b64 exec, {full}")
        s(f"s_sleep {sleep_few}")
        s(f"s_cmp_lt_u32 s74, {many}")
        s(f"s_cbranch_scc1 L_ns_{name}")
        s(f"s_sleep {sleep_many}")
        s.label(f"L_ns_{name}")
        issue()
        s("s_sub_u32 s75, s75, 1")
        s("s_cmp_lg_u32 s75, 0")
        s(f"s_cbranch_scc1 L_poll_{name}")
        s("s_waitcnt vmcnt(0)")
        s.label(f"L_ok_{name}")
        s(f"s_mov_b64 exec, {full}")
        if st is not None and s.diag:
            s(f"s_sub_u32 s{76+2*(st+1)}, s{76+2*(st+1)}, s75")
            s(f"s_mul_i32 s{76+2*(st+1)}, s{76+2*(st+1)}, 100")
            s(f"s_add_u32 s{76+2*(st+1)}, s{76+2*(st+1)}, s76")

def build(diag=False, W=4, NV1=8, NV2=4, mask='bh', prepoll=True, s1=(1, 4), touch=True):
    g = G(diag); A = g
    A("s_cmp_ge_u32 s2, 256")
    A("s_cbranch_scc1 L_end")
    A("s_load_dwordx16 s[16:31], s[0:1], 0")
    A("s_load_dwordx8 s[32:39], s[0:1], 64")
    A("s_load_dwordx4 s[40:43], s[0:1], 96")
    if diag: A("s_memrealtime s[76:77]")
    A("v_lshrrev_b32 v1, 6, v0")
    A("v_and_b32 v0, 63, v0")
    A("v_readfirstlane_b32 s3, v1")
    A("s_and_b32 s5, s2, 7")
    A("s_lshr_b32 s6, s2, 3")
    A("s_lshr_b32 s7, s6, 4")
    A("s_lshl_b32 s8, s5, 1")
    A("s_add_u32 s7, s7, s8")
    A("s_bfe_u32 s44, s6, 0x10003")
    A("s_and_b32 s45, s6, 7")
    A("s_lshl_b32 s46, s7, 1")
    A("s_add_u32 s46, s46, s44")
    A("v_lshrrev_b32 v2, 4, v0")
    A("v_and_b32 v3, 15, v0")
    A(f"s_mov_b32 s75, {g.spin}")
    A("v_bfe_u32 v9, v0, 3, 1")
    A("s_cmp_gt_u32 s3, 1")
    A("s_cbranch_scc1 L_bulk")
    A("s_setprio 3")
    A("s_movk_i32 s8, 1152")
    A("v_mul_u32_u24 v4, s8, v9")
    A("v_lshlrev_b32 v5, 4, v3")
    A("s_mov_b32 s50, 2304"); A("s_mov_b32 s51, 0x20000"); A("s_mov_b32 s55, 0x20000")
    A("s_cmp_eq_u32 s3, 1")
    A("s_cbranch_scc1 L_s1a")
    XR, WD = 24, 40
    A("v_mad_u32_u24 v4, v2, 36, v4")
    A("s_mul_i32 s9, s45, 144")
    A(f"s_mov_b32 s8, {18*8192}")
    A("v_mad_u32_u24 v5, v2, s8, v5")
    A(f"s_mul_i32 s10, s45, {72*8192}")
    A("s_lshl_b32 s11, s46, 8")
    A("s_add_u32 s10, s10, s11")
    A(f"s_mov_b32 s54, {576*8192}")
    A("s_waitcnt lgkmcnt(0)")
    A("s_mov_b64 s[48:49], s[16:17]")
    A("s_mov_b64 s[52:53], s[22:23]")
    A(f"buffer_load_dwordx4 v[{XR}:{XR+3}], v4, s[48:51], s9 offen")
    A(f"buffer_load_dwordx4 v[{XR+4}:{XR+7}], v4, s[48:51], s9 offen offset:16")
    A(f"buffer_load_dword v{XR+8}, v4, s[48:51], s9 offen offset:32")
    for t in range(18):
        A(f"buffer_load_dwordx4 v[{WD+4*t}:{WD+4*t+3}], v5, s[52:55], s10 offen nt")
        if t < 17: A("s_add_u32 s10, s10, 8192")
    A("v_mov_b32 v6, 0")
    A(f"ds_write_b32 v6, v6 offset:{QF_FLAG}")
    A("s_branch L_s0b")
    g.label("L_s1a")
    A("s_mul_i32 s8, s2, 1821")
    A("s_lshr_b32 s8, s8, 16")
    A("s_mul_i32 s9, s8, 36")
    A("s_sub_u32 s9, s2, s9")
    A("v_mad_u32_u24 v4, v2, 48, v4")
    A("s_mul_i32 s10, s8, 192")
    A(f"s_mov_b32 s11, {24*9216}")
    A("v_mad_u32_u24 v5, v2, s11, v5")
    A(f"s_mul_i32 s11, s8, {96*9216}")
    A("s_lshl_b32 s12, s9, 8")
    A("s_add_u32 s11, s11, s12")
    A(f"s_mov_b32 s54, {576*9216}")
    A("s_waitcnt lgkmcnt(0)")
    A("s_mov_b64 s[48:49], s[16:17]")
    A("s_mov_b64 s[52:53], s[28:29]")
    A("s_cmp_ge_u32 s2, 216")
    A("s_cbranch_scc1 L_s1b")
    for k in range(3):
        A(f"buffer_load_dwordx4 v[{XR+4*k}:{XR+4*k+3}], v4, s[48:51], s10 offen offset:{16*k}")
    for t in range(24):
        A(f"buffer_load_dwordx4 v[{WD+4*t}:{WD+4*t+3}], v5, s[52:55], s11 offen nt")
        if t < 23: A("s_add_u32 s11, s11, 9216")
    A("s_branch L_s1b")

    g.label("L_bulk")
    VD, QF, KF, S, P, AS, OA, DA, DB, T = 24, 88, 104, 120, 136, 144, 152, 72, 76, 164
    WO, PL = 88, 24
    W2R = [104, 108, 112, 116, 156, 160]
    A("s_sub_u32 s4, s3, 2")
    A("s_lshl_b32 s11, s44, 4")
    A("s_add_u32 s11, s11, s7")
    A("s_lshl_b32 s8, s11, 23")
    A("s_lshl_b32 s9, s45, 17")
    A("s_add_u32 s8, s8, s9")
    A("s_add_u32 s8, s8, 0x700000")
    if mask == 'h':
        A("s_mul_i32 s11, s2, 0x9E3779B1"); A("s_lshr_b32 s11, s11, 27")
    for j in range(4):
        A(f"s_add_u32 s9, s4, {8*j}")
        A("s_xor_b32 s9, s9, s11")
        A(f"s_lshl_b32 s{64+j}, s9, 12")
    A("v_xor_b32 v4, v3, v2")
    A("v_lshlrev_b32 v4, 4, v4")
    A("v_lshl_add_u32 v4, v2, 8, v4")
    A("v_xor_b32 v5, 64, v4")
    A("v_xor_b32 v6, 0x80, v4")
    A("v_xor_b32 v7, 0xc0, v4")
    A("v_lshlrev_b32 v8, 4, v3")
    A("v_lshl_add_u32 v8, v2, 10, v8")
    A("s_lshl_b32 s10, s4, 14")
    A(f"s_add_u32 s10, s10, {KB}")
    A("s_mov_b32 s50, 0x20000"); A("s_mov_b32 s51, 0x20000"); A("s_mov_b32 s54, 0x20000"); A("s_mov_b32 s55, 0x20000")
    A("s_mov_b32 m0, s10")
    A("s_waitcnt lgkmcnt(0)")
    A("s_add_u32 s48, s18, s8"); A("s_addc_u32 s49, s19, 0")
    A("s_add_u32 s52, s20, s8"); A("s_addc_u32 s53, s21, 0")
    def setup_mid():
        A("s_load_dword s47, s[42:43], 0")
        g.selectors(S)
        A("v_xor_b32 v12, v3, v2")
        A("v_lshlrev_b32 v12, 4, v12")
        A("v_lshl_add_u32 v12, v3, 8, v12")
        A("v_add_u32 v12, s10, v12")
        A("v_xor_b32 v13, 64, v12")
        A("v_xor_b32 v14, 0x80, v12")
        A("v_xor_b32 v15, 0xc0, v12")
        A("v_lshlrev_b32 v10, 8, v9")
        A("v_lshl_add_u32 v10, v2, 4, v10")
        A("v_lshlrev_b32 v11, 5, v9")
        g.srd(56, 24, 4096*1152)
        A("s_mov_b64 s[60:61], s[32:33]")
        A("s_cmp_lt_u32 s4, 6")
        A(f"s_cselect_b32 s62, {4608*1152}, 0")
        A("s_mov_b32 s63, 0x20000")
        A("s_waitcnt lgkmcnt(0)")
        A("s_barrier")
        g.tag()
    def vload(idx):
        j, r = idx // 4, idx % 4
        d = VD + 16*j + 4*r
        A(f"buffer_load_dwordx4 v[{d}:{d+3}], v8, s[52:55], s{64+j} offen offset:{256*r} nt")
    n = 0
    for j in range(4):
        if j > 0:
            A(f"s_add_u32 m0, s10, {4096*j}")
            if n < W: A("s_nop 0")
        for t4 in range(4):
            if n >= W: A(f"s_waitcnt vmcnt({W-1})")
            A(f"buffer_load_dwordx4 v{4+t4}, s[48:51], s{64+j} offen offset:{1024*t4} nt lds")
            n += 1
            if n == W: setup_mid()
    for idx in range(NV1):
        A(f"s_waitcnt vmcnt({W-1})")
        vload(idx)
    for idx in range(NV1, NV1+NV2):
        vload(idx)
    g.stamp(1)
    A("v_mov_b32 v4, 0")
    g.label("L_qspin")
    A(f"ds_read_b32 v5, v4 offset:{QF_FLAG}")
    for jj in range(4):
        A(f"ds_read_b128 v[{QF+4*jj}:{QF+4*jj+3}], v10 offset:{QB+64*jj}")
    A("s_waitcnt lgkmcnt(4)")
    A("v_readfirstlane_b32 s72, v5")
    A("s_cmp_eq_u32 s72, 1")
    A("s_cbranch_scc1 L_qok")
    A("s_sleep 2")
    A("s_sub_u32 s75, s75, 1")
    A("s_cmp_lg_u32 s75, 0")
    A("s_cbranch_scc1 L_qspin")
    g.label("L_qok")
    g.stamp(2)
    for j in range(4):
        if NV1 < W: A(f"s_waitcnt vmcnt({16+4*(3-j)})")
        for jj in range(4):
            A(f"ds_read_b128 v[{KF+4*jj}:{KF+4*jj+3}], v{12+jj} offset:{4096*j}")
        for jj in range(4):
            A(f"s_waitcnt lgkmcnt({3-jj})")
            c = "0" if jj == 0 else f"v[{S+4*j}:{S+4*j+3}]"
            A(f"v_mfma_f32_16x16x32_bf16 v[{S+4*j}:{S+4*j+3}], v[{KF+4*jj}:{KF+4*jj+3}], v[{QF+4*jj}:{QF+4*jj+3}], {c}")
    for idx in range(NV1+NV2, 16):
        vload(idx)
    if NV1+NV2 >= 12: A("s_nop 7")
    for j in range(4):
        for h in range(2):
            a = S + 4*j + 2*h
            A(f"v_cvt_pk_bf16_f32 v{T}, v{a}, v{a+1}")
            A(f"v_lshlrev_b32 v{a}, 16, v{T}")
            A(f"v_and_b32 v{a+1}, 0xffff0000, v{T}")
            A(f"v_mul_f32 v{a}, {SCALE:#x}, v{a}")
            A(f"v_mul_f32 v{a+1}, {SCALE:#x}, v{a+1}")
            A(f"v_cvt_pk_bf16_f32 v{T}, v{a}, v{a+1}")
            A(f"v_lshlrev_b32 v{a}, 16, v{T}")
            A(f"v_and_b32 v{a+1}, 0xffff0000, v{T}")
    A(f"v_max3_f32 v{T}, v{S}, v{S+1}, v{S+2}")
    for k in range(3, 15, 2):
        A(f"v_max3_f32 v{T}, v{T}, v{S+k}, v{S+k+1}")
    A(f"v_max_f32 v{T}, v{T}, v{S+15}")
    g.swap_reduce("v_max_f32", T, T+1, 16)
    g.swap_reduce("v_max_f32", T, T+1, 32)
    A("s_lshl_b32 s11, s4, 2")
    A(f"v_add_u32 v{T+3}, s11, v11")
    A("s_mov_b64 exec, 0x101")
    A(f"ds_write_b32 v{T+3}, v{T} offset:{MW}")
    A("s_mov_b64 exec, -1")
    g.stamp(3)
    A(f"s_mov_b32 s72, {LOG2E:#x}")
    A(f"v_mul_f32 v{T+1}, {LOG2E^0x80000000:#x}, v{T}")
    for k in range(16):
        A(f"v_fma_f32 v{S+k}, v{S+k}, s72, v{T+1}")
    for k in range(16):
        A(f"v_exp_f32 v{S+k}, v{S+k}")
    A("s_nop 0")
    for k in range(8):
        A(f"v_cvt_pk_bf16_f32 v{P+k}, v{S+2*k}, v{S+2*k+1}")
    A(f"v_add_f32 v{T+2}, v{S}, v{S+1}")
    for k in range(2, 16):
        A(f"v_add_f32 v{T+2}, v{T+2}, v{S+k}")
    g.swap_reduce("v_add_f32", T+2, T+1, 16)
    g.swap_reduce("v_add_f32", T+2, T+1, 32)
    A("s_mov_b64 exec, 0x101")
    A(f"ds_write_b32 v{T+3}, v{T+2} offset:{LW}")
    A("s_mov_b64 exec, -1")
    A("s_mov_b32 exec_lo, 0x01ff01ff")
    A("s_mov_b32 exec_hi, 0x01ff01ff")
    A(f"s_movk_i32 s72, {4*1152}")
    A("v_lshlrev_b32 v4, 4, v3")
    A("v_mad_u32_u24 v5, v2, s72, v4")
    A(f"s_movk_i32 s72, {6*1152}")
    A("v_mad_u32_u24 v6, v2, s72, v4")
    A("s_lshl_b32 s72, s46, 3"); A("s_add_u32 s72, s72, s4"); A(f"s_mul_i32 s72, s72, {16*1152}")
    A("s_mul_i32 s73, s45, 144"); A("s_add_u32 s72, s72, s73")
    for t in range(4):
        A(f"buffer_load_dwordx4 v[{WO+4*t}:{WO+4*t+3}], v5, s[56:59], s72 offen offset:{1152*t} nt")
    A("s_mul_i32 s72, s46, 6"); A("s_add_u32 s72, s72, s4"); A(f"s_mul_i32 s72, s72, {24*1152}")
    A("s_add_u32 s72, s72, s73")
    A(f"s_add_u32 s73, s72, {3*1152}")
    for t in range(6):
        A(f"buffer_load_dwordx4 v[{W2R[t]}:{W2R[t]+3}], v6, s[60:63], s{72 + t//3} offen offset:{1152*(t%3)} nt")
    A("s_mov_b64 exec, -1")
    g.srd(48, 42, WS_BYTES)
    aRED0, aPUBR, aPUBS, aG0, aG1, aRED1, aH, aFR, aFS = (S+k for k in range(9))
    A("s_lshl_b32 s72, s4, 10")
    A(f"v_lshlrev_b32 v{aRED0}, 4, v0")
    A(f"v_add_u32 v{aRED1}, s72, v{aRED0}")
    A(f"v_add_u32 v{aRED1}, s72, v{aRED1}")
    A(f"v_mov_b32 v{aPUBS}, v{aRED0}")
    A(f"v_add_u32 v{aRED0}, s72, v{aRED0}")
    A("s_and_b32 s72, s4, 1")
    A("s_lshl_b32 s73, s72, 9")
    A(f"v_bfe_u32 v{aPUBR}, v0, 1, 1")
    A(f"v_lshlrev_b32 v{aPUBR}, 8, v{aPUBR}")
    A(f"v_lshrrev_b32 v4, 2, v0")
    A(f"v_lshl_add_u32 v{aPUBR}, v4, 4, v{aPUBR}")
    A(f"v_and_b32 v4, 1, v0")
    A(f"v_lshl_add_u32 v{aPUBR}, v4, 3, v{aPUBR}")
    A(f"v_add_u32 v{aPUBR}, s73, v{aPUBR}")
    A("s_lshl_b32 s12, s7, 1"); A("s_add_u32 s12, s12, s72"); A("s_lshl_b32 s12, s12, 1"); A("s_add_u32 s12, s12, s44")
    A("s_lshl_b32 s12, s12, 3"); A("s_add_u32 s12, s12, s45"); A("s_mul_i32 s12, s12, 1152"); A(f"s_add_u32 s12, s12, {OPT}")
    A("s_lshl_b32 s13, s72, 5")
    A("v_mov_b32 v7, s13")
    A("s_movk_i32 s72, 1152")
    A(f"v_mul_u32_u24 v{aG1}, s72, v3")
    A(f"v_lshl_add_u32 v{aG0}, v2, 5, v{aG1}")
    A(f"s_mul_i32 s14, s46, {16*1152}")
    A(f"s_add_u32 s14, s14, {OPT}")
    A("s_lshl_b32 s15, s4, 7")
    A("s_add_u32 s15, s15, s14")
    A("s_mul_i32 s72, s4, 48")
    A(f"v_mul_u32_u24 v{aH}, 12, v2")
    A("s_movk_i32 s73, 288")
    A(f"v_mad_u32_u24 v{aH}, v9, s73, v{aH}")
    A(f"v_add_u32 v{aH}, s72, v{aH}")
    A("s_lshl_b32 s72, s4, 3")
    A(f"v_lshrrev_b32 v4, 3, v0")
    A(f"v_add_u32 v4, s72, v4")
    A(f"v_lshlrev_b32 v{aFS}, 12, v4")
    A(f"v_and_b32 v5, 7, v0")
    A(f"v_lshl_add_u32 v{aFS}, v5, 4, v{aFS}")
    A("v_cmp_lt_u32 vcc, 8, v4")
    A("v_add_u32 v5, 23, v4")
    A("s_nop 0")
    A("v_cndmask_b32 v4, v4, v5, vcc")
    A("v_bfe_u32 v5, v0, 2, 1")
    A("v_lshl_add_u32 v4, v5, 4, v4")
    A("v_and_b32 v5, 3, v0")
    A("v_lshlrev_b32 v5, 2, v5")
    A(f"v_lshl_add_u32 v{aFR}, v4, 4, v5")
    A(f"s_mul_i32 s16, s45, {18*4096}")
    A("s_lshl_b32 s73, s46, 7"); A("s_add_u32 s16, s16, s73"); A(f"s_add_u32 s16, s16, {OP}")
    g.stamp(4)
    g.gemv_chain(16, P, VD, AS, OA, lambda t: 15 - t + 10)
    A("s_nop 7")
    A(f"ds_write_b128 v{aRED0}, v[{OA}:{OA+3}] offset:{RED0}")
    A("s_waitcnt lgkmcnt(0)")
    g.stamp(5)
    A("s_barrier")
    A("s_cmp_lt_u32 s4, 6")
    A("s_cbranch_scc1 L_nopub")
    A(f"ds_read_b128 v[{PL+44}:{PL+47}], v7 offset:{MW}")
    A(f"ds_read_b128 v[{PL+48}:{PL+51}], v7 offset:{MW+16}")
    for w in range(8):
        A(f"ds_read_b64 v[{PL+16+2*w}:{PL+17+2*w}], v{aPUBR} offset:{RED0+1024*w}")
    A(f"ds_read_b128 v[{PL+32}:{PL+35}], v7 offset:{LW}")
    A(f"ds_read_b128 v[{PL+36}:{PL+39}], v7 offset:{LW+16}")
    A(f"v_mov_b32 v{PL+13}, s47")
    A(f"v_mov_b32 v{PL+15}, s47")
    A(f"v_mov_b32 v{PL+41}, s47")
    A(f"v_mov_b32 v{PL+43}, s47")
    A("v_mov_b32 v6, 0")
    A(f"s_mov_b32 s72, {LOG2E:#x}")
    A("s_waitcnt lgkmcnt(10)")
    F = PL + 44
    A(f"v_max3_f32 v{PL+40}, v{F}, v{F+1}, v{F+2}")
    A(f"v_max3_f32 v{T}, v{F+3}, v{F+4}, v{F+5}")
    A(f"v_max3_f32 v{PL+40}, v{PL+40}, v{F+6}, v{F+7}")
    A(f"v_max_f32 v{PL+40}, v{PL+40}, v{T}")
    A(f"v_mul_f32 v{T}, {LOG2E^0x80000000:#x}, v{PL+40}")
    for w in range(8): A(f"v_fma_f32 v{F+w}, v{F+w}, s72, v{T}")
    for w in range(8): A(f"v_exp_f32 v{F+w}, v{F+w}")
    A("s_waitcnt lgkmcnt(9)")
    A(f"v_mul_f32 v{PL+12}, v{F}, v{PL+16}")
    A(f"v_mul_f32 v{PL+14}, v{F}, v{PL+17}")
    for w in range(1, 8):
        A(f"s_waitcnt lgkmcnt({9-w})")
        A(f"v_fmac_f32 v{PL+12}, v{F+w}, v{PL+16+2*w}")
        A(f"v_fmac_f32 v{PL+14}, v{F+w}, v{PL+17+2*w}")
    A(f"buffer_store_dwordx4 v[{PL+12}:{PL+15}], v{aPUBS}, s[48:51], s12 offen sc1")
    A("s_waitcnt lgkmcnt(0)")
    A(f"v_mul_f32 v{PL+42}, v{F}, v{PL+32}")
    for k in range(1, 8):
        A(f"v_fmac_f32 v{PL+42}, v{F+k}, v{PL+32+k}")
    A("s_mov_b64 exec, 1")
    A(f"buffer_store_dwordx4 v[{PL+40}:{PL+43}], v6, s[48:51], s12 offen offset:1024 sc1")
    A("s_mov_b64 exec, -1")
    A("s_branch L_now2")
    g.label("L_nopub")
    def issue1():
        A(f"buffer_load_dwordx4 v[{PL}:{PL+3}], v{aG0}, s[48:51], s15 offen sc1")
        A(f"buffer_load_dwordx4 v[{PL+4}:{PL+7}], v{aG0}, s[48:51], s15 offen offset:16 sc1")
        A(f"buffer_load_dwordx4 v[{PL+8}:{PL+11}], v{aG1}, s[48:51], s14 offen offset:1024 sc1")
    A(f"ds_read2_b32 v[{P}:{P+1}], v{aH} offset0:{HB//4} offset1:{HB//4+1}")
    A(f"ds_read_b32 v{P+2}, v{aH} offset:{HB+8}")
    A("s_waitcnt lgkmcnt(0)")
    g.gemv_chain(6, P, W2R, AS, DB, lambda t: 0 if t == 0 else None)
    A("s_nop 7")
    A(f"ds_write_b128 v{aRED1}, v[{DB}:{DB+3}] offset:{RED1+1024}")
    g.label("L_now2")
    g.stamp(6)
    issue1()
    g.poll("1", issue1, [PL+1, PL+3, PL+5, PL+7, PL+9, PL+11], "-1", s1[0], s1[1], 16, first_issue=False, st=10)
    A("s_nop 2")
    g.stamp(7)
    Ms, Ls = PL+8, PL+10
    m, w_, t_ = PL+12, PL+13, PL+14
    g.dpp("v_max_f32", m, Ms, "quad_perm:[1,0,3,2]")
    A("s_nop 1")
    g.dpp("v_max_f32", m, m, "quad_perm:[2,3,0,1]")
    A("s_nop 1")
    g.dpp("v_max_f32", m, m, "row_half_mirror")
    A(f"v_sub_f32 v{w_}, v{Ms}, v{m}")
    A(f"v_mul_f32 v{w_}, {LOG2E:#x}, v{w_}")
    A(f"v_exp_f32 v{w_}, v{w_}")
    A("s_nop 0")
    A(f"v_mul_f32 v{t_}, v{w_}, v{Ls}")
    for r in (PL, PL+2, PL+4, PL+6):
        A(f"v_mul_f32 v{r}, v{w_}, v{r}")
    for ctl in ("quad_perm:[1,0,3,2]", "quad_perm:[2,3,0,1]", "row_half_mirror"):
        for r in (t_, PL, PL+2, PL+4, PL+6):
            g.dpp("v_add_f32", r, r, ctl)
    A(f"v_rcp_f32 v{t_}, v{t_}")
    A("s_nop 0")
    for r in (PL, PL+2, PL+4, PL+6):
        A(f"v_mul_f32 v{r}, v{t_}, v{r}")
    A(f"v_cvt_pk_bf16_f32 v{P}, v{PL}, v{PL+2}")
    A(f"v_cvt_pk_bf16_f32 v{P+1}, v{PL+4}, v{PL+6}")
    g.gemv_chain(4, P, WO, AS, DA, lambda t: None)
    A("s_nop 7")
    A(f"ds_write_b128 v{aRED1}, v[{DA}:{DA+3}] offset:{RED1}")
    A("s_waitcnt lgkmcnt(0)")
    g.stamp(8)
    A("s_barrier")
    A("s_cmp_ge_u32 s4, 3")
    A("s_cbranch_scc1 L_final")
    A("s_cmp_lt_u32 s4, 2")
    A("s_cselect_b64 exec, -1, 0xffff")
    for w in range(8):
        A(f"ds_read_b32 v{PL+16+w}, v{aFR} offset:{RED1+2048*w}")
    for w in range(6):
        A(f"ds_read_b32 v{PL+24+w}, v{aFR} offset:{RED1+1024+2048*w}")
    A(f"v_mov_b32 v{PL+1}, s47")
    A(f"v_mov_b32 v{PL+3}, s47")
    A("s_waitcnt lgkmcnt(12)")
    A(f"v_add_f32 v{PL}, v{PL+16}, v{PL+17}")
    for w in range(2, 8):
        A(f"s_waitcnt lgkmcnt({13-w})")
        A(f"v_add_f32 v{PL}, v{PL}, v{PL+16+w}")
    A("s_waitcnt lgkmcnt(4)")
    A(f"v_add_f32 v{PL+2}, v{PL+24}, v{PL+25}")
    for w in range(2, 6):
        A(f"s_waitcnt lgkmcnt({5-w})")
        A(f"v_add_f32 v{PL+2}, v{PL+2}, v{PL+24+w}")
    A(f"buffer_store_dwordx4 v[{PL}:{PL+3}], v{aFS}, s[48:51], s16 offen sc1")
    if diag:
        g.stamp(9)
        g.label("L_dump")
        g.dump_stamps(None, 12)
    A("s_endpgm")
    g.label("L_final")
    if diag: A("s_mov_b32 s94, 0")
    A("s_cmp_lg_u32 s4, 4")
    A("s_cbranch_scc1 " + ("L_dump" if diag else "L_end"))
    A("s_cmp_ge_u32 s46, 18")
    A("s_cbranch_scc1 " + ("L_dump" if diag else "L_end"))
    A("s_mul_i32 s72, s45, 18"); A("s_add_u32 s72, s72, s46"); A("s_lshl_b32 s72, s72, 12"); A(f"s_add_u32 s72, s72, {OP}")
    def issue2():
        for k in range(4):
            A(f"buffer_load_dwordx4 v[{PL+4*k}:{PL+4*k+3}], v{aPUBS}, s[48:51], s72 offen offset:{1024*k} sc1")
    issue2()
    A("s_cmp_ge_u32 s46, 9")
    A("s_cselect_b32 s8, 1, 0")
    A("s_mul_i32 s9, s8, 9")
    A("s_sub_u32 s9, s46, s9")
    g.srd(52, 34, 1152)
    g.srd(56, 38, 2304)
    A("s_mul_i32 s73, s45, 144"); A("s_lshl_b32 s10, s9, 4"); A("s_add_u32 s73, s73, s10")
    A("v_and_b32 v5, 7, v0")
    A("v_lshlrev_b32 v5, 1, v5")
    A(f"buffer_load_ushort v{PL+16}, v5, s[52:55], s73 offen")
    A("s_lshl_b32 s10, s8, 3")
    A("v_mov_b32 v6, s10")
    A(f"ds_read_b64 v[{PL+18}:{PL+19}], v6 offset:{GB}")
    A("s_mul_i32 s10, s8, 1152"); A("s_add_u32 s10, s10, s73")
    A("s_waitcnt lgkmcnt(0)")
    g.poll("2", issue2, [PL+1+2*k for k in range(8)], "-1", 1, 4, 24, first_issue=False)
    a, b = PL, PL+2
    for k in range(1, 4):
        A(f"v_add_f32 v{a}, v{a}, v{PL+4*k}")
        A(f"v_add_f32 v{b}, v{b}, v{PL+4*k+2}")
    A("s_nop 0")
    g.dpp("v_add_f32", a, a, "row_ror:8")
    g.dpp("v_add_f32", b, b, "row_ror:8")
    for which in (16, 32):
        A(f"v_mov_b32 v{PL+4}, v{a}")
        A(f"v_mov_b32 v{PL+5}, v{b}")
        A("s_nop 0")
        A(f"v_permlane{which}_swap_b32 v{a}, v{PL+4}")
        A(f"v_permlane{which}_swap_b32 v{b}, v{PL+5}")
        A("s_nop 0")
        A(f"v_add_f32 v{a}, v{a}, v{PL+4}")
        A(f"v_add_f32 v{b}, v{b}, v{PL+5}")
    g.bf16r(a, a); g.bf16r(b, b)
    A(f"v_lshlrev_b32 v{PL+16}, 16, v{PL+16}")
    A(f"v_add_f32 v{b}, v{b}, v{PL+16}")
    g.bf16r(b, b)
    A(f"v_mul_f32 v{a}, v{PL+18}, v{a}")
    A(f"v_mul_f32 v{b}, v{PL+19}, v{b}")
    g.bf16r(a, a); g.bf16r(b, b)
    A(f"v_add_f32 v{a}, v{a}, v{b}")
    A(f"v_cvt_pk_bf16_f32 v{a}, v{a}, v{a}")
    A("s_mov_b64 exec, 0xff")
    A(f"buffer_store_short v{a}, v5, s[56:59], s10 offen")
    A("s_or_b32 s8, s45, s46")
    A("s_cmp_lg_u32 s8, 0")
    A("s_cbranch_scc1 L_fin2")
    A("s_mov_b64 exec, 1")
    A(f"v_mov_b32 v{b}, s47")
    A(f"buffer_store_dword v{b}, v5, s[48:51], 0 offen sc1")
    g.label("L_fin2")
    if diag:
        g.stamp(9)
        g.dump_stamps(None, 12)
    A("s_endpgm")

    g.label("L_s0b")
    XR, WD, AS, D, GX, GW = 24, 40, 112, 120, 124, 134
    A("s_load_dword s47, s[42:43], 0")
    g.srd(56, 36, 1152)
    A("v_and_b32 v6, 31, v0")
    A("v_mul_u32_u24 v8, 36, v6")
    A("v_lshrrev_b32 v7, 5, v0")
    A("s_movk_i32 s8, 1152")
    A("v_mad_u32_u24 v11, v7, s8, v8")
    A(f"buffer_load_dwordx4 v[{GX}:{GX+3}], v11, s[48:51], 0 offen")
    A(f"buffer_load_dwordx4 v[{GX+4}:{GX+7}], v11, s[48:51], 0 offen offset:16")
    A(f"buffer_load_dword v{GX+8}, v11, s[48:51], 0 offen offset:32")
    A(f"buffer_load_dwordx4 v[{GW}:{GW+3}], v8, s[56:59], 0 offen")
    A(f"buffer_load_dwordx4 v[{GW+4}:{GW+7}], v8, s[56:59], 0 offen offset:16")
    A(f"buffer_load_dword v{GW+8}, v8, s[56:59], 0 offen offset:32")
    g.selectors(144)
    g.srd(60, 42, WS_BYTES)
    A("v_lshlrev_b32 v10, 14, v7")
    A("v_lshl_add_u32 v10, v6, 4, v10")
    A("s_lshl_b32 s10, s7, 15"); A("s_lshl_b32 s11, s45, 11"); A("s_add_u32 s11, s11, s10")
    A("s_lshl_b32 s8, s44, 10"); A("s_add_u32 s11, s11, s8"); A(f"s_add_u32 s11, s11, {QP}")
    A("s_lshl_b32 s8, s44, 14"); A("s_add_u32 s64, s10, s8"); A(f"s_add_u32 s64, s64, {QP}")
    for k in range(1, 4): A(f"s_add_u32 s{64+k}, s64, {4096*k}")
    A("v_lshlrev_b32 v12, 4, v0")
    A("v_lshlrev_b32 v13, 10, v0")
    A("v_lshlrev_b32 v14, 4, v3")
    A("v_and_b32 v15, 1, v2")
    A("v_lshl_add_u32 v14, v15, 3, v14")
    A("v_lshl_add_u32 v14, v7, 2, v14")
    A("s_waitcnt lgkmcnt(0)")
    A("s_barrier")
    g.tag()
    A("s_waitcnt vmcnt(24)")
    g.stamp(3)
    g.gemv_chain(18, XR, WD, AS, D, lambda t: 17 - t + 6)
    for k in range(4): A(f"v_mov_b32 v{AS+1+2*k}, s47")
    A("s_nop 4")
    for k in range(4): A(f"v_mov_b32 v{AS+2*k}, v{D+k}")
    A(f"buffer_store_dwordx4 v[{AS}:{AS+3}], v10, s[60:63], s11 offen sc1")
    A(f"buffer_store_dwordx4 v[{AS+4}:{AS+7}], v10, s[60:63], s11 offen offset:512 sc1")
    g.stamp(1)
    A("s_waitcnt vmcnt(2)")
    acc, t0, t1, t2, t3 = 144, 145, 146, 147, 148
    A(f"v_mov_b32 v{acc}, 0")
    for k in range(9):
        A(f"v_lshlrev_b32 v{t0}, 16, v{GX+k}")
        A(f"v_and_b32 v{t1}, 0xffff0000, v{GX+k}")
        A(f"v_lshlrev_b32 v{t2}, 16, v{GW+k}")
        A(f"v_and_b32 v{t3}, 0xffff0000, v{GW+k}")
        A(f"v_mul_f32 v{t0}, v{t0}, v{t2}")
        A(f"v_mul_f32 v{t1}, v{t1}, v{t3}")
        A(f"v_cvt_pk_bf16_f32 v{t0}, v{t0}, v{t1}")
        A(f"v_lshlrev_b32 v{t1}, 16, v{t0}")
        A(f"v_and_b32 v{t0}, 0xffff0000, v{t0}")
        A(f"v_add_f32 v{acc}, v{acc}, v{t1}")
        A(f"v_add_f32 v{acc}, v{acc}, v{t0}")
    for ctl in ("quad_perm:[1,0,3,2]", "quad_perm:[2,3,0,1]", "row_half_mirror", "row_mirror"):
        A("s_nop 1")
        g.dpp("v_add_f32", acc, acc, ctl)
    g.swap_reduce("v_add_f32", acc, t0, 16)
    g.bf16r(acc, acc)
    A(f"v_mul_f32 v{acc}, {LOG2E^0x80000000:#x}, v{acc}")
    A(f"v_exp_f32 v{acc}, v{acc}")
    A("s_nop 0")
    A(f"v_add_f32 v{acc}, 1.0, v{acc}")
    A(f"v_rcp_f32 v{acc}, v{acc}")
    A("s_nop 0")
    g.bf16r(acc, acc)
    A(f"v_sub_f32 v{acc+1}, 1.0, v{acc}")
    g.bf16r(acc+1, acc+1)
    A("v_lshlrev_b32 v7, 3, v7")
    A("s_mov_b32 exec_lo, 1"); A("s_mov_b32 exec_hi, 1")
    A(f"ds_write_b64 v7, v[{acc}:{acc+1}] offset:{GB}")
    if prepoll:
        A("s_mov_b64 s[14:15], 0xffff")
        A("s_mov_b64 exec, s[14:15]")
        g.poll("pq", lambda: A(f"buffer_load_dwordx2 v[{WD}:{WD+1}], v13, s[60:63], s64 offen offset:1016 sc1"), [WD+1], "s[14:15]", 4, 4, 64)
    A("s_mov_b64 exec, -1")
    g.stamp(4)
    def issueq():
        for idx in range(16):
            A(f"buffer_load_dwordx4 v[{WD+4*idx}:{WD+4*idx+3}], v12, s[60:63], s{64+idx//4} offen offset:{1024*(idx%4)} sc1")
    g.poll("q", issueq, [WD+1+2*k for k in range(32)], "-1", 4, 4, 64, masked=False)
    g.stamp(2)
    for half in range(2):
        for e in range(2):
            r0 = WD + 4*half + 2*e
            for rb in range(1, 8):
                A(f"v_add_f32 v{r0}, v{r0}, v{r0+8*rb}")
        A(f"v_cvt_pk_bf16_f32 v{WD+4*half}, v{WD+4*half}, v{WD+4*half+2}")
    A(f"ds_write_b32 v14, v{WD} offset:{QB}")
    A(f"ds_write_b32 v14, v{WD+4} offset:{QB+256}")
    A("v_mov_b32 v5, 1")
    A("v_mov_b32 v4, 0")
    A("s_waitcnt lgkmcnt(0)")
    A(f"ds_write_b32 v4, v5 offset:{QF_FLAG}")
    A("s_waitcnt lgkmcnt(0)")
    g.dump_stamps(None, 5)
    A("s_endpgm")
    g.label("L_s1b")
    XR, WD, AS, D, B1 = 24, 40, 136, 144, 148
    g.srd(56, 30, 9216)
    g.srd(60, 42, WS_BYTES)
    A("s_load_dword s47, s[42:43], 0")
    A("v_and_b32 v6, 31, v0")
    A("v_lshrrev_b32 v7, 5, v0")
    A("s_mov_b32 s12, 36864")
    A("v_mul_u32_u24 v11, s12, v7")
    A("v_lshl_add_u32 v10, v6, 4, v11")
    A("s_mul_i32 s13, s46, 18")
    A("v_add_u32 v12, s13, v6")
    A("v_lshlrev_b32 v8, 4, v12")
    A("v_and_b32 v13, 15, v12")
    A("v_lshrrev_b32 v12, 4, v12")
    A("v_lshl_add_u32 v12, v12, 10, v11")
    A("v_lshl_add_u32 v12, v13, 4, v12")
    A("s_movk_i32 s12, 288")
    A("v_mul_u32_u24 v14, s12, v7")
    A("v_lshl_add_u32 v14, v6, 4, v14")
    A(f"s_mov_b32 s64, {HP}")
    for k in range(1, 6): A(f"s_mov_b32 s{64+k}, {HP+73728*k}")
    A("s_mov_b32 s14, 0x0003ffff"); A("s_mov_b32 s15, 0x0003ffff")
    A("s_mul_i32 s11, s8, 73728"); A("s_lshl_b32 s12, s9, 10"); A("s_add_u32 s11, s11, s12"); A(f"s_add_u32 s11, s11, {HP}")
    A("s_waitcnt lgkmcnt(0)")
    A("s_barrier")
    g.tag()
    if touch:
        A("v_lshlrev_b32 v15, 7, v0")
        A(f"s_mul_i32 s12, s46, {16*1152}"); A("s_mul_i32 s13, s45, 2304"); A("s_add_u32 s12, s12, s13"); A(f"s_add_u32 s12, s12, {OPT}")
        A("s_mov_b64 exec, 0x3ffff")
        A("buffer_load_dword v160, v15, s[60:63], s12 offen sc1")
        A("s_mul_i32 s12, s45, 18"); A("s_add_u32 s12, s12, s46"); A("s_lshl_b32 s12, s12, 12"); A(f"s_add_u32 s12, s12, {OP}")
        A("s_cmp_lt_u32 s46, 18")
        A("s_cselect_b32 s62, s62, 0")
        A("s_mov_b64 exec, 0xffffffff")
        A("buffer_load_dword v161, v15, s[60:63], s12 offen sc1")
        A(f"s_mov_b32 s62, {WS_BYTES}")
        A("s_mov_b64 exec, -1")
    A("s_cmp_ge_u32 s2, 216")
    A("s_cbranch_scc1 L_s1_gather")
    g.selectors(152)
    X = 2 if touch else 0
    A(f"s_waitcnt vmcnt({24+X})")
    g.gemv_chain(24, XR, WD, AS, D, lambda t: 23 - t + X)
    for k in range(4): A(f"v_mov_b32 v{AS+1+2*k}, s47")
    A("s_nop 4")
    for k in range(4): A(f"v_mov_b32 v{AS+2*k}, v{D+k}")
    A(f"buffer_store_dwordx4 v[{AS}:{AS+3}], v10, s[60:63], s11 offen sc1")
    A(f"buffer_store_dwordx4 v[{AS+4}:{AS+7}], v10, s[60:63], s11 offen offset:512 sc1")
    g.label("L_s1_gather")
    g.stamp(1)
    A("s_mov_b64 exec, s[14:15]")
    A(f"buffer_load_dwordx4 v[{B1}:{B1+3}], v8, s[56:59], 0 offen")
    if prepoll:
        A("s_mov_b32 s12, 0"); A("s_mov_b32 s13, 0x00020001")
        A("s_mov_b64 exec, s[12:13]")
        def issueph():
            for rb in range(6):
                A(f"buffer_load_dwordx2 v[{WD+2*rb}:{WD+2*rb+1}], v12, s[60:63], s{64+rb} offen offset:776 sc1")
        g.poll("ph", issueph, [WD+1+2*rb for rb in range(6)], "s[12:13]", 4, 4, 64)
        A("s_mov_b64 exec, s[14:15]")
    g.stamp(3)
    def issueh():
        for rb in range(6):
            for k in range(4):
                d = WD + 16*rb + 4*k
                A(f"buffer_load_dwordx4 v[{d}:{d+3}], v12, s[60:63], s{64+rb} offen offset:{256*k} sc1")
    g.poll("h", issueh, [WD+1+2*k for k in range(48)], "s[14:15]", 4, 4, 64)
    g.stamp(2)
    for k in range(4):
        for e in range(2):
            r0 = WD + 4*k + 2*e
            for rb in range(1, 6):
                A(f"v_add_f32 v{r0}, v{r0}, v{r0+16*rb}")
    for k in range(4):
        AB, gb = k >> 1, k & 1
        d = 2*gb + AB
        a, b = WD + 4*k, WD + 4*k + 2
        t0, t1 = 152, 153
        A(f"v_cvt_pk_bf16_f32 v{a}, v{a}, v{b}")
        A(f"v_lshlrev_b32 v{t0}, 16, v{B1+d}")
        A(f"v_and_b32 v{t1}, 0xffff0000, v{B1+d}")
        A(f"v_and_b32 v{b}, 0xffff0000, v{a}")
        A(f"v_lshlrev_b32 v{a}, 16, v{a}")
        A(f"v_add_f32 v{a}, v{a}, v{t0}")
        A(f"v_add_f32 v{b}, v{b}, v{t1}")
        A(f"v_cvt_pk_bf16_f32 v{a}, v{a}, v{b}")
        A(f"v_and_b32 v{b}, 0xffff0000, v{a}")
        A(f"v_lshlrev_b32 v{a}, 16, v{a}")
        A(f"v_max_f32 v{a}, 0, v{a}")
        A(f"v_max_f32 v{b}, 0, v{b}")
        A(f"v_mul_f32 v{a}, v{a}, v{a}")
        A(f"v_mul_f32 v{b}, v{b}, v{b}")
        A(f"v_cvt_pk_bf16_f32 v{156+d}, v{a}, v{b}")
    A(f"ds_write_b128 v14, v[156:159] offset:{HB}")
    A("s_waitcnt lgkmcnt(0)")
    g.dump_stamps(None, 4)
    g.label("L_end")
    A("s_endpgm")
    body = "\n".join(g.L)
    s = HEADER
    s += f"; @launch grid=(256,1,1) block=(640,1,1) lds={LDS_BYTES}\n"
    s += f""".amdgcn_target "amdgcn-amd-amdhsa--gfx950"
.text
.globl {KNAME}
.p2align 8
.type {KNAME},@function
{KNAME}:
{body}
.section .rodata,"a"
.p2align 6
.amdhsa_kernel {KNAME}
  .amdhsa_next_free_vgpr 168
  .amdhsa_next_free_sgpr 102
  .amdhsa_accum_offset 168
  .amdhsa_group_segment_fixed_size 0
  .amdhsa_kernarg_size 112
  .amdhsa_user_sgpr_count 2
  .amdhsa_user_sgpr_kernarg_segment_ptr 1
  .amdhsa_system_sgpr_workgroup_id_x 1
  .amdhsa_float_denorm_mode_32 3
.end_amdhsa_kernel
"""
    return s

if __name__ == "__main__":
    open("k4.s", "w").write(build(False))
    open("k4d.s", "w").write(build(True))
    open("k4d_nopre.s", "w").write(build(True, prepoll=False))
    open("k4d_notouch.s", "w").write(build(True, touch=False))
    open("k4d_nv.s", "w").write(build(True, NV1=10, NV2=6))
    open("k4d_nv6.s", "w").write(build(True, NV1=6, NV2=4))
```

```python
import sys
from gen_common import KNAME, HEADER

QP   = 0x1000
HP   = 0x80000
OPT  = 0x100000
OREC = 640
OPX  = 0x60000
OP   = 0x200000
WS_BYTES = 0x400000
QB, HB, GB, MW, LW, QFLAG, RED0, KB = 0, 512, 1088, 1152, 1216, 1280, 2048, 10240
RED1 = KB
LDS_BYTES = KB + 131072
LOG2E = 0x3fb8aa3b
SCALE = 0x3db504f3
SEL = 16
SI = 24
SC = 28

class G:
    def __init__(s, diag=False, spin=100000):
        s.L = []; s.diag = diag; s.spin = spin
    def __call__(s, x): s.L.append("    " + x)
    def label(s, x): s.L.append(x + ":")
    def srd(s, d, lo, nbytes):
        s(f"s_mov_b64 s[{d}:{d+1}], s[{lo}:{lo+1}]")
        s(f"s_mov_b32 s{d+2}, {nbytes}"); s(f"s_mov_b32 s{d+3}, 0x20000")
    def stamp(s, k):
        if s.diag:
            s(f"s_memrealtime s[{76+2*k}:{77+2*k}]")
            s("s_waitcnt lgkmcnt(0)")
    def dump_stamps(s, n):
        if not s.diag: return
        s.srd(68, 40, 0x40000)
        s("s_lshl_b32 s72, s2, 10")
        s("s_lshl_b32 s73, s3, 6"); s("s_add_u32 s72, s72, s73")
        s("s_mov_b64 exec, 1")
        s("v_mov_b32 v4, 0")
        for k in range(n):
            s(f"v_mov_b32 v5, s{76+2*k}")
            s(f"buffer_store_dword v5, v4, s[68:71], s72 offen offset:{4*k}")
            s("s_nop 1")
    def tag(s):
        s("s_mul_i32 s47, s47, 0x9E3779B1")
        s("s_add_u32 s47, s47, 0x7F4A7C15")
        for k in range(4): s(f"s_mov_b32 s{SI+k}, {0x07060500+k:#x}")
        s(f"s_mov_b32 s{SC}, 0x0c0c0400"); s(f"s_mov_b32 s{SC+1}, 0x0c040100"); s(f"s_mov_b32 s{SC+2}, 0x04020100")
        s("v_mov_b32 v1, s47")
    def tag4(s, dst, src):
        for k in range(4): s(f"v_perm_b32 v{dst+k}, v{src[k]}, v1, s{SI+k}")
    def check4(s, d, t):
        s(f"v_perm_b32 v{t}, v{d+1}, v{d}, s{SC}")
        s(f"v_perm_b32 v{t}, v{d+2}, v{t}, s{SC+1}")
        s(f"v_perm_b32 v{t}, v{d+3}, v{t}, s{SC+2}")
        s(f"v_cmpx_eq_u32 vcc, s47, v{t}")
    def selectors(s, t0):
        a, b, c, d, e = t0, t0+1, t0+2, t0+3, t0+4
        s(f"v_and_b32 v{a}, 1, v0")
        s(f"v_lshlrev_b32 v{a}, 4, v{a}")
        s(f"v_bfe_u32 v{b}, v0, 1, 2")
        s(f"v_mov_b32 v{c}, 0x0d0c")
        s(f"v_mov_b32 v{d}, 0x0f0e")
        s(f"v_mov_b32 v{e}, 0x0c0c0c0c")
        s(f"v_lshlrev_b32 v{c}, v{a}, v{c}")
        s(f"v_lshlrev_b32 v{d}, v{a}, v{d}")
        s(f"v_xor_b32 v{c}, v{c}, v{e}")
        s(f"v_xor_b32 v{d}, v{d}, v{e}")
        for k in range(4):
            s(f"v_cmp_eq_u32 vcc, {k}, v{b}")
            s("s_nop 1")
            s(f"v_cndmask_b32 v{SEL+k}, v{e}, v{c}, vcc")
            s(f"v_cndmask_b32 v{SEL+4+k}, v{e}, v{d}, vcc")
    def perm4(s, dst, src, par):
        for k in range(4):
            s(f"v_perm_b32 v{dst+k}, v{src}, v{src}, v{SEL+4*par+k}")
    def gemv_chain(s, n, xreg, data, aset, acc, waitfn, after=None):
        dreg = (lambda t: data[t]) if isinstance(data, list) else (lambda t: data + 4*t)
        s.perm4(aset, xreg, 0)
        for t in range(n):
            cur = aset + 4*(t & 1); nxt = aset + 4*((t+1) & 1)
            if t+1 < n: s.perm4(nxt, xreg + ((t+1) >> 1), (t+1) & 1)
            else: s("s_nop 1")
            w = waitfn(t)
            if w is not None: s(f"s_waitcnt vmcnt({w})")
            c = "0" if t == 0 else f"v[{acc}:{acc+3}]"
            s(f"v_mfma_f32_16x16x32_bf16 v[{acc}:{acc+3}], v[{cur}:{cur+3}], v[{dreg(t)}:{dreg(t)+3}], {c}")
            if after: after(t)
    def bf16r(s, dst, src):
        s(f"v_cvt_pk_bf16_f32 v{dst}, v{src}, v{src}")
        s(f"v_and_b32 v{dst}, 0xffff0000, v{dst}")
    def swap_reduce(s, op, r, t, which):
        s(f"v_mov_b32 v{t}, v{r}")
        s("s_nop 1")
        s(f"v_permlane{which}_swap_b32 v{r}, v{t}")
        s("s_nop 1")
        s(f"{op} v{r}, v{r}, v{t}")
    def dpp(s, op, dst, src, ctl):
        s(f"{op}_dpp v{dst}, v{src}, v{src} {ctl} row_mask:0xf bank_mask:0xf")
    def poll(s, name, issue, check, full, sleep_few=2, sleep_many=8, many=16, first_issue=True, masked=True, st=None):
        if first_issue: issue()
        if st is not None and s.diag:
            s("s_waitcnt vmcnt(0)")
            s.stamp(st)
            s(f"s_mov_b32 s{76+2*(st+1)}, s75")
        s.label(f"L_poll_{name}")
        s("s_waitcnt vmcnt(0)")
        s(f"s_mov_b64 exec, {full}")
        check()
        s("s_nop 1")
        s(f"s_andn2_b64 exec, {full}, exec")
        s(f"s_cbranch_scc0 L_ok_{name}")
        s("s_bcnt1_i32_b64 s74, exec")
        if not masked: s(f"s_mov_b64 exec, {full}")
        s(f"s_sleep {sleep_few}")
        if sleep_many:
            s(f"s_cmp_lt_u32 s74, {many}")
            s(f"s_cbranch_scc1 L_ns_{name}")
            s(f"s_sleep {sleep_many}")
            s.label(f"L_ns_{name}")
        issue()
        s("s_sub_u32 s75, s75, 1")
        s("s_cmp_lg_u32 s75, 0")
        s(f"s_cbranch_scc1 L_poll_{name}")
        s("s_waitcnt vmcnt(0)")
        s.label(f"L_ok_{name}")
        s(f"s_mov_b64 exec, {full}")
        if st is not None and s.diag:
            s(f"s_sub_u32 s{76+2*(st+1)}, s{76+2*(st+1)}, s75")
            s(f"s_mul_i32 s{76+2*(st+1)}, s{76+2*(st+1)}, 100")
            s(f"s_add_u32 s{76+2*(st+1)}, s{76+2*(st+1)}, s76")

def build(diag=False, W=4, NQ=10, mask='bh', prepoll=True, s1=(1, 4), nsmall0=6, qfl='sc1', ofl='sc1', dual=True, prio=1, dualmask=31, lateY=True):
    g = G(diag); A = g
    A("s_cmp_ge_u32 s2, 256")
    A("s_cbranch_scc1 L_end")
    A("s_load_dwordx16 s[16:31], s[0:1], 0")
    A("s_load_dwordx8 s[32:39], s[0:1], 64")
    A("s_load_dwordx4 s[40:43], s[0:1], 96")
    if diag: A("s_memrealtime s[76:77]")
    A("v_lshrrev_b32 v1, 6, v0")
    A("v_and_b32 v0, 63, v0")
    A("v_readfirstlane_b32 s3, v1")
    A("s_and_b32 s5, s2, 7")
    A("s_lshr_b32 s6, s2, 3")
    A("s_lshr_b32 s7, s6, 4")
    A("s_lshl_b32 s8, s5, 1")
    A("s_add_u32 s7, s7, s8")
    A("s_bfe_u32 s44, s6, 0x10003")
    A("s_and_b32 s45, s6, 7")
    A("s_lshl_b32 s46, s7, 1")
    A("s_add_u32 s46, s46, s44")
    A("v_lshrrev_b32 v2, 4, v0")
    A("v_and_b32 v3, 15, v0")
    A(f"s_mov_b32 s75, {g.spin}")
    A("v_bfe_u32 v9, v0, 3, 1")
    A("s_cmp_gt_u32 s3, 1")
    A("s_cbranch_scc1 L_bulk")
    A("s_setprio 3")
    A("s_movk_i32 s8, 1152")
    A("v_mul_u32_u24 v4, s8, v9")
    A("v_lshlrev_b32 v5, 4, v3")
    A("s_mov_b32 s50, 2304"); A("s_mov_b32 s51, 0x20000"); A("s_mov_b32 s55, 0x20000")
    A("s_cmp_eq_u32 s3, 1")
    A("s_cbranch_scc1 L_s1a")
    XR, WD = 24, 40
    A("v_mad_u32_u24 v4, v2, 36, v4")
    A("s_mul_i32 s9, s45, 144")
    A(f"s_mov_b32 s8, {18*8192}")
    A("v_mad_u32_u24 v5, v2, s8, v5")
    A(f"s_mul_i32 s10, s45, {72*8192}")
    A("s_lshl_b32 s11, s46, 8")
    A("s_add_u32 s10, s10, s11")
    A(f"s_mov_b32 s54, {576*8192}")
    A("s_waitcnt lgkmcnt(0)")
    A("s_mov_b64 s[48:49], s[16:17]")
    A("s_mov_b64 s[52:53], s[22:23]")
    A(f"buffer_load_dwordx4 v[{XR}:{XR+3}], v4, s[48:51], s9 offen")
    A(f"buffer_load_dwordx4 v[{XR+4}:{XR+7}], v4, s[48:51], s9 offen offset:16")
    A(f"buffer_load_dword v{XR+8}, v4, s[48:51], s9 offen offset:32")
    for t in range(18):
        A(f"buffer_load_dwordx4 v[{WD+4*t}:{WD+4*t+3}], v5, s[52:55], s10 offen nt")
        if t < 17: A("s_add_u32 s10, s10, 8192")
    A("v_mov_b32 v6, 0")
    A(f"ds_write_b32 v6, v6 offset:{QFLAG}")
    A("s_branch L_s0b")
    g.label("L_s1a")
    A("s_mul_i32 s8, s2, 1821")
    A("s_lshr_b32 s8, s8, 16")
    A("s_mul_i32 s9, s8, 36")
    A("s_sub_u32 s9, s2, s9")
    A("v_mad_u32_u24 v4, v2, 48, v4")
    A("s_mul_i32 s10, s8, 192")
    A(f"s_mov_b32 s11, {24*9216}")
    A("v_mad_u32_u24 v5, v2, s11, v5")
    A(f"s_mul_i32 s11, s8, {96*9216}")
    A("s_lshl_b32 s12, s9, 8")
    A("s_add_u32 s11, s11, s12")
    A(f"s_mov_b32 s54, {576*9216}")
    A("s_waitcnt lgkmcnt(0)")
    A("s_mov_b64 s[48:49], s[16:17]")
    A("s_mov_b64 s[52:53], s[28:29]")
    A("s_cmp_ge_u32 s2, 216")
    A("s_cbranch_scc1 L_s1b")
    for k in range(3):
        A(f"buffer_load_dwordx4 v[{XR+4*k}:{XR+4*k+3}], v4, s[48:51], s10 offen offset:{16*k}")
    for t in range(24):
        A(f"buffer_load_dwordx4 v[{WD+4*t}:{WD+4*t+3}], v5, s[52:55], s11 offen nt")
        if t < 23: A("s_add_u32 s11, s11, 9216")
    A("s_branch L_s1b")

    g.label("L_bulk")
    VD, QF, KF, S, P, AS, OA, DA, DB, T = 24, 88, 104, 120, 136, 144, 152, 80, 76, 164
    WO, PL = 88, 24
    W2R = [104, 108, 112, 116, 156, 160]
    aRED0, aPUBR, aL16, aG0, aG1, aRED1, aH, aFR, aFS, aBP0, aBP1 = (S+k for k in range(11))
    A("s_sub_u32 s4, s3, 2")
    if prio == 1: A("s_setprio 1")
    if prio == 2:
        A("s_setprio 1")
        A("s_cmp_lt_u32 s4, 4")
        A("s_cbranch_scc1 L_prio")
        A("s_setprio 2")
        g.label("L_prio")
    A("s_lshl_b32 s11, s44, 4")
    A("s_add_u32 s11, s11, s7")
    A("s_lshl_b32 s8, s11, 23")
    A("s_lshl_b32 s9, s45, 17")
    A("s_add_u32 s8, s8, s9")
    A("s_add_u32 s8, s8, 0x700000")
    if mask == 'h':
        A("s_mul_i32 s11, s2, 0x9E3779B1"); A("s_lshr_b32 s11, s11, 27")
    for j in range(4):
        A(f"s_add_u32 s9, s4, {8*j}")
        A("s_xor_b32 s9, s9, s11")
        A(f"s_lshl_b32 s{64+j}, s9, 12")
    A("v_xor_b32 v4, v3, v2")
    A("v_lshlrev_b32 v4, 4, v4")
    A("v_lshl_add_u32 v4, v2, 8, v4")
    A("v_xor_b32 v5, 64, v4")
    A("v_xor_b32 v6, 0x80, v4")
    A("v_xor_b32 v7, 0xc0, v4")
    A("v_lshlrev_b32 v8, 4, v3")
    A("v_lshl_add_u32 v8, v2, 10, v8")
    A("s_lshl_b32 s10, s4, 14")
    A(f"s_add_u32 s10, s10, {KB}")
    A("s_mov_b32 s50, 0x20000"); A("s_mov_b32 s51, 0x20000"); A("s_mov_b32 s54, 0x20000"); A("s_mov_b32 s55, 0x20000")
    A("s_mov_b32 m0, s10")
    A("s_waitcnt lgkmcnt(0)")
    A("s_add_u32 s48, s18, s8"); A("s_addc_u32 s49, s19, 0")
    A("s_add_u32 s52, s20, s8"); A("s_addc_u32 s53, s21, 0")
    def setup_mid():
        A("s_load_dword s47, s[42:43], 0")
        g.selectors(S)
        A("v_xor_b32 v12, v3, v2")
        A("v_lshlrev_b32 v12, 4, v12")
        A("v_lshl_add_u32 v12, v3, 8, v12")
        A("v_add_u32 v12, s10, v12")
        A("v_xor_b32 v13, 64, v12")
        A("v_xor_b32 v14, 0x80, v12")
        A("v_xor_b32 v15, 0xc0, v12")
        A("v_lshlrev_b32 v10, 8, v9")
        A("v_lshl_add_u32 v10, v2, 4, v10")
        A("v_lshlrev_b32 v11, 5, v9")
        g.srd(56, 24, 4096*1152)
        A("s_mov_b64 s[60:61], s[32:33]")
        A("s_cmp_lt_u32 s4, 6")
        A(f"s_cselect_b32 s62, {4608*1152}, 0")
        A("s_mov_b32 s63, 0x20000")
        A("s_waitcnt lgkmcnt(0)")
        A("s_barrier")
        g.tag()
    def vload(idx):
        j, r = idx // 4, idx % 4
        d = VD + 16*j + 4*r
        A(f"buffer_load_dwordx4 v[{d}:{d+3}], v8, s[52:55], s{64+j} offen offset:{256*r} nt")
    def qk_tile(j):
        for jj in range(4):
            A(f"ds_read_b128 v[{KF+4*jj}:{KF+4*jj+3}], v{12+jj} offset:{4096*j}")
        for jj in range(4):
            A(f"s_waitcnt lgkmcnt({3-jj})")
            c = "0" if jj == 0 else f"v[{S+4*j}:{S+4*j+3}]"
            A(f"v_mfma_f32_16x16x32_bf16 v[{S+4*j}:{S+4*j+3}], v[{KF+4*jj}:{KF+4*jj+3}], v[{QF+4*jj}:{QF+4*jj+3}], {c}")
    def c_q01():
        g.stamp(1)
        A("v_mov_b32 v4, 0")
        g.label("L_qspin")
        A(f"ds_read_b32 v5, v4 offset:{QFLAG}")
        for jj in range(4):
            A(f"ds_read_b128 v[{QF+4*jj}:{QF+4*jj+3}], v10 offset:{QB+64*jj}")
        A("s_waitcnt lgkmcnt(4)")
        A("v_readfirstlane_b32 s72, v5")
        A("s_cmp_eq_u32 s72, 1")
        A("s_cbranch_scc1 L_qok")
        A("s_sleep 2")
        A("s_sub_u32 s75, s75, 1")
        A("s_cmp_lg_u32 s75, 0")
        A("s_cbranch_scc1 L_qspin")
        g.label("L_qok")
        g.stamp(2)
        qk_tile(0); qk_tile(1)
    def c_q23():
        qk_tile(2); qk_tile(3)
        A("s_nop 3")
    def c_round():
        for j in range(4):
            for h in range(2):
                a = S + 4*j + 2*h
                A(f"v_cvt_pk_bf16_f32 v{T}, v{a}, v{a+1}")
                A(f"v_lshlrev_b32 v{a}, 16, v{T}")
                A(f"v_and_b32 v{a+1}, 0xffff0000, v{T}")
                A(f"v_mul_f32 v{a}, {SCALE:#x}, v{a}")
                A(f"v_mul_f32 v{a+1}, {SCALE:#x}, v{a+1}")
                A(f"v_cvt_pk_bf16_f32 v{T}, v{a}, v{a+1}")
                A(f"v_lshlrev_b32 v{a}, 16, v{T}")
                A(f"v_and_b32 v{a+1}, 0xffff0000, v{T}")
    def c_soft():
        A(f"v_max3_f32 v{T}, v{S}, v{S+1}, v{S+2}")
        for k in range(3, 15, 2):
            A(f"v_max3_f32 v{T}, v{T}, v{S+k}, v{S+k+1}")
        A(f"v_max_f32 v{T}, v{T}, v{S+15}")
        g.swap_reduce("v_max_f32", T, T+1, 16)
        g.swap_reduce("v_max_f32", T, T+1, 32)
        A("s_lshl_b32 s11, s4, 2")
        A(f"v_add_u32 v{T+3}, s11, v11")
        A(f"s_mov_b32 s72, {LOG2E:#x}")
        A(f"v_mul_f32 v{T+1}, {LOG2E^0x80000000:#x}, v{T}")
        for k in range(16):
            A(f"v_fma_f32 v{S+k}, v{S+k}, s72, v{T+1}")
        for k in range(16):
            A(f"v_exp_f32 v{S+k}, v{S+k}")
        A("s_nop 0")
        for k in range(8):
            A(f"v_cvt_pk_bf16_f32 v{P+k}, v{S+2*k}, v{S+2*k+1}")
        A(f"v_add_f32 v{T+2}, v{S}, v{S+1}")
        for k in range(2, 16):
            A(f"v_add_f32 v{T+2}, v{T+2}, v{S+k}")
        g.swap_reduce("v_add_f32", T+2, T+1, 16)
        g.swap_reduce("v_add_f32", T+2, T+1, 32)
        A("s_mov_b64 exec, 0x101")
        A(f"ds_write_b32 v{T+3}, v{T} offset:{MW}")
        A(f"ds_write_b32 v{T+3}, v{T+2} offset:{LW}")
        A("s_mov_b64 exec, -1")
        g.stamp(3)
    def c_addr():
        g.srd(48, 42, WS_BYTES)
        A("s_lshl_b32 s72, s4, 10")
        A(f"v_lshlrev_b32 v{aL16}, 4, v0")
        A(f"v_add_u32 v{aRED0}, s72, v{aL16}")
        A(f"v_add_u32 v{aRED1}, s72, v{aRED0}")
        A("s_and_b32 s72, s4, 1")
        A("s_lshl_b32 s73, s72, 9")
        A(f"v_and_b32 v{aPUBR}, 1, v0")
        A(f"v_lshlrev_b32 v{aPUBR}, 8, v{aPUBR}")
        A(f"v_bfe_u32 v4, v0, 1, 4")
        A(f"v_lshl_add_u32 v{aPUBR}, v4, 4, v{aPUBR}")
        A(f"v_add_u32 v{aPUBR}, s73, v{aPUBR}")
        A("s_lshl_b32 s12, s7, 1"); A("s_add_u32 s12, s12, s72"); A("s_lshl_b32 s12, s12, 1"); A("s_add_u32 s12, s12, s44")
        A("s_lshl_b32 s12, s12, 3"); A("s_add_u32 s12, s12, s45"); A(f"s_mul_i32 s12, s12, {OREC}"); A(f"s_add_u32 s12, s12, {OPT}")
        A("s_lshl_b32 s13, s72, 5")
        A("v_mov_b32 v7, s13")
        A(f"s_add_u32 s13, s12, {OPX}")
        A(f"s_movk_i32 s72, {OREC}")
        A(f"v_and_b32 v4, 3, v0")
        A(f"v_lshlrev_b32 v4, 4, v4")
        A(f"v_lshrrev_b32 v5, 2, v0")
        A(f"v_mad_u32_u24 v{aG0}, v5, s72, v4")
        A(f"s_mul_i32 s14, s46, {16*OREC}")
        A(f"s_add_u32 s14, s14, {OPT}")
        A("s_lshl_b32 s15, s4, 6")
        A("s_add_u32 s15, s15, s14")
        A(f"s_add_u32 s21, s14, {OPX}"); A(f"s_add_u32 s17, s15, {OPX}")
        A(f"v_lshlrev_b32 v{aBP0}, 7, v9")
        A(f"v_lshl_add_u32 v{aBP0}, v2, 2, v{aBP0}")
        A(f"v_add_u32 v{aBP1}, 64, v{aBP0}")
        A("s_mul_i32 s72, s4, 48")
        A(f"v_mul_u32_u24 v{aH}, 12, v2")
        A("s_movk_i32 s73, 288")
        A(f"v_mad_u32_u24 v{aH}, v9, s73, v{aH}")
        A(f"v_add_u32 v{aH}, s72, v{aH}")
        A("s_lshl_b32 s72, s4, 6")
        A(f"v_add_u32 v4, s72, v0")
        A(f"v_lshrrev_b32 v5, 3, v4")
        A(f"v_lshlrev_b32 v{aFS}, 12, v5")
        A(f"v_and_b32 v5, 7, v0")
        A(f"v_lshl_add_u32 v{aFS}, v5, 4, v{aFS}")
        A("v_cmp_lt_u32 vcc, 35, v4")
        A("v_add_u32 v5, 92, v4")
        A("s_nop 0")
        A("v_cndmask_b32 v4, v4, v5, vcc")
        A("v_lshrrev_b32 v5, 2, v4")
        A(f"v_lshlrev_b32 v{aFR}, 4, v5")
        A("v_bfe_u32 v5, v4, 1, 1")
        A(f"v_lshl_add_u32 v{aFR}, v5, 8, v{aFR}")
        A("v_and_b32 v5, 1, v4")
        A(f"v_lshl_add_u32 v{aFR}, v5, 3, v{aFR}")
        A(f"s_mul_i32 s16, s45, {9*4096}")
        A("s_lshl_b32 s73, s46, 7"); A("s_add_u32 s16, s16, s73"); A(f"s_add_u32 s16, s16, {OP}")
        A(f"s_movk_i32 s72, {4*1152}")
        A("v_lshlrev_b32 v4, 4, v3")
        A("v_mad_u32_u24 v5, v2, s72, v4")
        A(f"s_movk_i32 s72, {6*1152}")
        A("v_mad_u32_u24 v6, v2, s72, v4")
        A("s_lshl_b32 s18, s46, 3"); A("s_add_u32 s18, s18, s4"); A(f"s_mul_i32 s18, s18, {16*1152}")
        A("s_mul_i32 s73, s45, 144"); A("s_add_u32 s18, s18, s73")
        A("s_mul_i32 s19, s46, 6"); A("s_add_u32 s19, s19, s4"); A(f"s_mul_i32 s19, s19, {24*1152}")
        A("s_add_u32 s19, s19, s73")
        A(f"s_add_u32 s20, s19, {3*1152}")
        A("s_mov_b32 s22, 0x01ff01ff"); A("s_mov_b32 s23, 0x01ff01ff")
    def small(k):
        if k < 4: A(f"buffer_load_dwordx4 v[{WO+4*k}:{WO+4*k+3}], v5, s[56:59], s18 offen offset:{1152*k} nt")
        else:
            t = k - 4
            A(f"buffer_load_dwordx4 v[{W2R[t]}:{W2R[t]+3}], v6, s[60:63], s{19 + t//3} offen offset:{1152*(t%3)} nt")
    n = 0
    for j in range(4):
        if j > 0:
            A(f"s_add_u32 m0, s10, {4096*j}")
            if n < W: A("s_nop 0")
        for t4 in range(4):
            if n >= W: A(f"s_waitcnt vmcnt({W-1})")
            A(f"buffer_load_dwordx4 v{4+t4}, s[48:51], s{64+j} offen offset:{1024*t4} nt lds")
            n += 1
            if n == W: setup_mid()
    chunks = {NQ: c_q01, NQ+1: c_q23, NQ+2: c_round, NQ+3: c_soft, NQ+4: c_addr}
    assert NQ >= W and NQ + 4 <= 15
    for idx in range(16):
        A(f"s_waitcnt vmcnt({W-1})")
        vload(idx)
        if idx in chunks: chunks[idx]()
    g.stamp(4)
    if prio: A("s_setprio 0")
    A("s_mov_b64 exec, s[22:23]")
    for k in range(nsmall0): small(k)
    A("s_mov_b64 exec, -1")
    issued = [nsmall0]
    def pv_after(t):
        if t > 15 - W and issued[0] < 10 and t < 15:
            A("s_mov_b64 exec, s[22:23]")
            small(issued[0]); issued[0] += 1
            A("s_mov_b64 exec, -1")
    g.gemv_chain(16, P, VD, AS, OA, lambda t: None if t <= 15 - W else 15 - t + issued[0], pv_after)
    if issued[0] < 10:
        A("s_mov_b64 exec, s[22:23]")
        while issued[0] < 10:
            small(issued[0]); issued[0] += 1
        A("s_mov_b64 exec, -1")
    A("s_mov_b64 s[64:65], s[42:43]")
    A("s_cmp_ge_u32 s4, 6")
    A(f"s_cselect_b32 s66, {WS_BYTES}, 0")
    A("s_mov_b32 s67, 0x20000")
    A("s_nop 3")
    A(f"ds_write_b128 v{aRED0}, v[{OA}:{OA+3}] offset:{RED0}")
    A("s_waitcnt lgkmcnt(0)")
    g.stamp(5)
    A("s_barrier")
    A("s_cmp_lt_u32 s4, 6")
    A("s_cbranch_scc1 L_nopub")
    F, OR, LR, ST = PL, PL+8, PL+40, PL+48
    A(f"ds_read_b128 v[{F}:{F+3}], v7 offset:{MW}")
    A(f"ds_read_b128 v[{F+4}:{F+7}], v7 offset:{MW+16}")
    for w in range(8):
        A(f"ds_read_b128 v[{OR+4*w}:{OR+4*w+3}], v{aPUBR} offset:{RED0+1024*w}")
    A(f"ds_read_b128 v[{LR}:{LR+3}], v7 offset:{LW}")
    A(f"ds_read_b128 v[{LR+4}:{LR+7}], v7 offset:{LW+16}")
    A(f"s_mov_b32 s72, {LOG2E:#x}")
    A("s_waitcnt lgkmcnt(10)")
    A(f"v_max3_f32 v{T+1}, v{F}, v{F+1}, v{F+2}")
    A(f"v_max3_f32 v{T}, v{F+3}, v{F+4}, v{F+5}")
    A(f"v_max3_f32 v{T+1}, v{T+1}, v{F+6}, v{F+7}")
    A(f"v_max_f32 v{T+1}, v{T+1}, v{T}")
    A(f"v_mul_f32 v{T}, {LOG2E^0x80000000:#x}, v{T+1}")
    for w in range(8): A(f"v_fma_f32 v{F+w}, v{F+w}, s72, v{T}")
    for w in range(8): A(f"v_exp_f32 v{F+w}, v{F+w}")
    A("s_waitcnt lgkmcnt(9)")
    for k in range(4): A(f"v_mul_f32 v{ST+k}, v{F}, v{OR+k}")
    for w in range(1, 8):
        A(f"s_waitcnt lgkmcnt({9-w})")
        for k in range(4): A(f"v_fmac_f32 v{ST+k}, v{F+w}, v{OR+4*w+k}")
    g.tag4(ST, [ST, ST+1, ST+2, ST+3])
    A("s_waitcnt lgkmcnt(0)")
    A("s_mov_b32 exec_lo, 0"); A("s_mov_b32 exec_hi, 0xff")
    A(f"v_mul_f32 v{ST+2}, v{F}, v{LR}")
    for k in range(1, 8): A(f"v_fmac_f32 v{ST+2}, v{F+k}, v{LR+k}")
    A(f"v_mov_b32 v{ST}, v{T+1}")
    A(f"v_mov_b32 v{ST+1}, v1")
    A(f"v_mov_b32 v{ST+3}, v1")
    A("s_mov_b32 exec_lo, -1")
    if dual:
        A(f"buffer_store_dwordx4 v[{ST}:{ST+3}], v{aL16}, s[48:51], s13 offen")
    if not lateY:
        A(f"buffer_store_dwordx4 v[{ST}:{ST+3}], v{aL16}, s[48:51], s12 offen {ofl}")
    A("s_mov_b64 exec, -1")
    A("s_branch L_now2")
    g.label("L_nopub")
    A(f"ds_read2_b32 v[{P}:{P+1}], v{aH} offset0:{HB//4} offset1:{HB//4+1}")
    A(f"ds_read_b32 v{P+2}, v{aH} offset:{HB+8}")
    A("s_waitcnt lgkmcnt(0)")
    g.gemv_chain(6, P, W2R, AS, DB, lambda t: 0 if t == 0 else None)
    A("s_nop 7")
    A(f"ds_write_b128 v{aRED1}, v[{DB}:{DB+3}] offset:{RED1+1024}")
    g.label("L_now2")
    g.stamp(6)
    ys = []
    def issue1():
        A(f"buffer_load_dwordx4 v[{PL}:{PL+3}], v{aG0}, s[48:51], s15 offen sc1")
        A(f"buffer_load_dwordx4 v[{PL+4}:{PL+7}], v{aG0}, s[48:51], s14 offen offset:512 sc1")
    def check1():
        A(f"v_cmpx_eq_u32 vcc, s47, v{PL+5}")
        A(f"v_cmpx_eq_u32 vcc, s47, v{PL+7}")
        g.check4(PL, PL+8)
    if not dual:
        g.poll("1", issue1, check1, "-1", s1[0], s1[1], 16, st=10)
    else:
        A("s_mov_b32 s8, s17"); A("s_mov_b32 s9, s21")
        A(f"s_or_b32 s75, s75, {dualmask}")
        ycnt = [0]
        def ystore():
            A("s_mov_b64 s[70:71], exec")
            A("s_mov_b32 exec_lo, -1"); A("s_mov_b32 exec_hi, 0xff")
            A(f"buffer_store_dwordx4 v[{ST}:{ST+3}], v{aL16}, s[64:67], s12 offen {ofl}")
            A("s_mov_b32 s66, 0")
            A("s_mov_b64 exec, s[70:71]")
        def issue1d():
            A(f"buffer_load_dwordx4 v[{PL}:{PL+3}], v{aG0}, s[48:51], s8 offen sc1")
            A(f"buffer_load_dwordx4 v[{PL+4}:{PL+7}], v{aG0}, s[48:51], s9 offen offset:512 sc1")
            A(f"s_and_b32 s10, s75, {dualmask}")
            A("s_cselect_b32 s8, s17, s15")
            A("s_cselect_b32 s9, s21, s14")
            if lateY:
                ycnt[0] += 1
                A(f"s_cbranch_scc1 L_noy{ycnt[0]}")
                ystore()
                g.label(f"L_noy{ycnt[0]}")
        g.poll("1", issue1d, check1, "-1", s1[0], s1[1], 16, st=10)
        ys.append(ystore)
    A("s_nop 2")
    g.stamp(7)
    Ms, Ls = PL+4, PL+6
    m, w_, t_, u_ = PL+8, PL+9, PL+10, PL+11
    g.dpp("v_max_f32", m, Ms, "row_ror:4")
    A("s_nop 1")
    g.dpp("v_max_f32", m, m, "row_ror:8")
    g.swap_reduce("v_max_f32", m, u_, 16)
    A(f"v_sub_f32 v{w_}, v{Ms}, v{m}")
    A(f"v_mul_f32 v{w_}, {LOG2E:#x}, v{w_}")
    A(f"v_exp_f32 v{w_}, v{w_}")
    A("s_nop 0")
    A(f"v_mul_f32 v{t_}, v{w_}, v{Ls}")
    for k in range(4): A(f"v_mul_f32 v{PL+k}, v{w_}, v{PL+k}")
    for ctl in ("row_ror:4", "row_ror:8"):
        for r in (t_, PL, PL+1, PL+2, PL+3):
            g.dpp("v_add_f32", r, r, ctl)
    A(f"v_mov_b32 v{u_}, v{t_}")
    A("s_nop 0")
    A(f"v_permlane16_swap_b32 v{PL}, v{PL+2}")
    A(f"v_permlane16_swap_b32 v{PL+1}, v{PL+3}")
    A(f"v_permlane16_swap_b32 v{t_}, v{u_}")
    A(f"v_add_f32 v{PL}, v{PL}, v{PL+2}")
    A(f"v_add_f32 v{PL+1}, v{PL+1}, v{PL+3}")
    A(f"v_add_f32 v{t_}, v{t_}, v{u_}")
    A(f"v_rcp_f32 v{t_}, v{t_}")
    A("s_nop 0")
    A(f"v_mul_f32 v{PL}, v{t_}, v{PL}")
    A(f"v_mul_f32 v{PL+1}, v{t_}, v{PL+1}")
    A(f"v_cvt_pk_bf16_f32 v{PL}, v{PL}, v{PL+1}")
    A(f"ds_bpermute_b32 v{P}, v{aBP0}, v{PL}")
    A(f"ds_bpermute_b32 v{P+1}, v{aBP1}, v{PL}")
    A("s_waitcnt lgkmcnt(0)")
    g.gemv_chain(4, P, WO, AS, DA, lambda t: None)
    A("s_nop 7")
    A(f"ds_write_b128 v{aRED1}, v[{DA}:{DA+3}] offset:{RED1}")
    A("s_waitcnt lgkmcnt(0)")
    g.stamp(8)
    A("s_barrier")
    A("s_cmp_ge_u32 s4, 2")
    A("s_cbranch_scc1 L_final")
    A("s_cmp_eq_u32 s4, 0")
    A("s_cselect_b64 exec, -1, 0xff")
    RA, RB = PL+8, PL+24
    for w in range(8):
        A(f"ds_read_b64 v[{RA+2*w}:{RA+2*w+1}], v{aFR} offset:{RED1+2048*w}")
    for w in range(6):
        A(f"ds_read_b64 v[{RB+2*w}:{RB+2*w+1}], v{aFR} offset:{RED1+1024+2048*w}")
    A("s_waitcnt lgkmcnt(12)")
    A(f"v_add_f32 v{PL}, v{RA}, v{RA+2}")
    A(f"v_add_f32 v{PL+2}, v{RA+1}, v{RA+3}")
    for w in range(2, 8):
        A(f"s_waitcnt lgkmcnt({13-w})")
        A(f"v_add_f32 v{PL}, v{PL}, v{RA+2*w}")
        A(f"v_add_f32 v{PL+2}, v{PL+2}, v{RA+2*w+1}")
    A("s_waitcnt lgkmcnt(4)")
    A(f"v_add_f32 v{PL+1}, v{RB}, v{RB+2}")
    A(f"v_add_f32 v{PL+3}, v{RB+1}, v{RB+3}")
    for w in range(2, 6):
        A(f"s_waitcnt lgkmcnt({5-w})")
        A(f"v_add_f32 v{PL+1}, v{PL+1}, v{RB+2*w}")
        A(f"v_add_f32 v{PL+3}, v{PL+3}, v{RB+2*w+1}")
    g.tag4(PL, [PL, PL+1, PL+2, PL+3])
    A(f"buffer_store_dwordx4 v[{PL}:{PL+3}], v{aFS}, s[48:51], s16 offen {ofl}")
    if diag:
        g.stamp(9)
        g.label("L_dump")
        g.dump_stamps(12)
    A("s_endpgm")
    g.label("L_final")
    if dual and lateY: ys[0]()
    if diag: A("s_mov_b32 s94, 0")
    A("s_cmp_lg_u32 s4, 4")
    A("s_cbranch_scc1 " + ("L_dump" if diag else "L_end"))
    A("s_cmp_ge_u32 s46, 9")
    A("s_cbranch_scc1 " + ("L_dump" if diag else "L_end"))
    A("s_mul_i32 s72, s45, 9"); A("s_add_u32 s72, s72, s46"); A("s_lshl_b32 s72, s72, 12"); A(f"s_add_u32 s72, s72, {OP}")
    def issue2():
        for k in range(4):
            A(f"buffer_load_dwordx4 v[{PL+4*k}:{PL+4*k+3}], v{aL16}, s[48:51], s72 offen offset:{1024*k} sc1")
    def check2():
        for k in range(4): g.check4(PL+4*k, PL+20)
    issue2()
    g.srd(52, 34, 1152)
    g.srd(56, 38, 2304)
    A("s_lshl_b32 s8, s46, 5")
    A("v_and_b32 v5, 7, v0")
    A("v_lshl_add_u32 v5, v5, 2, s8")
    A("v_cmp_lt_u32 vcc, 0x8f, v5")
    A("v_subrev_u32 v6, 0x90, v5")
    A("v_mov_b32 v7, 0")
    A("v_cndmask_b32 v5, v5, v6, vcc")
    A("v_mov_b32 v6, 8")
    A("v_cndmask_b32 v6, v7, v6, vcc")
    A("s_mul_i32 s73, s45, 144")
    A(f"buffer_load_dword v{PL+16}, v5, s[52:55], s73 offen")
    A(f"ds_read_b64 v[{PL+18}:{PL+19}], v6 offset:{GB}")
    A("v_mul_u32_u24 v6, 0x90, v6")
    A("v_add_u32 v5, v5, v6")
    A("s_waitcnt lgkmcnt(0)")
    g.poll("2", issue2, check2, "-1", 1, 4, 24, first_issue=False)
    for k in range(1, 4):
        for e in range(4): A(f"v_add_f32 v{PL+e}, v{PL+e}, v{PL+4*k+e}")
    for e in range(4): g.dpp("v_add_f32", PL+e, PL+e, "row_ror:8")
    for which in (16, 32):
        for e in range(4): A(f"v_mov_b32 v{PL+4+e}, v{PL+e}")
        for e in range(4): A(f"v_permlane{which}_swap_b32 v{PL+e}, v{PL+4+e}")
        for e in range(4): A(f"v_add_f32 v{PL+e}, v{PL+e}, v{PL+4+e}")
    a0, b0, a1, b1 = PL, PL+1, PL+2, PL+3
    A(f"v_cvt_pk_bf16_f32 v{a0}, v{a0}, v{a1}")
    A(f"v_cvt_pk_bf16_f32 v{b0}, v{b0}, v{b1}")
    A(f"v_and_b32 v{a1}, 0xffff0000, v{a0}")
    A(f"v_lshlrev_b32 v{a0}, 16, v{a0}")
    A(f"v_and_b32 v{b1}, 0xffff0000, v{b0}")
    A(f"v_lshlrev_b32 v{b0}, 16, v{b0}")
    A(f"v_and_b32 v{PL+17}, 0xffff0000, v{PL+16}")
    A(f"v_lshlrev_b32 v{PL+16}, 16, v{PL+16}")
    A(f"v_add_f32 v{b0}, v{b0}, v{PL+16}")
    A(f"v_add_f32 v{b1}, v{b1}, v{PL+17}")
    A(f"v_mul_f32 v{a0}, v{PL+18}, v{a0}")
    A(f"v_mul_f32 v{a1}, v{PL+18}, v{a1}")
    A(f"v_cvt_pk_bf16_f32 v{b0}, v{b0}, v{b1}")
    A(f"v_cvt_pk_bf16_f32 v{a0}, v{a0}, v{a1}")
    A(f"v_and_b32 v{b1}, 0xffff0000, v{b0}")
    A(f"v_lshlrev_b32 v{b0}, 16, v{b0}")
    A(f"v_mul_f32 v{b0}, v{PL+19}, v{b0}")
    A(f"v_mul_f32 v{b1}, v{PL+19}, v{b1}")
    A(f"v_and_b32 v{a1}, 0xffff0000, v{a0}")
    A(f"v_lshlrev_b32 v{a0}, 16, v{a0}")
    A(f"v_cvt_pk_bf16_f32 v{b0}, v{b0}, v{b1}")
    A(f"v_and_b32 v{b1}, 0xffff0000, v{b0}")
    A(f"v_lshlrev_b32 v{b0}, 16, v{b0}")
    A(f"v_add_f32 v{a0}, v{a0}, v{b0}")
    A(f"v_add_f32 v{a1}, v{a1}, v{b1}")
    A(f"v_cvt_pk_bf16_f32 v{a0}, v{a0}, v{a1}")
    A("s_mov_b64 exec, 0xff")
    A(f"buffer_store_dword v{a0}, v5, s[56:59], s73 offen")
    A("s_or_b32 s8, s45, s46")
    A("s_cmp_lg_u32 s8, 0")
    A("s_cbranch_scc1 L_fin2")
    A("s_mov_b64 exec, 1")
    A(f"buffer_store_dword v1, v7, s[48:51], 0 offen sc1")
    g.label("L_fin2")
    if diag:
        g.stamp(9)
        g.dump_stamps(12)
    A("s_endpgm")

    g.label("L_s0b")
    XR, WD, AS, D, GX, GW = 24, 40, 112, 120, 124, 134
    A("s_load_dword s47, s[42:43], 0")
    g.srd(56, 36, 1152)
    A("v_and_b32 v6, 31, v0")
    A("v_mul_u32_u24 v8, 36, v6")
    A("v_lshrrev_b32 v7, 5, v0")
    A("s_movk_i32 s8, 1152")
    A("v_mad_u32_u24 v11, v7, s8, v8")
    A(f"buffer_load_dwordx4 v[{GX}:{GX+3}], v11, s[48:51], 0 offen")
    A(f"buffer_load_dwordx4 v[{GX+4}:{GX+7}], v11, s[48:51], 0 offen offset:16")
    A(f"buffer_load_dword v{GX+8}, v11, s[48:51], 0 offen offset:32")
    A(f"buffer_load_dwordx4 v[{GW}:{GW+3}], v8, s[56:59], 0 offen")
    A(f"buffer_load_dwordx4 v[{GW+4}:{GW+7}], v8, s[56:59], 0 offen offset:16")
    A(f"buffer_load_dword v{GW+8}, v8, s[56:59], 0 offen offset:32")
    g.selectors(144)
    g.srd(60, 42, WS_BYTES)
    A("v_lshlrev_b32 v10, 13, v7")
    A("v_lshl_add_u32 v10, v6, 4, v10")
    A("s_lshl_b32 s10, s7, 14"); A("s_lshl_b32 s11, s45, 10"); A("s_add_u32 s11, s11, s10")
    A("s_lshl_b32 s8, s44, 9"); A("s_add_u32 s11, s11, s8"); A(f"s_add_u32 s11, s11, {QP}")
    A("s_lshl_b32 s8, s44, 13"); A("s_add_u32 s64, s10, s8"); A(f"s_add_u32 s64, s64, {QP}")
    A("s_add_u32 s65, s64, 4096")
    A("v_lshlrev_b32 v12, 4, v0")
    A("v_lshlrev_b32 v13, 9, v0")
    A("v_lshlrev_b32 v14, 4, v3")
    A("v_and_b32 v15, 1, v2")
    A("v_lshl_add_u32 v14, v15, 3, v14")
    A("v_lshl_add_u32 v14, v7, 8, v14")
    A("s_waitcnt lgkmcnt(0)")
    A("s_barrier")
    g.tag()
    A("s_waitcnt vmcnt(24)")
    g.stamp(3)
    g.gemv_chain(18, XR, WD, AS, D, lambda t: 17 - t + 6)
    A("s_nop 7")
    g.tag4(AS, [D, D+1, D+2, D+3])
    A(f"buffer_store_dwordx4 v[{AS}:{AS+3}], v10, s[60:63], s11 offen {qfl}")
    g.stamp(1)
    A("s_waitcnt vmcnt(1)")
    acc, t0, t1, t2, t3 = 144, 145, 146, 147, 148
    A(f"v_mov_b32 v{acc}, 0")
    for k in range(9):
        A(f"v_lshlrev_b32 v{t0}, 16, v{GX+k}")
        A(f"v_and_b32 v{t1}, 0xffff0000, v{GX+k}")
        A(f"v_lshlrev_b32 v{t2}, 16, v{GW+k}")
        A(f"v_and_b32 v{t3}, 0xffff0000, v{GW+k}")
        A(f"v_mul_f32 v{t0}, v{t0}, v{t2}")
        A(f"v_mul_f32 v{t1}, v{t1}, v{t3}")
        A(f"v_cvt_pk_bf16_f32 v{t0}, v{t0}, v{t1}")
        A(f"v_lshlrev_b32 v{t1}, 16, v{t0}")
        A(f"v_and_b32 v{t0}, 0xffff0000, v{t0}")
        A(f"v_add_f32 v{acc}, v{acc}, v{t1}")
        A(f"v_add_f32 v{acc}, v{acc}, v{t0}")
    for ctl in ("quad_perm:[1,0,3,2]", "quad_perm:[2,3,0,1]", "row_half_mirror", "row_mirror"):
        A("s_nop 1")
        g.dpp("v_add_f32", acc, acc, ctl)
    g.swap_reduce("v_add_f32", acc, t0, 16)
    g.bf16r(acc, acc)
    A(f"v_mul_f32 v{acc}, {LOG2E^0x80000000:#x}, v{acc}")
    A(f"v_exp_f32 v{acc}, v{acc}")
    A("s_nop 0")
    A(f"v_add_f32 v{acc}, 1.0, v{acc}")
    A(f"v_rcp_f32 v{acc}, v{acc}")
    A("s_nop 0")
    g.bf16r(acc, acc)
    A(f"v_sub_f32 v{acc+1}, 1.0, v{acc}")
    g.bf16r(acc+1, acc+1)
    A("v_lshlrev_b32 v7, 3, v7")
    A("s_mov_b32 exec_lo, 1"); A("s_mov_b32 exec_hi, 1")
    A(f"ds_write_b64 v7, v[{acc}:{acc+1}] offset:{GB}")
    if prepoll:
        A("s_mov_b64 s[14:15], 0xffff")
        A("s_mov_b64 exec, s[14:15]")
        g.poll("pq", lambda: A(f"buffer_load_dwordx4 v[{WD}:{WD+3}], v13, s[60:63], s64 offen offset:496 sc1"), lambda: g.check4(WD, t0), "s[14:15]", 4, 0, 64)
    A("s_mov_b64 exec, -1")
    g.stamp(4)
    def issueq():
        for rb in range(8):
            A(f"buffer_load_dwordx4 v[{WD+4*rb}:{WD+4*rb+3}], v12, s[60:63], s{64+rb//4} offen offset:{1024*(rb%4)} sc1")
    def checkq():
        for rb in range(8): g.check4(WD+4*rb, t0)
    g.poll("q", issueq, checkq, "-1", 4, 0, 64)
    g.stamp(2)
    for rb in range(1, 8):
        for e in range(4): A(f"v_add_f32 v{WD+e}, v{WD+e}, v{WD+4*rb+e}")
    A(f"v_cvt_pk_bf16_f32 v{WD}, v{WD}, v{WD+1}")
    A(f"v_cvt_pk_bf16_f32 v{WD+1}, v{WD+2}, v{WD+3}")
    A(f"ds_write_b64 v14, v[{WD}:{WD+1}] offset:{QB}")
    A("v_mov_b32 v5, 1")
    A("v_mov_b32 v4, 0")
    A("s_waitcnt lgkmcnt(0)")
    A(f"ds_write_b32 v4, v5 offset:{QFLAG}")
    A("s_waitcnt lgkmcnt(0)")
    g.dump_stamps(5)
    A("s_endpgm")
    g.label("L_s1b")
    XR, WD, AS, D, B1 = 24, 40, 136, 144, 148
    g.srd(56, 30, 9216)
    g.srd(60, 42, WS_BYTES)
    A("s_load_dword s47, s[42:43], 0")
    A("v_and_b32 v6, 31, v0")
    A("v_lshrrev_b32 v7, 5, v0")
    A("s_movk_i32 s12, 18432")
    A("v_mul_u32_u24 v11, s12, v7")
    A("v_lshl_add_u32 v10, v6, 4, v11")
    A("s_mul_i32 s13, s46, 18")
    A("v_add_u32 v12, s13, v6")
    A("v_lshlrev_b32 v8, 4, v12")
    A("v_and_b32 v13, 15, v12")
    A("v_lshrrev_b32 v12, 4, v12")
    A("v_lshl_add_u32 v12, v12, 9, v11")
    A("v_lshl_add_u32 v12, v13, 4, v12")
    A("s_movk_i32 s12, 288")
    A("v_mul_u32_u24 v14, s12, v7")
    A("v_lshl_add_u32 v14, v6, 4, v14")
    for k in range(6): A(f"s_mov_b32 s{64+k}, {HP+36864*k}")
    A("s_mov_b32 s14, 0x0003ffff"); A("s_mov_b32 s15, 0x0003ffff")
    A("s_mul_i32 s11, s8, 36864"); A("s_lshl_b32 s12, s9, 9"); A("s_add_u32 s11, s11, s12"); A(f"s_add_u32 s11, s11, {HP}")
    A("s_waitcnt lgkmcnt(0)")
    A("s_barrier")
    g.tag()
    A("s_cmp_ge_u32 s2, 216")
    A("s_cbranch_scc1 L_s1_gather")
    g.selectors(152)
    A("s_waitcnt vmcnt(24)")
    g.gemv_chain(24, XR, WD, AS, D, lambda t: 23 - t)
    A("s_nop 7")
    g.tag4(AS, [D, D+1, D+2, D+3])
    A(f"buffer_store_dwordx4 v[{AS}:{AS+3}], v10, s[60:63], s11 offen {qfl}")
    g.label("L_s1_gather")
    g.stamp(1)
    A("s_mov_b64 exec, s[14:15]")
    A(f"buffer_load_dwordx4 v[{B1}:{B1+3}], v8, s[56:59], 0 offen")
    if prepoll:
        A("s_mov_b32 s12, 0"); A("s_mov_b32 s13, 0x00020001")
        A("s_mov_b64 exec, s[12:13]")
        def issueph():
            for rb in range(6):
                A(f"buffer_load_dwordx4 v[{WD+4*rb}:{WD+4*rb+3}], v12, s[60:63], s{64+rb} offen offset:256 sc1")
        def checkph():
            for rb in range(6): g.check4(WD+4*rb, 152)
        g.poll("ph", issueph, checkph, "s[12:13]", 8, 0, 64)
        A("s_mov_b64 exec, s[14:15]")
    g.stamp(3)
    def issueh():
        for rb in range(6):
            for k in range(2):
                d = WD + 8*rb + 4*k
                A(f"buffer_load_dwordx4 v[{d}:{d+3}], v12, s[60:63], s{64+rb} offen offset:{256*k} sc1")
    def checkh():
        for k in range(12): g.check4(WD+4*k, 152)
    g.poll("h", issueh, checkh, "s[14:15]", 4, 0, 64)
    g.stamp(2)
    for rb in range(1, 6):
        for e in range(8): A(f"v_add_f32 v{WD+e}, v{WD+e}, v{WD+8*rb+e}")
    for d in range(4):
        a, b = WD + 2*d, WD + 2*d + 1
        t0, t1 = 152, 153
        A(f"v_cvt_pk_bf16_f32 v{a}, v{a}, v{b}")
        A(f"v_lshlrev_b32 v{t0}, 16, v{B1+d}")
        A(f"v_and_b32 v{t1}, 0xffff0000, v{B1+d}")
        A(f"v_and_b32 v{b}, 0xffff0000, v{a}")
        A(f"v_lshlrev_b32 v{a}, 16, v{a}")
        A(f"v_add_f32 v{a}, v{a}, v{t0}")
        A(f"v_add_f32 v{b}, v{b}, v{t1}")
        A(f"v_cvt_pk_bf16_f32 v{a}, v{a}, v{b}")
        A(f"v_and_b32 v{b}, 0xffff0000, v{a}")
        A(f"v_lshlrev_b32 v{a}, 16, v{a}")
        A(f"v_max_f32 v{a}, 0, v{a}")
        A(f"v_max_f32 v{b}, 0, v{b}")
        A(f"v_mul_f32 v{a}, v{a}, v{a}")
        A(f"v_mul_f32 v{b}, v{b}, v{b}")
        A(f"v_cvt_pk_bf16_f32 v{156+d}, v{a}, v{b}")
    A(f"ds_write_b128 v14, v[156:159] offset:{HB}")
    A("s_waitcnt lgkmcnt(0)")
    g.dump_stamps(4)
    g.label("L_end")
    A("s_endpgm")
    body = "\n".join(g.L)
    s = HEADER
    s += f"; @launch grid=(256,1,1) block=(640,1,1) lds={LDS_BYTES}\n"
    s += f""".amdgcn_target "amdgcn-amd-amdhsa--gfx950"
.text
.globl {KNAME}
.p2align 8
.type {KNAME},@function
{KNAME}:
{body}
.section .rodata,"a"
.p2align 6
.amdhsa_kernel {KNAME}
  .amdhsa_next_free_vgpr 168
  .amdhsa_next_free_sgpr 102
  .amdhsa_accum_offset 168
  .amdhsa_group_segment_fixed_size 0
  .amdhsa_kernarg_size 112
  .amdhsa_user_sgpr_count 2
  .amdhsa_user_sgpr_kernarg_segment_ptr 1
  .amdhsa_system_sgpr_workgroup_id_x 1
  .amdhsa_float_denorm_mode_32 3
.end_amdhsa_kernel
"""
    return s

if __name__ == "__main__":
    open("k8.s", "w").write(build(False, prio=2, nsmall0=2))
    open("k8d.s", "w").write(build(True, prio=2, nsmall0=2))
    open("k8d_early.s", "w").write(build(True, prio=2, nsmall0=2, lateY=False))
    open("k8d_s0.s", "w").write(build(True, prio=2, nsmall0=2, s1=(0, 2)))
    open("k8d_ns6.s", "w").write(build(True, prio=2, nsmall0=6))
```

```python
import sys
from gen_common import KNAME, HEADER

QP   = 0x1000
HP   = 0x80000
OPT  = 0x100000
OREC = 640
OP   = 0x200000
WS_BYTES = 0x400000
QB, HB, GB, MW, LW, QFLAG, RED0, KB = 0, 512, 1088, 1152, 1216, 1280, 2048, 10240
RED1 = KB
LDS_BYTES = KB + 131072
LOG2E = 0x3fb8aa3b
SCALE = 0x3db504f3
SEL = 16
SI = 24
SC = 28

class G:
    def __init__(s, diag=False, spin=100000):
        s.L = []; s.diag = diag; s.spin = spin
    def __call__(s, x): s.L.append("    " + x)
    def label(s, x): s.L.append(x + ":")
    def srd(s, d, lo, nbytes):
        s(f"s_mov_b64 s[{d}:{d+1}], s[{lo}:{lo+1}]")
        s(f"s_mov_b32 s{d+2}, {nbytes}"); s(f"s_mov_b32 s{d+3}, 0x20000")
    def stamp(s, k):
        if s.diag:
            s(f"s_memrealtime s[{76+2*k}:{77+2*k}]")
            s("s_waitcnt lgkmcnt(0)")
    def dump_stamps(s, n):
        if not s.diag: return
        s.srd(68, 40, 0x50000)
        s("s_lshl_b32 s72, s2, 10")
        s("s_lshl_b32 s73, s3, 6"); s("s_add_u32 s72, s72, s73"); s("s_add_u32 s72, s72, 4096")
        s("s_mov_b64 exec, 1")
        s("v_mov_b32 v4, 0")
        for k in range(n):
            s(f"v_mov_b32 v5, s{76+2*k}")
            s(f"buffer_store_dword v5, v4, s[68:71], s72 offen offset:{4*k}")
            s("s_nop 1")
    def tag(s):
        s("s_mul_i32 s47, s47, 0x9E3779B1")
        s("s_add_u32 s47, s47, 0x7F4A7C15")
        for k in range(4): s(f"s_mov_b32 s{SI+k}, {0x07060500+k:#x}")
        s(f"s_mov_b32 s{SC}, 0x0c0c0400"); s(f"s_mov_b32 s{SC+1}, 0x0c040100"); s(f"s_mov_b32 s{SC+2}, 0x04020100")
        s("v_mov_b32 v1, s47")
    def tag4(s, dst, src):
        for k in range(4): s(f"v_perm_b32 v{dst+k}, v{src[k]}, v1, s{SI+k}")
    def check4(s, d, t):
        s(f"v_perm_b32 v{t}, v{d+1}, v{d}, s{SC}")
        s(f"v_perm_b32 v{t}, v{d+2}, v{t}, s{SC+1}")
        s(f"v_perm_b32 v{t}, v{d+3}, v{t}, s{SC+2}")
        s(f"v_cmpx_eq_u32 vcc, s47, v{t}")
    def selectors(s, t0):
        a, b, c, d, e = t0, t0+1, t0+2, t0+3, t0+4
        s(f"v_and_b32 v{a}, 1, v0")
        s(f"v_lshlrev_b32 v{a}, 4, v{a}")
        s(f"v_bfe_u32 v{b}, v0, 1, 2")
        s(f"v_mov_b32 v{c}, 0x0d0c")
        s(f"v_mov_b32 v{d}, 0x0f0e")
        s(f"v_mov_b32 v{e}, 0x0c0c0c0c")
        s(f"v_lshlrev_b32 v{c}, v{a}, v{c}")
        s(f"v_lshlrev_b32 v{d}, v{a}, v{d}")
        s(f"v_xor_b32 v{c}, v{c}, v{e}")
        s(f"v_xor_b32 v{d}, v{d}, v{e}")
        for k in range(4):
            s(f"v_cmp_eq_u32 vcc, {k}, v{b}")
            s("s_nop 1")
            s(f"v_cndmask_b32 v{SEL+k}, v{e}, v{c}, vcc")
            s(f"v_cndmask_b32 v{SEL+4+k}, v{e}, v{d}, vcc")
    def perm4(s, dst, src, par):
        for k in range(4):
            s(f"v_perm_b32 v{dst+k}, v{src}, v{src}, v{SEL+4*par+k}")
    def gemv_chain(s, n, xreg, data, aset, acc, waitfn, after=None):
        dreg = (lambda t: data[t]) if isinstance(data, list) else (lambda t: data + 4*t)
        s.perm4(aset, xreg, 0)
        for t in range(n):
            cur = aset + 4*(t & 1); nxt = aset + 4*((t+1) & 1)
            if t+1 < n: s.perm4(nxt, xreg + ((t+1) >> 1), (t+1) & 1)
            else: s("s_nop 1")
            w = waitfn(t)
            if w is not None: s(f"s_waitcnt vmcnt({w})")
            c = "0" if t == 0 else f"v[{acc}:{acc+3}]"
            s(f"v_mfma_f32_16x16x32_bf16 v[{acc}:{acc+3}], v[{cur}:{cur+3}], v[{dreg(t)}:{dreg(t)+3}], {c}")
            if after: after(t)
    def bf16r(s, dst, src):
        s(f"v_cvt_pk_bf16_f32 v{dst}, v{src}, v{src}")
        s(f"v_and_b32 v{dst}, 0xffff0000, v{dst}")
    def swap_reduce(s, op, r, t, which):
        s(f"v_mov_b32 v{t}, v{r}")
        s("s_nop 1")
        s(f"v_permlane{which}_swap_b32 v{r}, v{t}")
        s("s_nop 1")
        s(f"{op} v{r}, v{r}, v{t}")
    def dpp(s, op, dst, src, ctl):
        s(f"{op}_dpp v{dst}, v{src}, v{src} {ctl} row_mask:0xf bank_mask:0xf")
    def poll(s, name, issue, check, full, sleep_few=2, sleep_many=8, many=16, first_issue=True, masked=True, st=None, fallback=None, fbmask=31):
        if fallback: s(f"s_or_b32 s75, s75, {fbmask}")
        if first_issue: issue()
        if st is not None and s.diag:
            s("s_waitcnt vmcnt(0)")
            s.stamp(st)
            s(f"s_mov_b32 s{76+2*(st+1)}, s75")
        s.label(f"L_poll_{name}")
        s("s_waitcnt vmcnt(0)")
        s(f"s_mov_b64 exec, {full}")
        check()
        s("s_nop 1")
        s(f"s_andn2_b64 exec, {full}, exec")
        s(f"s_cbranch_scc0 L_ok_{name}")
        s("s_bcnt1_i32_b64 s74, exec")
        if not masked: s(f"s_mov_b64 exec, {full}")
        s(f"s_sleep {sleep_few}")
        if sleep_many:
            s(f"s_cmp_lt_u32 s74, {many}")
            s(f"s_cbranch_scc1 L_ns_{name}")
            s(f"s_sleep {sleep_many}")
            s.label(f"L_ns_{name}")
        issue()
        if fallback:
            s(f"s_and_b32 s74, s75, {fbmask}")
            s(f"s_cbranch_scc1 L_nf_{name}")
            fallback()
            s.label(f"L_nf_{name}")
        s("s_sub_u32 s75, s75, 1")
        s("s_cmp_lg_u32 s75, 0")
        s(f"s_cbranch_scc1 L_poll_{name}")
        s("s_waitcnt vmcnt(0)")
        s.label(f"L_ok_{name}")
        s(f"s_mov_b64 exec, {full}")
        if st is not None and s.diag:
            s(f"s_sub_u32 s{76+2*(st+1)}, s{76+2*(st+1)}, s75")
            s(f"s_mul_i32 s{76+2*(st+1)}, s{76+2*(st+1)}, 100")
            s(f"s_add_u32 s{76+2*(st+1)}, s{76+2*(st+1)}, s76")

def build(diag=False, W=4, NQ=10, mask='bh', prepoll=False, s1=(1, 4), nsmall0=2, qfl='sc1', ofl='sc1', prio=2, inter=True, smallpos='pre', stag=False, tlb=True, tlbfl=''):
    g = G(diag); A = g
    A("s_cmp_ge_u32 s2, 256")
    A("s_cbranch_scc1 L_end")
    A("s_load_dwordx16 s[16:31], s[0:1], 0")
    A("s_load_dwordx8 s[32:39], s[0:1], 64")
    A("s_load_dwordx4 s[40:43], s[0:1], 96")
    if diag: A("s_memrealtime s[76:77]")
    A("v_lshrrev_b32 v1, 6, v0")
    A("v_and_b32 v0, 63, v0")
    A("v_readfirstlane_b32 s3, v1")
    A("s_and_b32 s5, s2, 7")
    A("s_lshr_b32 s6, s2, 3")
    A("s_lshr_b32 s7, s6, 4")
    A("s_lshl_b32 s8, s5, 1")
    A("s_add_u32 s7, s7, s8")
    A("s_getreg_b32 s8, hwreg(HW_REG_XCC_ID, 0, 4)")
    A("s_xor_b32 s5, s5, s8")
    A("s_bfe_u32 s44, s6, 0x10003")
    A("s_and_b32 s45, s6, 7")
    A("s_lshl_b32 s46, s7, 1")
    A("s_add_u32 s46, s46, s44")
    A("v_lshrrev_b32 v2, 4, v0")
    A("v_and_b32 v3, 15, v0")
    A(f"s_mov_b32 s75, {g.spin}")
    A("v_bfe_u32 v9, v0, 3, 1")
    A("s_cmp_gt_u32 s3, 1")
    A("s_cbranch_scc1 L_bulk")
    A("s_setprio 3")
    A("s_movk_i32 s8, 1152")
    A("v_mul_u32_u24 v4, s8, v9")
    A("v_lshlrev_b32 v5, 4, v3")
    A("s_mov_b32 s50, 2304"); A("s_mov_b32 s51, 0x20000"); A("s_mov_b32 s55, 0x20000")
    A("s_cmp_eq_u32 s3, 1")
    A("s_cbranch_scc1 L_s1a")
    XR, WD = 24, 40
    A("v_mad_u32_u24 v4, v2, 36, v4")
    A("s_mul_i32 s9, s45, 144")
    A(f"s_mov_b32 s8, {18*8192}")
    A("v_mad_u32_u24 v5, v2, s8, v5")
    A(f"s_mul_i32 s10, s45, {72*8192}")
    A("s_lshl_b32 s11, s46, 8")
    A("s_add_u32 s10, s10, s11")
    A(f"s_mov_b32 s54, {576*8192}")
    A("s_waitcnt lgkmcnt(0)")
    A("s_mov_b64 s[48:49], s[16:17]")
    A("s_mov_b64 s[52:53], s[22:23]")
    A(f"buffer_load_dwordx4 v[{XR}:{XR+3}], v4, s[48:51], s9 offen")
    A(f"buffer_load_dwordx4 v[{XR+4}:{XR+7}], v4, s[48:51], s9 offen offset:16")
    A(f"buffer_load_dword v{XR+8}, v4, s[48:51], s9 offen offset:32")
    for t in range(18):
        A(f"buffer_load_dwordx4 v[{WD+4*t}:{WD+4*t+3}], v5, s[52:55], s10 offen nt")
        if t < 17: A("s_add_u32 s10, s10, 8192")
    A("v_mov_b32 v6, 0")
    A(f"ds_write_b32 v6, v6 offset:{QFLAG}")
    A("s_branch L_s0b")
    g.label("L_s1a")
    X1, W1 = 24, 44
    A("s_and_b32 s8, s45, 3")
    A("s_lshr_b32 s9, s6, 2")
    A("s_and_b32 s9, s9, 3")
    A("s_movk_i32 s10, 72")
    A("v_mad_u32_u24 v4, v2, s10, v4")
    A("s_mul_i32 s10, s8, 288")
    A(f"s_mov_b32 s11, {36*9216}")
    A("v_mad_u32_u24 v5, v2, s11, v5")
    A(f"s_mul_i32 s11, s8, {144*9216}")
    A("s_mul_i32 s12, s7, 576"); A("s_add_u32 s11, s11, s12")
    A("s_mul_i32 s12, s9, 144"); A("s_add_u32 s11, s11, s12")
    A(f"s_mov_b32 s54, {576*9216}")
    A("s_mov_b32 s14, 0x01ff01ff"); A("s_mov_b32 s15, 0x01ff01ff")
    A("s_waitcnt lgkmcnt(0)")
    A("s_mov_b64 s[48:49], s[16:17]")
    A("s_mov_b64 s[52:53], s[28:29]")
    if tlb:
        A("s_cmp_lg_u32 s45, 0")
        A("s_cbranch_scc1 L_notouch")
        A("s_lshl_b32 s12, s44, 4"); A("s_add_u32 s12, s12, s7"); A("s_lshl_b32 s12, s12, 23"); A("s_add_u32 s12, s12, 0x700000")
        A(f"s_mul_i32 s13, s46, {128*1152}")
        A(f"s_mul_i32 s72, s46, {144*1152}")
        A("s_lshl_b32 s73, s46, 5")
        A("s_mov_b64 exec, 1")
        A("v_mov_b32 v160, s12"); A("v_mov_b32 v161, s13"); A("v_mov_b32 v162, s72"); A("v_mov_b32 v163, s73"); A(f"v_mov_b32 v164, {OP}"); A("v_mov_b32 v166, 0")
        for (off, base) in ((160, 20), (161, 24), (162, 32), (164, 42), (163, 38), (166, 40), (163, 30), (163, 34)):
            A(f"global_load_dword v165, v{off}, s[{base}:{base+1}]{tlbfl}")
        A("s_mov_b64 exec, -1")
        g.label("L_notouch")
    for k in range(4):
        A(f"buffer_load_dwordx4 v[{X1+4*k}:{X1+4*k+3}], v4, s[48:51], s10 offen offset:{16*k}")
    A(f"buffer_load_dwordx2 v[{X1+16}:{X1+17}], v4, s[48:51], s10 offen offset:64")
    A("s_mov_b64 exec, s[14:15]")
    for t in range(24):
        A(f"buffer_load_dwordx4 v[{W1+4*t}:{W1+4*t+3}], v5, s[52:55], s11 offen nt")
        A("s_add_u32 s11, s11, 9216")
    A("s_mov_b64 exec, -1")
    A("s_branch L_s1b")

    g.label("L_bulk")
    VD, QF, KF, S, P, AS, OA, DA, DB, T = 24, 88, 104, 120, 136, 144, 152, 80, 76, 164
    WO, PL = 88, 24
    W2R = [104, 108, 112, 116, 156, 160]
    aRED0, aPUBR, aL16, aG0, aGA, aRED1, aH, aFR, aFS, aBP0, aBP1, aOUT, vB2 = (S+k for k in range(13))
    A("s_sub_u32 s4, s3, 2")
    if prio == 1: A("s_setprio 1")
    if prio == 2:
        A("s_setprio 1")
        A("s_cmp_lt_u32 s4, 4")
        A("s_cbranch_scc1 L_prio")
        A("s_setprio 2")
        g.label("L_prio")
    A("s_lshl_b32 s11, s44, 4")
    A("s_add_u32 s11, s11, s7")
    A("s_lshl_b32 s8, s11, 23")
    A("s_lshl_b32 s9, s45, 17")
    A("s_add_u32 s8, s8, s9")
    A("s_add_u32 s8, s8, 0x700000")
    if mask == 'h':
        A("s_mul_i32 s11, s2, 0x9E3779B1"); A("s_lshr_b32 s11, s11, 27")
    for j in range(4):
        A(f"s_add_u32 s9, s4, {8*j}")
        A("s_xor_b32 s9, s9, s11")
        A(f"s_lshl_b32 s{64+j}, s9, 12")
    A("v_xor_b32 v4, v3, v2")
    A("v_lshlrev_b32 v4, 4, v4")
    A("v_lshl_add_u32 v4, v2, 8, v4")
    A("v_xor_b32 v5, 64, v4")
    A("v_xor_b32 v6, 0x80, v4")
    A("v_xor_b32 v7, 0xc0, v4")
    A("v_lshlrev_b32 v8, 4, v3")
    A("v_lshl_add_u32 v8, v2, 10, v8")
    A("s_lshl_b32 s10, s4, 14")
    A(f"s_add_u32 s10, s10, {KB}")
    A("s_mov_b32 s50, 0x20000"); A("s_mov_b32 s51, 0x20000"); A("s_mov_b32 s54, 0x20000"); A("s_mov_b32 s55, 0x20000")
    A("s_mov_b32 m0, s10")
    A("s_waitcnt lgkmcnt(0)")
    A("s_add_u32 s48, s18, s8"); A("s_addc_u32 s49, s19, 0")
    A("s_add_u32 s52, s20, s8"); A("s_addc_u32 s53, s21, 0")
    def setup_mid():
        A("s_load_dword s47, s[42:43], 0")
        g.selectors(S)
        A("v_xor_b32 v12, v3, v2")
        A("v_lshlrev_b32 v12, 4, v12")
        A("v_lshl_add_u32 v12, v3, 8, v12")
        A("v_add_u32 v12, s10, v12")
        A("v_xor_b32 v13, 64, v12")
        A("v_xor_b32 v14, 0x80, v12")
        A("v_xor_b32 v15, 0xc0, v12")
        A("v_lshlrev_b32 v10, 8, v9")
        A("v_lshl_add_u32 v10, v2, 4, v10")
        A("v_lshlrev_b32 v11, 5, v9")
        g.srd(56, 24, 4096*1152)
        A("s_mov_b64 s[60:61], s[32:33]")
        A("s_cmp_lt_u32 s4, 6")
        A(f"s_cselect_b32 s62, {4608*1152}, 0")
        A("s_mov_b32 s63, 0x20000")
        A("s_waitcnt lgkmcnt(0)")
        A("s_barrier")
        g.tag()
    def vload(idx):
        j, r = idx // 4, idx % 4
        d = VD + 16*j + 4*r
        A(f"buffer_load_dwordx4 v[{d}:{d+3}], v8, s[52:55], s{64+j} offen offset:{256*r} nt")
    def qk_tile(j):
        for jj in range(4):
            A(f"ds_read_b128 v[{KF+4*jj}:{KF+4*jj+3}], v{12+jj} offset:{4096*j}")
        for jj in range(4):
            A(f"s_waitcnt lgkmcnt({3-jj})")
            c = "0" if jj == 0 else f"v[{S+4*j}:{S+4*j+3}]"
            A(f"v_mfma_f32_16x16x32_bf16 v[{S+4*j}:{S+4*j+3}], v[{KF+4*jj}:{KF+4*jj+3}], v[{QF+4*jj}:{QF+4*jj+3}], {c}")
    def c_q01():
        g.stamp(1)
        A("v_mov_b32 v4, 0")
        g.label("L_qspin")
        A(f"ds_read_b32 v5, v4 offset:{QFLAG}")
        for jj in range(4):
            A(f"ds_read_b128 v[{QF+4*jj}:{QF+4*jj+3}], v10 offset:{QB+64*jj}")
        A("s_waitcnt lgkmcnt(4)")
        A("v_readfirstlane_b32 s72, v5")
        A("s_cmp_eq_u32 s72, 1")
        A("s_cbranch_scc1 L_qok")
        A("s_sleep 2")
        A("s_sub_u32 s75, s75, 1")
        A("s_cmp_lg_u32 s75, 0")
        A("s_cbranch_scc1 L_qspin")
        g.label("L_qok")
        g.stamp(2)
        qk_tile(0); qk_tile(1)
    def c_q23():
        qk_tile(2); qk_tile(3)
        A("s_nop 3")
    def c_round():
        for j in range(4):
            for h in range(2):
                a = S + 4*j + 2*h
                A(f"v_cvt_pk_bf16_f32 v{T}, v{a}, v{a+1}")
                A(f"v_lshlrev_b32 v{a}, 16, v{T}")
                A(f"v_and_b32 v{a+1}, 0xffff0000, v{T}")
                A(f"v_mul_f32 v{a}, {SCALE:#x}, v{a}")
                A(f"v_mul_f32 v{a+1}, {SCALE:#x}, v{a+1}")
                A(f"v_cvt_pk_bf16_f32 v{T}, v{a}, v{a+1}")
                A(f"v_lshlrev_b32 v{a}, 16, v{T}")
                A(f"v_and_b32 v{a+1}, 0xffff0000, v{T}")
    def c_soft():
        A(f"v_max3_f32 v{T}, v{S}, v{S+1}, v{S+2}")
        for k in range(3, 15, 2):
            A(f"v_max3_f32 v{T}, v{T}, v{S+k}, v{S+k+1}")
        A(f"v_max_f32 v{T}, v{T}, v{S+15}")
        g.swap_reduce("v_max_f32", T, T+1, 16)
        g.swap_reduce("v_max_f32", T, T+1, 32)
        A("s_lshl_b32 s11, s4, 2")
        A(f"v_add_u32 v{T+3}, s11, v11")
        A(f"s_mov_b32 s72, {LOG2E:#x}")
        A(f"v_mul_f32 v{T+1}, {LOG2E^0x80000000:#x}, v{T}")
        for k in range(16):
            A(f"v_fma_f32 v{S+k}, v{S+k}, s72, v{T+1}")
        for k in range(16):
            A(f"v_exp_f32 v{S+k}, v{S+k}")
        A("s_nop 0")
        for k in range(8):
            A(f"v_cvt_pk_bf16_f32 v{P+k}, v{S+2*k}, v{S+2*k+1}")
        A(f"v_add_f32 v{T+2}, v{S}, v{S+1}")
        for k in range(2, 16):
            A(f"v_add_f32 v{T+2}, v{T+2}, v{S+k}")
        g.swap_reduce("v_add_f32", T+2, T+1, 16)
        g.swap_reduce("v_add_f32", T+2, T+1, 32)
        A("s_mov_b64 exec, 0x101")
        A(f"ds_write_b32 v{T+3}, v{T} offset:{MW}")
        A(f"ds_write_b32 v{T+3}, v{T+2} offset:{LW}")
        A("s_mov_b64 exec, -1")
        g.stamp(3)
    def c_addr():
        g.srd(48, 42, WS_BYTES)
        A("s_lshl_b32 s72, s4, 10")
        A(f"v_lshlrev_b32 v{aL16}, 4, v0")
        A(f"v_add_u32 v{aRED0}, s72, v{aL16}")
        A(f"v_add_u32 v{aRED1}, s72, v{aRED0}")
        A("s_and_b32 s72, s4, 1")
        A("s_lshl_b32 s73, s72, 9")
        A(f"v_and_b32 v{aPUBR}, 1, v0")
        A(f"v_lshlrev_b32 v{aPUBR}, 8, v{aPUBR}")
        A(f"v_bfe_u32 v4, v0, 1, 4")
        A(f"v_lshl_add_u32 v{aPUBR}, v4, 4, v{aPUBR}")
        A(f"v_add_u32 v{aPUBR}, s73, v{aPUBR}")
        A("s_lshl_b32 s12, s7, 1"); A("s_add_u32 s12, s12, s72"); A("s_lshl_b32 s12, s12, 1"); A("s_add_u32 s12, s12, s44")
        A("s_lshl_b32 s12, s12, 3"); A("s_add_u32 s12, s12, s45"); A(f"s_mul_i32 s12, s12, {OREC}"); A(f"s_add_u32 s12, s12, {OPT}")
        A("s_lshl_b32 s13, s72, 5")
        A("v_mov_b32 v7, s13")
        A(f"s_movk_i32 s72, {OREC}")
        A(f"v_and_b32 v4, 3, v0")
        A(f"v_lshlrev_b32 v4, 4, v4")
        A(f"v_lshrrev_b32 v5, 2, v0")
        A(f"v_mad_u32_u24 v{aG0}, v5, s72, v4")
        A(f"s_mul_i32 s14, s46, {16*OREC}")
        A(f"s_add_u32 s14, s14, {OPT}")
        A("s_lshl_b32 s15, s4, 6")
        A("s_add_u32 s15, s15, s14")
        A(f"v_lshlrev_b32 v{aBP0}, 7, v9")
        A(f"v_lshl_add_u32 v{aBP0}, v2, 2, v{aBP0}")
        A(f"v_add_u32 v{aBP1}, 64, v{aBP0}")
        A("s_mul_i32 s72, s4, 48")
        A(f"v_mul_u32_u24 v{aH}, 12, v2")
        A("s_movk_i32 s73, 288")
        A(f"v_mad_u32_u24 v{aH}, v9, s73, v{aH}")
        A(f"v_add_u32 v{aH}, s72, v{aH}")
        A("s_lshl_b32 s72, s4, 6")
        A(f"v_add_u32 v4, s72, v0")
        A(f"v_lshrrev_b32 v5, 3, v4")
        A(f"v_lshlrev_b32 v{aFS}, 12, v5")
        A(f"v_and_b32 v5, 7, v0")
        A(f"v_lshl_add_u32 v{aFS}, v5, 4, v{aFS}")
        A("v_cmp_lt_u32 vcc, 35, v4")
        A("v_add_u32 v5, 92, v4")
        A("s_nop 0")
        A("v_cndmask_b32 v4, v4, v5, vcc")
        A("v_lshrrev_b32 v5, 2, v4")
        A(f"v_lshlrev_b32 v{aFR}, 4, v5")
        A("v_bfe_u32 v5, v4, 1, 1")
        A(f"v_lshl_add_u32 v{aFR}, v5, 8, v{aFR}")
        A("v_and_b32 v5, 1, v4")
        A(f"v_lshl_add_u32 v{aFR}, v5, 3, v{aFR}")
        A(f"s_mul_i32 s16, s45, {9*4096}")
        A("s_lshl_b32 s73, s46, 7"); A("s_add_u32 s16, s16, s73"); A(f"s_add_u32 s16, s16, {OP}")
        g.srd(68, 34, 1152)
        A("s_lshl_b32 s72, s46, 5")
        A("v_and_b32 v5, 7, v0")
        A("v_lshl_add_u32 v5, v5, 2, s72")
        A("v_cmp_lt_u32 vcc, 0x8f, v5")
        A("v_subrev_u32 v6, 0x90, v5")
        A("v_mov_b32 v4, 0")
        A("v_cndmask_b32 v5, v5, v6, vcc")
        A("v_mov_b32 v6, 8")
        A(f"v_cndmask_b32 v{aGA}, v4, v6, vcc")
        A("s_mul_i32 s21, s45, 144")
        A(f"buffer_load_dword v{vB2}, v5, s[68:71], s21 offen")
        A(f"v_mul_u32_u24 v6, 0x90, v{aGA}")
        A(f"v_add_u32 v{aOUT}, v5, v6")
        A("s_mul_i32 s17, s45, 9"); A("s_add_u32 s17, s17, s46"); A("s_lshl_b32 s17, s17, 12"); A(f"s_add_u32 s17, s17, {OP}")
        A(f"s_movk_i32 s72, {4*1152}")
        A("v_lshlrev_b32 v4, 4, v3")
        A("v_mad_u32_u24 v5, v2, s72, v4")
        A(f"s_movk_i32 s72, {6*1152}")
        A("v_mad_u32_u24 v6, v2, s72, v4")
        A("s_lshl_b32 s18, s46, 3"); A("s_add_u32 s18, s18, s4"); A(f"s_mul_i32 s18, s18, {16*1152}")
        A("s_mul_i32 s73, s45, 144"); A("s_add_u32 s18, s18, s73")
        A("s_mul_i32 s19, s46, 6"); A("s_add_u32 s19, s19, s4"); A(f"s_mul_i32 s19, s19, {24*1152}")
        A("s_add_u32 s19, s19, s73")
        A(f"s_add_u32 s20, s19, {3*1152}")
        A("s_mov_b32 s22, 0x01ff01ff"); A("s_mov_b32 s23, 0x01ff01ff")
    def small(k):
        if k < 4: A(f"buffer_load_dwordx4 v[{WO+4*k}:{WO+4*k+3}], v5, s[56:59], s18 offen offset:{1152*k} nt")
        else:
            t = k - 4
            A(f"buffer_load_dwordx4 v[{W2R[t]}:{W2R[t]+3}], v6, s[60:63], s{19 + t//3} offen offset:{1152*(t%3)} nt")
    n = 0
    for j in range(4):
        if j > 0:
            A(f"s_add_u32 m0, s10, {4096*j}")
            if n < W: A("s_nop 0")
        for t4 in range(4):
            if n >= W: A(f"s_waitcnt vmcnt({W-1})")
            A(f"buffer_load_dwordx4 v{4+t4}, s[48:51], s{64+j} offen offset:{1024*t4} nt lds")
            n += 1
            if n == W: setup_mid()
    chunks = {NQ: c_q01, NQ+1: c_q23, NQ+2: c_round, NQ+3: c_soft, NQ+4: c_addr}
    assert NQ >= W and NQ + 4 <= 15
    for idx in range(16):
        A(f"s_waitcnt vmcnt({W-1})")
        vload(idx)
        if idx in chunks: chunks[idx]()
    g.stamp(4)
    if prio: A("s_setprio 0")
    if nsmall0:
        A("s_mov_b64 exec, s[22:23]")
        for k in range(nsmall0): small(k)
        A("s_mov_b64 exec, -1")
    issued = [nsmall0]
    def pv_after(t):
        if inter and t > 15 - W and issued[0] < 10 and t < 15:
            A("s_mov_b64 exec, s[22:23]")
            small(issued[0]); issued[0] += 1
            A("s_mov_b64 exec, -1")
    g.gemv_chain(16, P, VD, AS, OA, lambda t: None if t <= 15 - W else 15 - t + issued[0], pv_after)
    def rest_small():
        if issued[0] < 10:
            A("s_mov_b64 exec, s[22:23]")
            while issued[0] < 10:
                small(issued[0]); issued[0] += 1
            A("s_mov_b64 exec, -1")
    if smallpos == 'pre': rest_small()
    A("s_mov_b64 s[68:69], s[40:41]"); A("s_lshl_b32 s13, s7, 2")
    A("s_mov_b64 s[64:65], s[42:43]")
    A("s_cmp_ge_u32 s4, 6")
    A("s_cselect_b32 s70, 256, 0"); A("s_mov_b32 s71, 0x20000")
    A(f"s_cselect_b32 s66, {WS_BYTES}, 0")
    A("s_mov_b32 s67, 0x20000")
    A("s_nop 1")
    A(f"ds_write_b128 v{aRED0}, v[{OA}:{OA+3}] offset:{RED0}")
    A("s_waitcnt lgkmcnt(0)")
    g.stamp(5)
    A("s_barrier")
    if smallpos == 'post': rest_small()
    A("s_cmp_lt_u32 s4, 6")
    A("s_cbranch_scc1 L_nopub")
    F, OR, LR, ST = PL, PL+8, PL+40, PL+48
    def ystore():
        A("s_mov_b64 s[8:9], exec")
        A("s_mov_b32 exec_lo, -1"); A("s_mov_b32 exec_hi, 0xff")
        A(f"buffer_store_dwordx4 v[{ST}:{ST+3}], v{aL16}, s[64:67], s12 offen sc1")
        A("s_mov_b32 s66, 0")
        A("s_mov_b64 exec, s[8:9]")
    A(f"ds_read_b128 v[{F}:{F+3}], v7 offset:{MW}")
    A(f"ds_read_b128 v[{F+4}:{F+7}], v7 offset:{MW+16}")
    for w in range(8):
        A(f"ds_read_b128 v[{OR+4*w}:{OR+4*w+3}], v{aPUBR} offset:{RED0+1024*w}")
    A(f"ds_read_b128 v[{LR}:{LR+3}], v7 offset:{LW}")
    A(f"ds_read_b128 v[{LR+4}:{LR+7}], v7 offset:{LW+16}")
    A(f"s_mov_b32 s72, {LOG2E:#x}")
    A("s_waitcnt lgkmcnt(10)")
    A(f"v_max3_f32 v{T+1}, v{F}, v{F+1}, v{F+2}")
    A(f"v_max3_f32 v{T}, v{F+3}, v{F+4}, v{F+5}")
    A(f"v_max3_f32 v{T+1}, v{T+1}, v{F+6}, v{F+7}")
    A(f"v_max_f32 v{T+1}, v{T+1}, v{T}")
    A(f"v_mul_f32 v{T}, {LOG2E^0x80000000:#x}, v{T+1}")
    for w in range(8): A(f"v_fma_f32 v{F+w}, v{F+w}, s72, v{T}")
    for w in range(8): A(f"v_exp_f32 v{F+w}, v{F+w}")
    A("s_waitcnt lgkmcnt(9)")
    for k in range(4): A(f"v_mul_f32 v{ST+k}, v{F}, v{OR+k}")
    for w in range(1, 8):
        A(f"s_waitcnt lgkmcnt({9-w})")
        for k in range(4): A(f"v_fmac_f32 v{ST+k}, v{F+w}, v{OR+4*w+k}")
    g.tag4(ST, [ST, ST+1, ST+2, ST+3])
    A("s_waitcnt lgkmcnt(0)")
    A("s_mov_b32 exec_lo, 0"); A("s_mov_b32 exec_hi, 0xff")
    A(f"v_mul_f32 v{ST+2}, v{F}, v{LR}")
    for k in range(1, 8): A(f"v_fmac_f32 v{ST+2}, v{F+k}, v{LR+k}")
    A(f"v_mov_b32 v{ST}, v{T+1}")
    A(f"v_mov_b32 v{ST+1}, v1")
    A(f"v_mov_b32 v{ST+3}, v1")
    A("s_mov_b32 exec_lo, -1")
    A(f"buffer_store_dwordx4 v[{ST}:{ST+3}], v{aL16}, s[48:51], s12 offen")
    A("s_mov_b64 exec, -1")
    A("s_cmp_eq_u32 s5, 0")
    A("s_cbranch_scc1 L_now2")
    ystore()
    A("s_branch L_now2")
    g.label("L_nopub")
    A(f"ds_read2_b32 v[{P}:{P+1}], v{aH} offset0:{HB//4} offset1:{HB//4+1}")
    A(f"ds_read_b32 v{P+2}, v{aH} offset:{HB+8}")
    A("s_waitcnt lgkmcnt(0)")
    g.gemv_chain(6, P, W2R, AS, DB, lambda t: 0 if t == 0 else None)
    A("s_nop 7")
    A(f"ds_write_b128 v{aRED1}, v[{DB}:{DB+3}] offset:{RED1+1024}")
    g.label("L_now2")
    A("v_mov_b32 v7, 0")
    g.stamp(6)
    def issue1():
        A(f"buffer_load_dwordx4 v[{PL}:{PL+3}], v{aG0}, s[48:51], s15 offen sc1")
        A(f"buffer_load_dwordx4 v[{PL+4}:{PL+7}], v{aG0}, s[48:51], s14 offen offset:512 sc1")
    def check1():
        A(f"v_cmpx_eq_u32 vcc, s47, v{PL+5}")
        A(f"v_cmpx_eq_u32 vcc, s47, v{PL+7}")
        g.check4(PL, PL+8)
    g.poll("1", issue1, check1, "-1", s1[0], s1[1], 16, st=10, fallback=ystore)
    A(f"buffer_load_dword v{T+2}, v7, s[68:71], s13 offen sc1")
    A("s_nop 2")
    g.stamp(7)
    Ms, Ls = PL+4, PL+6
    m, w_, t_, u_ = PL+8, PL+9, PL+10, PL+11
    g.dpp("v_max_f32", m, Ms, "row_ror:4")
    A("s_nop 1")
    g.dpp("v_max_f32", m, m, "row_ror:8")
    g.swap_reduce("v_max_f32", m, u_, 16)
    A(f"v_sub_f32 v{w_}, v{Ms}, v{m}")
    A(f"v_mul_f32 v{w_}, {LOG2E:#x}, v{w_}")
    A(f"v_exp_f32 v{w_}, v{w_}")
    A("s_nop 0")
    A(f"v_mul_f32 v{t_}, v{w_}, v{Ls}")
    for k in range(4): A(f"v_mul_f32 v{PL+k}, v{w_}, v{PL+k}")
    for ctl in ("row_ror:4", "row_ror:8"):
        for r in (t_, PL, PL+1, PL+2, PL+3):
            g.dpp("v_add_f32", r, r, ctl)
    A(f"v_mov_b32 v{u_}, v{t_}")
    A("s_nop 0")
    A(f"v_permlane16_swap_b32 v{PL}, v{PL+2}")
    A(f"v_permlane16_swap_b32 v{PL+1}, v{PL+3}")
    A(f"v_permlane16_swap_b32 v{t_}, v{u_}")
    A(f"v_add_f32 v{PL}, v{PL}, v{PL+2}")
    A(f"v_add_f32 v{PL+1}, v{PL+1}, v{PL+3}")
    A(f"v_add_f32 v{t_}, v{t_}, v{u_}")
    A(f"v_rcp_f32 v{t_}, v{t_}")
    A("s_nop 0")
    A(f"v_mul_f32 v{PL}, v{t_}, v{PL}")
    A(f"v_mul_f32 v{PL+1}, v{t_}, v{PL+1}")
    A(f"v_cvt_pk_bf16_f32 v{PL}, v{PL}, v{PL+1}")
    A(f"ds_bpermute_b32 v{P}, v{aBP0}, v{PL}")
    A(f"ds_bpermute_b32 v{P+1}, v{aBP1}, v{PL}")
    A("s_waitcnt lgkmcnt(0)")
    g.gemv_chain(4, P, WO, AS, DA, lambda t: None)
    A("s_nop 7")
    A(f"ds_write_b128 v{aRED1}, v[{DA}:{DA+3}] offset:{RED1}")
    A("s_waitcnt lgkmcnt(0)")
    g.stamp(8)
    A("s_barrier")
    A("s_cmp_ge_u32 s4, 2")
    A("s_cbranch_scc1 L_final")
    A("s_cmp_eq_u32 s4, 0")
    A("s_cselect_b64 exec, -1, 0xff")
    RA, RB = PL+8, PL+24
    for w in range(8):
        A(f"ds_read_b64 v[{RA+2*w}:{RA+2*w+1}], v{aFR} offset:{RED1+2048*w}")
    for w in range(6):
        A(f"ds_read_b64 v[{RB+2*w}:{RB+2*w+1}], v{aFR} offset:{RED1+1024+2048*w}")
    A("s_waitcnt lgkmcnt(12)")
    A(f"v_add_f32 v{PL}, v{RA}, v{RA+2}")
    A(f"v_add_f32 v{PL+2}, v{RA+1}, v{RA+3}")
    for w in range(2, 8):
        A(f"s_waitcnt lgkmcnt({13-w})")
        A(f"v_add_f32 v{PL}, v{PL}, v{RA+2*w}")
        A(f"v_add_f32 v{PL+2}, v{PL+2}, v{RA+2*w+1}")
    A("s_waitcnt lgkmcnt(4)")
    A(f"v_add_f32 v{PL+1}, v{RB}, v{RB+2}")
    A(f"v_add_f32 v{PL+3}, v{RB+1}, v{RB+3}")
    for w in range(2, 6):
        A(f"s_waitcnt lgkmcnt({5-w})")
        A(f"v_add_f32 v{PL+1}, v{PL+1}, v{RB+2*w}")
        A(f"v_add_f32 v{PL+3}, v{PL+3}, v{RB+2*w+1}")
    g.tag4(PL, [PL, PL+1, PL+2, PL+3])
    A(f"buffer_store_dwordx4 v[{PL}:{PL+3}], v{aFS}, s[48:51], s16 offen {ofl}")
    if diag:
        g.stamp(9)
        g.label("L_dump")
        g.dump_stamps(12)
    A("s_endpgm")
    g.label("L_final")
    A("s_cmp_lt_u32 s4, 6")
    A("s_cbranch_scc1 L_nohelp")
    A("s_waitcnt vmcnt(0)")
    A(f"v_readfirstlane_b32 s10, v{T+2}")
    A("s_cmp_eq_u32 s10, 0")
    A("s_cbranch_scc1 L_nohelp")
    ystore()
    g.label("L_nohelp")
    if diag: A("s_mov_b32 s94, 0")
    A("s_cmp_lg_u32 s4, 4")
    A("s_cbranch_scc1 " + ("L_dump" if diag else "L_end"))
    A("s_cmp_ge_u32 s46, 9")
    A("s_cbranch_scc1 " + ("L_dump" if diag else "L_end"))
    FIN = PL + 44 if stag else PL
    def issue2():
        for k in range(4):
            A(f"buffer_load_dwordx4 v[{PL+4*k}:{PL+4*k+3}], v{aL16}, s[48:51], s17 offen offset:{1024*k} sc1")
    def check2():
        for k in range(4): g.check4(PL+4*k, PL+20)
    if not stag: issue2()
    if stag: issue2()
    A(f"ds_read_b64 v[{PL+18}:{PL+19}], v{aGA} offset:{GB}")
    g.srd(56, 38, 2304)
    A("s_waitcnt lgkmcnt(0)")
    if not stag:
        g.poll("2", issue2, check2, "-1", 1, 4, 24, first_issue=False)
        g.stamp(10)
        for k in range(1, 4):
            for e in range(4): A(f"v_add_f32 v{PL+e}, v{PL+e}, v{PL+4*k+e}")
    else:
        SA, SB = PL, PL+24
        def iss(base):
            for k in range(4):
                A(f"buffer_load_dwordx4 v[{base+4*k}:{base+4*k+3}], v{aL16}, s[48:51], s17 offen offset:{1024*k} sc1")
        def chk(base, lab):
            for k in range(4): g.check4(base+4*k, PL+20)
            A("s_nop 1")
            A("s_cmp_eq_u64 exec, -1")
            A("s_mov_b64 exec, -1")
            A(f"s_cbranch_scc1 {lab}")
        g.label("L_p2")
        A(f"s_sleep {stag}")
        iss(SB)
        A("s_waitcnt vmcnt(4)")
        chk(SA, "L_p2a")
        A(f"s_sleep {stag}")
        iss(SA)
        A("s_waitcnt vmcnt(4)")
        chk(SB, "L_p2b")
        A("s_sub_u32 s75, s75, 1")
        A("s_cmp_lg_u32 s75, 0")
        A("s_cbranch_scc1 L_p2")
        g.label("L_p2b")
        for e in range(4): A(f"v_add_f32 v{SB+e}, v{SB+e}, v{SB+4+e}")
        for e in range(4): A(f"v_add_f32 v{SB+8+e}, v{SB+8+e}, v{SB+12+e}")
        for e in range(4): A(f"v_add_f32 v{FIN+e}, v{SB+e}, v{SB+8+e}")
        A("s_branch L_p2c")
        g.label("L_p2a")
        for e in range(4): A(f"v_add_f32 v{SA+e}, v{SA+e}, v{SA+4+e}")
        for e in range(4): A(f"v_add_f32 v{SA+8+e}, v{SA+8+e}, v{SA+12+e}")
        for e in range(4): A(f"v_add_f32 v{FIN+e}, v{SA+e}, v{SA+8+e}")
        g.label("L_p2c")
        g.stamp(10)
    for e in range(4): g.dpp("v_add_f32", FIN+e, FIN+e, "row_ror:8")
    for which in (16, 32):
        for e in range(4): A(f"v_mov_b32 v{FIN+4+e}, v{FIN+e}")
        for e in range(4): A(f"v_permlane{which}_swap_b32 v{FIN+e}, v{FIN+4+e}")
        for e in range(4): A(f"v_add_f32 v{FIN+e}, v{FIN+e}, v{FIN+4+e}")
    a0, b0, a1, b1 = FIN, FIN+1, FIN+2, FIN+3
    A(f"v_cvt_pk_bf16_f32 v{a0}, v{a0}, v{a1}")
    A(f"v_cvt_pk_bf16_f32 v{b0}, v{b0}, v{b1}")
    A(f"v_and_b32 v{a1}, 0xffff0000, v{a0}")
    A(f"v_lshlrev_b32 v{a0}, 16, v{a0}")
    A(f"v_and_b32 v{b1}, 0xffff0000, v{b0}")
    A(f"v_lshlrev_b32 v{b0}, 16, v{b0}")
    A(f"v_and_b32 v{PL+17}, 0xffff0000, v{vB2}")
    A(f"v_lshlrev_b32 v{PL+16}, 16, v{vB2}")
    A(f"v_add_f32 v{b0}, v{b0}, v{PL+16}")
    A(f"v_add_f32 v{b1}, v{b1}, v{PL+17}")
    A(f"v_mul_f32 v{a0}, v{PL+18}, v{a0}")
    A(f"v_mul_f32 v{a1}, v{PL+18}, v{a1}")
    A(f"v_cvt_pk_bf16_f32 v{b0}, v{b0}, v{b1}")
    A(f"v_cvt_pk_bf16_f32 v{a0}, v{a0}, v{a1}")
    A(f"v_and_b32 v{b1}, 0xffff0000, v{b0}")
    A(f"v_lshlrev_b32 v{b0}, 16, v{b0}")
    A(f"v_mul_f32 v{b0}, v{PL+19}, v{b0}")
    A(f"v_mul_f32 v{b1}, v{PL+19}, v{b1}")
    A(f"v_and_b32 v{a1}, 0xffff0000, v{a0}")
    A(f"v_lshlrev_b32 v{a0}, 16, v{a0}")
    A(f"v_cvt_pk_bf16_f32 v{b0}, v{b0}, v{b1}")
    A(f"v_and_b32 v{b1}, 0xffff0000, v{b0}")
    A(f"v_lshlrev_b32 v{b0}, 16, v{b0}")
    A(f"v_add_f32 v{a0}, v{a0}, v{b0}")
    A(f"v_add_f32 v{a1}, v{a1}, v{b1}")
    A(f"v_cvt_pk_bf16_f32 v{a0}, v{a0}, v{a1}")
    A("s_mov_b64 exec, 0xff")
    A(f"buffer_store_dword v{a0}, v{aOUT}, s[56:59], s21 offen")
    A("s_or_b32 s8, s45, s46")
    A("s_cmp_lg_u32 s8, 0")
    A("s_cbranch_scc1 L_fin2")
    A("s_mov_b64 exec, 1")
    A(f"buffer_store_dword v1, v7, s[48:51], 0 offen sc1")
    g.label("L_fin2")
    if diag:
        g.stamp(9)
        g.dump_stamps(12)
    A("s_endpgm")

    g.label("L_s0b")
    XR, WD, AS, D, GX, GW = 24, 40, 112, 120, 124, 134
    A("s_load_dword s47, s[42:43], 0")
    g.srd(56, 36, 1152)
    A("v_and_b32 v6, 31, v0")
    A("v_mul_u32_u24 v8, 36, v6")
    A("v_lshrrev_b32 v7, 5, v0")
    A("s_movk_i32 s8, 1152")
    A("v_mad_u32_u24 v11, v7, s8, v8")
    A(f"buffer_load_dwordx4 v[{GX}:{GX+3}], v11, s[48:51], 0 offen")
    A(f"buffer_load_dwordx4 v[{GX+4}:{GX+7}], v11, s[48:51], 0 offen offset:16")
    A(f"buffer_load_dword v{GX+8}, v11, s[48:51], 0 offen offset:32")
    A(f"buffer_load_dwordx4 v[{GW}:{GW+3}], v8, s[56:59], 0 offen")
    A(f"buffer_load_dwordx4 v[{GW+4}:{GW+7}], v8, s[56:59], 0 offen offset:16")
    A(f"buffer_load_dword v{GW+8}, v8, s[56:59], 0 offen offset:32")
    g.selectors(144)
    g.srd(60, 42, WS_BYTES)
    A("v_lshlrev_b32 v10, 13, v7")
    A("v_lshl_add_u32 v10, v6, 4, v10")
    A("s_lshl_b32 s10, s7, 14"); A("s_lshl_b32 s11, s45, 10"); A("s_add_u32 s11, s11, s10")
    A("s_lshl_b32 s8, s44, 9"); A("s_add_u32 s11, s11, s8"); A(f"s_add_u32 s11, s11, {QP}")
    A("s_lshl_b32 s8, s44, 13"); A("s_add_u32 s64, s10, s8"); A(f"s_add_u32 s64, s64, {QP}")
    A("s_add_u32 s65, s64, 4096")
    A("v_lshlrev_b32 v12, 4, v0")
    A("v_lshlrev_b32 v13, 9, v0")
    A("v_lshlrev_b32 v14, 4, v3")
    A("v_and_b32 v15, 1, v2")
    A("v_lshl_add_u32 v14, v15, 3, v14")
    A("v_lshl_add_u32 v14, v7, 8, v14")
    g.srd(68, 40, 256)
    A("s_lshl_b32 s13, s7, 2")
    A("s_cmp_eq_u32 s5, 0")
    A("s_cbranch_scc1 L_placed")
    A("v_mov_b32 v4, 0"); A("v_mov_b32 v5, 1")
    A("buffer_store_dword v5, v4, s[68:71], s13 offen sc1")
    A("s_waitcnt vmcnt(0)")
    g.label("L_placed")
    A("s_waitcnt lgkmcnt(0)")
    A("s_barrier")
    g.tag()
    A("s_waitcnt vmcnt(24)")
    g.stamp(3)
    g.gemv_chain(18, XR, WD, AS, D, lambda t: 17 - t + 6)
    A("s_nop 7")
    g.tag4(AS, [D, D+1, D+2, D+3])
    def ys0():
        A("s_mov_b64 s[72:73], exec")
        A("s_mov_b64 exec, -1")
        A(f"buffer_store_dwordx4 v[{AS}:{AS+3}], v10, s[60:63], s11 offen sc1")
        A("s_mov_b64 exec, s[72:73]")
    def helpcheck(name, ys):
        A("v_mov_b32 v4, 0")
        A("buffer_load_dword v5, v4, s[68:71], s13 offen sc1")
        A("s_waitcnt vmcnt(0)")
        A("v_readfirstlane_b32 s8, v5")
        A("s_cmp_eq_u32 s8, 0")
        A(f"s_cbranch_scc1 L_nh_{name}")
        ys()
        g.label(f"L_nh_{name}")
    A(f"buffer_store_dwordx4 v[{AS}:{AS+3}], v10, s[60:63], s11 offen")
    A("s_cmp_eq_u32 s5, 0")
    A("s_cbranch_scc1 L_q_placed")
    ys0()
    A("s_waitcnt vmcnt(0)")
    g.label("L_q_placed")
    g.stamp(1)
    A("s_waitcnt vmcnt(1)")
    acc, t0, t1, t2, t3 = 144, 145, 146, 147, 148
    A(f"v_mov_b32 v{acc}, 0")
    for k in range(9):
        A(f"v_lshlrev_b32 v{t0}, 16, v{GX+k}")
        A(f"v_and_b32 v{t1}, 0xffff0000, v{GX+k}")
        A(f"v_lshlrev_b32 v{t2}, 16, v{GW+k}")
        A(f"v_and_b32 v{t3}, 0xffff0000, v{GW+k}")
        A(f"v_mul_f32 v{t0}, v{t0}, v{t2}")
        A(f"v_mul_f32 v{t1}, v{t1}, v{t3}")
        A(f"v_cvt_pk_bf16_f32 v{t0}, v{t0}, v{t1}")
        A(f"v_lshlrev_b32 v{t1}, 16, v{t0}")
        A(f"v_and_b32 v{t0}, 0xffff0000, v{t0}")
        A(f"v_add_f32 v{acc}, v{acc}, v{t1}")
        A(f"v_add_f32 v{acc}, v{acc}, v{t0}")
    for ctl in ("quad_perm:[1,0,3,2]", "quad_perm:[2,3,0,1]", "row_half_mirror", "row_mirror"):
        A("s_nop 1")
        g.dpp("v_add_f32", acc, acc, ctl)
    g.swap_reduce("v_add_f32", acc, t0, 16)
    g.bf16r(acc, acc)
    A(f"v_mul_f32 v{acc}, {LOG2E^0x80000000:#x}, v{acc}")
    A(f"v_exp_f32 v{acc}, v{acc}")
    A("s_nop 0")
    A(f"v_add_f32 v{acc}, 1.0, v{acc}")
    A(f"v_rcp_f32 v{acc}, v{acc}")
    A("s_nop 0")
    g.bf16r(acc, acc)
    A(f"v_sub_f32 v{acc+1}, 1.0, v{acc}")
    g.bf16r(acc+1, acc+1)
    A("v_lshlrev_b32 v7, 3, v7")
    A("s_mov_b32 exec_lo, 1"); A("s_mov_b32 exec_hi, 1")
    A(f"ds_write_b64 v7, v[{acc}:{acc+1}] offset:{GB}")
    if prepoll:
        A("s_mov_b64 s[14:15], 0xffff")
        A("s_mov_b64 exec, s[14:15]")
        g.poll("pq", lambda: A(f"buffer_load_dwordx4 v[{WD}:{WD+3}], v13, s[60:63], s64 offen offset:496 sc1"), lambda: g.check4(WD, t0), "s[14:15]", 4, 0, 64, fallback=ys0, fbmask=15)
    A("s_mov_b64 exec, -1")
    g.stamp(4)
    def issueq():
        for rb in range(8):
            A(f"buffer_load_dwordx4 v[{WD+4*rb}:{WD+4*rb+3}], v12, s[60:63], s{64+rb//4} offen offset:{1024*(rb%4)} sc1")
    def checkq():
        for rb in range(8): g.check4(WD+4*rb, t0)
    g.poll("q", issueq, checkq, "-1", 4, 0, 64, fallback=ys0, fbmask=15)
    g.stamp(2)
    for rb in range(1, 8):
        for e in range(4): A(f"v_add_f32 v{WD+e}, v{WD+e}, v{WD+4*rb+e}")
    A(f"v_cvt_pk_bf16_f32 v{WD}, v{WD}, v{WD+1}")
    A(f"v_cvt_pk_bf16_f32 v{WD+1}, v{WD+2}, v{WD+3}")
    A(f"ds_write_b64 v14, v[{WD}:{WD+1}] offset:{QB}")
    A("v_mov_b32 v5, 1")
    A("v_mov_b32 v4, 0")
    A("s_waitcnt lgkmcnt(0)")
    A(f"ds_write_b32 v4, v5 offset:{QFLAG}")
    helpcheck("q", ys0)
    A("s_waitcnt lgkmcnt(0)")
    g.dump_stamps(5)
    A("s_endpgm")
    g.label("L_s1b")
    WD, AS, D, B1 = W1, 140, 148, 152
    NT = 0
    g.srd(56, 30, 9216)
    g.srd(60, 42, WS_BYTES)
    g.srd(68, 40, 256)
    A("s_load_dword s47, s[42:43], 0")
    A("v_and_b32 v6, 31, v0")
    A("v_lshrrev_b32 v7, 5, v0")
    A("v_lshlrev_b32 v10, 4, v0")
    A("s_mul_i32 s13, s46, 18")
    A("v_add_u32 v8, s13, v6")
    A("v_lshlrev_b32 v8, 4, v8")
    A("v_cmp_lt_u32 vcc, 8, v6")
    A("v_add_u32 v12, 0xf7, v6")
    A("v_lshlrev_b32 v13, 10, v0")
    A("v_cndmask_b32 v12, v6, v12, vcc")
    A("v_lshlrev_b32 v12, 4, v12")
    A("v_lshl_add_u32 v12, v7, 9, v12")
    A("s_movk_i32 s12, 288")
    A("v_mul_u32_u24 v14, s12, v7")
    A("v_lshl_add_u32 v14, v6, 4, v14")
    A("s_lshl_b32 s64, s7, 14"); A(f"s_add_u32 s64, s64, {HP}")
    A("s_and_b32 s12, s6, 15"); A("s_lshl_b32 s12, s12, 10"); A("s_add_u32 s65, s64, s12")
    A("s_lshl_b32 s12, s44, 13"); A("s_add_u32 s64, s64, s12")
    A("s_lshl_b32 s13, s7, 2")
    g.selectors(156)
    A("s_waitcnt lgkmcnt(0)")
    A("s_barrier")
    g.tag()
    A(f"s_waitcnt vmcnt({24+NT})")
    def s1_after(t):
        if t < 12:
            A("s_mov_b64 exec, s[14:15]")
            A(f"buffer_load_dwordx4 v[{W1+4*t}:{W1+4*t+3}], v5, s[52:55], s11 offen nt")
            A("s_add_u32 s11, s11, 9216")
            A("s_mov_b64 exec, -1")
    g.gemv_chain(36, X1, [W1 + 4*(t % 24) for t in range(36)], AS, D, lambda t: (24 + min(t, 12) - t - 1 + (NT if t < 24 else 0)), s1_after)
    A("s_nop 7")
    g.tag4(AS, [D, D+1, D+2, D+3])
    def ys1():
        A("s_mov_b64 s[72:73], exec")
        A("s_mov_b64 exec, -1")
        A(f"buffer_store_dwordx4 v[{AS}:{AS+3}], v10, s[60:63], s65 offen sc1")
        A("s_mov_b64 exec, s[72:73]")
    A(f"buffer_store_dwordx4 v[{AS}:{AS+3}], v10, s[60:63], s65 offen")
    A("s_cmp_eq_u32 s5, 0")
    A("s_cbranch_scc1 L_h_placed")
    ys1()
    g.label("L_h_placed")
    g.stamp(1)
    A("s_mov_b32 s14, 0x0003ffff"); A("s_mov_b32 s15, 0x0003ffff")
    A("s_mov_b64 exec, s[14:15]")
    A(f"buffer_load_dwordx4 v[{B1}:{B1+3}], v8, s[56:59], 0 offen")
    if prepoll:
        A("s_mov_b64 s[10:11], 0xff")
        A("s_mov_b64 exec, s[10:11]")
        g.poll("ph", lambda: A(f"buffer_load_dwordx4 v[{WD}:{WD+3}], v13, s[60:63], s64 offen offset:896 sc1"), lambda: g.check4(WD, 156), "s[10:11]", 8, 0, 64, fallback=ys1, fbmask=15)
        A("s_mov_b64 exec, s[14:15]")
    g.stamp(3)
    def issueh():
        for rb in range(4):
            for k in range(2):
                d = WD + 8*rb + 4*k
                A(f"buffer_load_dwordx4 v[{d}:{d+3}], v12, s[60:63], s64 offen offset:{1024*rb+256*k} sc1")
    def checkh():
        for k in range(8): g.check4(WD+4*k, 156)
    g.poll("h", issueh, checkh, "s[14:15]", 4, 0, 64, fallback=ys1, fbmask=15)
    g.stamp(2)
    for rb in range(1, 4):
        for e in range(8): A(f"v_add_f32 v{WD+e}, v{WD+e}, v{WD+8*rb+e}")
    for d in range(4):
        a, b = WD + 2*d, WD + 2*d + 1
        t0, t1 = 160, 161
        A(f"v_cvt_pk_bf16_f32 v{a}, v{a}, v{b}")
        A(f"v_lshlrev_b32 v{t0}, 16, v{B1+d}")
        A(f"v_and_b32 v{t1}, 0xffff0000, v{B1+d}")
        A(f"v_and_b32 v{b}, 0xffff0000, v{a}")
        A(f"v_lshlrev_b32 v{a}, 16, v{a}")
        A(f"v_add_f32 v{a}, v{a}, v{t0}")
        A(f"v_add_f32 v{b}, v{b}, v{t1}")
        A(f"v_cvt_pk_bf16_f32 v{a}, v{a}, v{b}")
        A(f"v_and_b32 v{b}, 0xffff0000, v{a}")
        A(f"v_lshlrev_b32 v{a}, 16, v{a}")
        A(f"v_max_f32 v{a}, 0, v{a}")
        A(f"v_max_f32 v{b}, 0, v{b}")
        A(f"v_mul_f32 v{a}, v{a}, v{a}")
        A(f"v_mul_f32 v{b}, v{b}, v{b}")
        A(f"v_cvt_pk_bf16_f32 v{156+d}, v{a}, v{b}")
    A(f"ds_write_b128 v14, v[156:159] offset:{HB}")
    A("s_mov_b64 exec, -1")
    helpcheck("h", ys1)
    A("s_waitcnt lgkmcnt(0)")
    g.dump_stamps(4)
    g.label("L_end")
    A("s_endpgm")
    body = "\n".join(g.L)
    s = HEADER
    s += f"; @launch grid=(256,1,1) block=(640,1,1) lds={LDS_BYTES}\n"
    s += f""".amdgcn_target "amdgcn-amd-amdhsa--gfx950"
.text
.globl {KNAME}
.p2align 8
.type {KNAME},@function
{KNAME}:
{body}
.section .rodata,"a"
.p2align 6
.amdhsa_kernel {KNAME}
  .amdhsa_next_free_vgpr 168
  .amdhsa_next_free_sgpr 102
  .amdhsa_accum_offset 168
  .amdhsa_group_segment_fixed_size 0
  .amdhsa_kernarg_size 112
  .amdhsa_user_sgpr_count 2
  .amdhsa_user_sgpr_kernarg_segment_ptr 1
  .amdhsa_system_sgpr_workgroup_id_x 1
  .amdhsa_float_denorm_mode_32 3
.end_amdhsa_kernel
"""
    return s

if __name__ == "__main__":
    open("k12.s", "w").write(build(False, stag=1))
    open("k12_notlb.s", "w").write(build(False, stag=1, tlb=False))
    open("k12d.s", "w").write(build(True, stag=1))
    open("k12d_notlb.s", "w").write(build(True, stag=1, tlb=False))
```

```python
import sys
from gen_common import KNAME, HEADER

QP   = 0x1000
HP   = 0x80000
OPT  = 0x100000
OREC = 640
OP   = 0x200000
WS_BYTES = 0x400000
QB, HB, GB, MW, LW, QFLAG, RED0, KB = 0, 512, 1088, 1152, 1216, 1280, 2048, 10240
RED1 = KB
LDS_BYTES = KB + 131072
LOG2E = 0x3fb8aa3b
SCALE = 0x3db504f3
SEL = 16
SI = 24
SC = 28

class G:
    def __init__(s, diag=False, spin=100000):
        s.L = []; s.diag = diag; s.spin = spin
    def __call__(s, x): s.L.append("    " + x)
    def label(s, x): s.L.append(x + ":")
    def srd(s, d, lo, nbytes):
        s(f"s_mov_b64 s[{d}:{d+1}], s[{lo}:{lo+1}]")
        s(f"s_mov_b32 s{d+2}, {nbytes}"); s(f"s_mov_b32 s{d+3}, 0x20000")
    def stamp(s, k):
        if s.diag:
            s(f"s_memrealtime s[{76+2*k}:{77+2*k}]")
            s("s_waitcnt lgkmcnt(0)")
    def dump_stamps(s, n):
        if not s.diag: return
        s.srd(68, 40, 0x50000)
        s("s_lshl_b32 s72, s2, 10")
        s("s_lshl_b32 s73, s3, 6"); s("s_add_u32 s72, s72, s73"); s("s_add_u32 s72, s72, 4096")
        s("s_mov_b64 exec, 1")
        s("v_mov_b32 v4, 0")
        for k in range(n):
            s(f"v_mov_b32 v5, s{76+2*k}")
            s(f"buffer_store_dword v5, v4, s[68:71], s72 offen offset:{4*k}")
            s("s_nop 1")
    def tag(s):
        s("s_mul_i32 s47, s47, 0x9E3779B1")
        s("s_add_u32 s47, s47, 0x7F4A7C15")
        for k in range(4): s(f"s_mov_b32 s{SI+k}, {0x07060500+k:#x}")
        s(f"s_mov_b32 s{SC}, 0x0c0c0400"); s(f"s_mov_b32 s{SC+1}, 0x0c040100"); s(f"s_mov_b32 s{SC+2}, 0x04020100")
        s("v_mov_b32 v1, s47")
    def tag4(s, dst, src):
        for k in range(4): s(f"v_perm_b32 v{dst+k}, v{src[k]}, v1, s{SI+k}")
    def check4(s, d, t):
        s(f"v_perm_b32 v{t}, v{d+1}, v{d}, s{SC}")
        s(f"v_perm_b32 v{t}, v{d+2}, v{t}, s{SC+1}")
        s(f"v_perm_b32 v{t}, v{d+3}, v{t}, s{SC+2}")
        s(f"v_cmpx_eq_u32 vcc, s47, v{t}")
    def selectors(s, t0):
        a, b, c, d, e = t0, t0+1, t0+2, t0+3, t0+4
        s(f"v_and_b32 v{a}, 1, v0")
        s(f"v_lshlrev_b32 v{a}, 4, v{a}")
        s(f"v_bfe_u32 v{b}, v0, 1, 2")
        s(f"v_mov_b32 v{c}, 0x0d0c")
        s(f"v_mov_b32 v{d}, 0x0f0e")
        s(f"v_mov_b32 v{e}, 0x0c0c0c0c")
        s(f"v_lshlrev_b32 v{c}, v{a}, v{c}")
        s(f"v_lshlrev_b32 v{d}, v{a}, v{d}")
        s(f"v_xor_b32 v{c}, v{c}, v{e}")
        s(f"v_xor_b32 v{d}, v{d}, v{e}")
        for k in range(4):
            s(f"v_cmp_eq_u32 vcc, {k}, v{b}")
            s("s_nop 1")
            s(f"v_cndmask_b32 v{SEL+k}, v{e}, v{c}, vcc")
            s(f"v_cndmask_b32 v{SEL+4+k}, v{e}, v{d}, vcc")
    def perm4(s, dst, src, par):
        for k in range(4):
            s(f"v_perm_b32 v{dst+k}, v{src}, v{src}, v{SEL+4*par+k}")
    def gemv_chain(s, n, xreg, data, aset, acc, waitfn, after=None):
        dreg = (lambda t: data[t]) if isinstance(data, list) else (lambda t: data + 4*t)
        s.perm4(aset, xreg, 0)
        for t in range(n):
            cur = aset + 4*(t & 1); nxt = aset + 4*((t+1) & 1)
            if t+1 < n: s.perm4(nxt, xreg + ((t+1) >> 1), (t+1) & 1)
            else: s("s_nop 1")
            w = waitfn(t)
            if w is not None: s(f"s_waitcnt vmcnt({w})")
            c = "0" if t == 0 else f"v[{acc}:{acc+3}]"
            s(f"v_mfma_f32_16x16x32_bf16 v[{acc}:{acc+3}], v[{cur}:{cur+3}], v[{dreg(t)}:{dreg(t)+3}], {c}")
            if after: after(t)
    def bf16r(s, dst, src):
        s(f"v_cvt_pk_bf16_f32 v{dst}, v{src}, v{src}")
        s(f"v_and_b32 v{dst}, 0xffff0000, v{dst}")
    def swap_reduce(s, op, r, t, which):
        s(f"v_mov_b32 v{t}, v{r}")
        s("s_nop 1")
        s(f"v_permlane{which}_swap_b32 v{r}, v{t}")
        s("s_nop 1")
        s(f"{op} v{r}, v{r}, v{t}")
    def dpp(s, op, dst, src, ctl):
        s(f"{op}_dpp v{dst}, v{src}, v{src} {ctl} row_mask:0xf bank_mask:0xf")
    def poll(s, name, issue, check, full, sleep_few=2, sleep_many=8, many=16, first_issue=True, masked=True, st=None, fallback=None, fbmask=31):
        if fallback: s(f"s_or_b32 s75, s75, {fbmask}")
        if first_issue: issue()
        if st is not None and s.diag:
            s("s_waitcnt vmcnt(0)")
            s.stamp(st)
            s(f"s_mov_b32 s{76+2*(st+1)}, s75")
        s.label(f"L_poll_{name}")
        s("s_waitcnt vmcnt(0)")
        s(f"s_mov_b64 exec, {full}")
        check()
        s("s_nop 1")
        s(f"s_andn2_b64 exec, {full}, exec")
        s(f"s_cbranch_scc0 L_ok_{name}")
        s("s_bcnt1_i32_b64 s74, exec")
        if not masked: s(f"s_mov_b64 exec, {full}")
        s(f"s_sleep {sleep_few}")
        if sleep_many:
            s(f"s_cmp_lt_u32 s74, {many}")
            s(f"s_cbranch_scc1 L_ns_{name}")
            s(f"s_sleep {sleep_many}")
            s.label(f"L_ns_{name}")
        issue()
        if fallback:
            s(f"s_and_b32 s74, s75, {fbmask}")
            s(f"s_cbranch_scc1 L_nf_{name}")
            fallback()
            s.label(f"L_nf_{name}")
        s("s_sub_u32 s75, s75, 1")
        s("s_cmp_lg_u32 s75, 0")
        s(f"s_cbranch_scc1 L_poll_{name}")
        s("s_waitcnt vmcnt(0)")
        s.label(f"L_ok_{name}")
        s(f"s_mov_b64 exec, {full}")
        if st is not None and s.diag:
            s(f"s_sub_u32 s{76+2*(st+1)}, s{76+2*(st+1)}, s75")
            s(f"s_mul_i32 s{76+2*(st+1)}, s{76+2*(st+1)}, 100")
            s(f"s_add_u32 s{76+2*(st+1)}, s{76+2*(st+1)}, s76")

def build(diag=False, W=4, NQ=10, mask='bh', prepoll=False, s1=(1, 4), nsmall0=2, qfl='sc1', ofl='sc1', prio=2, inter=True, smallpos='pre', stag=False, tlb=True, tlbfl='', probe=False):
    g = G(diag); A = g
    A("s_cmp_ge_u32 s2, 256")
    A("s_cbranch_scc1 L_end")
    A("s_load_dwordx16 s[16:31], s[0:1], 0")
    A("s_load_dwordx8 s[32:39], s[0:1], 64")
    A("s_load_dwordx4 s[40:43], s[0:1], 96")
    if diag or probe: A("s_memrealtime s[76:77]")
    A("v_lshrrev_b32 v1, 6, v0")
    A("v_and_b32 v0, 63, v0")
    A("v_readfirstlane_b32 s3, v1")
    A("s_and_b32 s5, s2, 7")
    A("s_lshr_b32 s6, s2, 3")
    A("s_lshr_b32 s7, s6, 4")
    A("s_lshl_b32 s8, s5, 1")
    A("s_add_u32 s7, s7, s8")
    A("s_getreg_b32 s8, hwreg(HW_REG_XCC_ID, 0, 4)")
    A("s_xor_b32 s5, s5, s8")
    A("s_bfe_u32 s44, s6, 0x10003")
    A("s_and_b32 s45, s6, 7")
    A("s_lshl_b32 s46, s7, 1")
    A("s_add_u32 s46, s46, s44")
    A("v_lshrrev_b32 v2, 4, v0")
    A("v_and_b32 v3, 15, v0")
    A(f"s_mov_b32 s75, {g.spin}")
    A("v_bfe_u32 v9, v0, 3, 1")
    A("s_cmp_gt_u32 s3, 1")
    A("s_cbranch_scc1 L_bulk")
    A("s_setprio 3")
    A("s_movk_i32 s8, 1152")
    A("v_mul_u32_u24 v4, s8, v9")
    A("v_lshlrev_b32 v5, 4, v3")
    A("s_mov_b32 s50, 2304"); A("s_mov_b32 s51, 0x20000"); A("s_mov_b32 s55, 0x20000")
    A("s_cmp_eq_u32 s3, 1")
    A("s_cbranch_scc1 L_s1a")
    XR, WD = 24, 40
    A("v_mad_u32_u24 v4, v2, 36, v4")
    A("s_mul_i32 s9, s45, 144")
    A(f"s_mov_b32 s8, {18*8192}")
    A("v_mad_u32_u24 v5, v2, s8, v5")
    A(f"s_mul_i32 s10, s45, {72*8192}")
    A("s_lshl_b32 s11, s46, 8")
    A("s_add_u32 s10, s10, s11")
    A(f"s_mov_b32 s54, {576*8192}")
    A("s_waitcnt lgkmcnt(0)")
    A("s_mov_b64 s[48:49], s[16:17]")
    A("s_mov_b64 s[52:53], s[22:23]")
    A(f"buffer_load_dwordx4 v[{XR}:{XR+3}], v4, s[48:51], s9 offen")
    A(f"buffer_load_dwordx4 v[{XR+4}:{XR+7}], v4, s[48:51], s9 offen offset:16")
    A(f"buffer_load_dword v{XR+8}, v4, s[48:51], s9 offen offset:32")
    for t in range(18):
        A(f"buffer_load_dwordx4 v[{WD+4*t}:{WD+4*t+3}], v5, s[52:55], s10 offen nt")
        if t < 17: A("s_add_u32 s10, s10, 8192")
    A("v_mov_b32 v6, 0")
    A(f"ds_write_b32 v6, v6 offset:{QFLAG}")
    A("s_branch L_s0b")
    g.label("L_s1a")
    X1, W1 = 24, 44
    A("s_and_b32 s8, s45, 3")
    A("s_lshr_b32 s9, s6, 2")
    A("s_and_b32 s9, s9, 3")
    A("s_movk_i32 s10, 72")
    A("v_mad_u32_u24 v4, v2, s10, v4")
    A("s_mul_i32 s10, s8, 288")
    A(f"s_mov_b32 s11, {36*9216}")
    A("v_mad_u32_u24 v5, v2, s11, v5")
    A(f"s_mul_i32 s11, s8, {144*9216}")
    A("s_mul_i32 s12, s7, 576"); A("s_add_u32 s11, s11, s12")
    A("s_mul_i32 s12, s9, 144"); A("s_add_u32 s11, s11, s12")
    A(f"s_mov_b32 s54, {576*9216}")
    A("s_mov_b32 s14, 0x01ff01ff"); A("s_mov_b32 s15, 0x01ff01ff")
    A("s_waitcnt lgkmcnt(0)")
    A("s_mov_b64 s[48:49], s[16:17]")
    A("s_mov_b64 s[52:53], s[28:29]")
    if tlb:
        A("s_cmp_lg_u32 s45, 0")
        A("s_cbranch_scc1 L_notouch")
        A("s_lshl_b32 s12, s44, 4"); A("s_add_u32 s12, s12, s7"); A("s_lshl_b32 s12, s12, 23"); A("s_add_u32 s12, s12, 0x700000")
        A(f"s_mul_i32 s13, s46, {128*1152}")
        A(f"s_mul_i32 s72, s46, {144*1152}")
        A("s_lshl_b32 s73, s46, 5")
        A("s_mov_b64 exec, 1")
        A("v_mov_b32 v160, s12"); A("v_mov_b32 v161, s13"); A("v_mov_b32 v162, s72"); A("v_mov_b32 v163, s73"); A(f"v_mov_b32 v164, {OP}"); A("v_mov_b32 v166, 0")
        for (off, base) in ((160, 20), (161, 24), (162, 32), (164, 42), (163, 38), (166, 40), (163, 30), (163, 34)):
            A(f"global_load_dword v165, v{off}, s[{base}:{base+1}]{tlbfl}")
        A("s_mov_b64 exec, -1")
        g.label("L_notouch")
    for k in range(4):
        A(f"buffer_load_dwordx4 v[{X1+4*k}:{X1+4*k+3}], v4, s[48:51], s10 offen offset:{16*k}")
    A(f"buffer_load_dwordx2 v[{X1+16}:{X1+17}], v4, s[48:51], s10 offen offset:64")
    A("s_mov_b64 exec, s[14:15]")
    for t in range(24):
        A(f"buffer_load_dwordx4 v[{W1+4*t}:{W1+4*t+3}], v5, s[52:55], s11 offen nt")
        A("s_add_u32 s11, s11, 9216")
    A("s_mov_b64 exec, -1")
    A("s_branch L_s1b")

    g.label("L_bulk")
    VD, QF, KF, S, P, AS, OA, DA, DB, T = 24, 88, 104, 120, 136, 144, 152, 80, 76, 164
    WO, PL = 88, 24
    W2R = [104, 108, 112, 116, 156, 160]
    aRED0, aPUBR, aL16, aG0, aGA, aRED1, aH, aFR, aFS, aBP0, aBP1, aOUT, vB2 = (S+k for k in range(13))
    A("s_sub_u32 s4, s3, 2")
    if prio == 1: A("s_setprio 1")
    if prio == 2:
        A("s_setprio 1")
        A("s_cmp_lt_u32 s4, 4")
        A("s_cbranch_scc1 L_prio")
        A("s_setprio 2")
        g.label("L_prio")
    A("s_lshl_b32 s11, s44, 4")
    A("s_add_u32 s11, s11, s7")
    A("s_lshl_b32 s8, s11, 23")
    A("s_lshl_b32 s9, s45, 17")
    A("s_add_u32 s8, s8, s9")
    A("s_add_u32 s8, s8, 0x700000")
    if mask == 'h':
        A("s_mul_i32 s11, s2, 0x9E3779B1"); A("s_lshr_b32 s11, s11, 27")
    for j in range(4):
        A(f"s_add_u32 s9, s4, {8*j}")
        A("s_xor_b32 s9, s9, s11")
        A(f"s_lshl_b32 s{64+j}, s9, 12")
    A("v_xor_b32 v4, v3, v2")
    A("v_lshlrev_b32 v4, 4, v4")
    A("v_lshl_add_u32 v4, v2, 8, v4")
    A("v_xor_b32 v5, 64, v4")
    A("v_xor_b32 v6, 0x80, v4")
    A("v_xor_b32 v7, 0xc0, v4")
    A("v_lshlrev_b32 v8, 4, v3")
    A("v_lshl_add_u32 v8, v2, 10, v8")
    A("s_lshl_b32 s10, s4, 14")
    A(f"s_add_u32 s10, s10, {KB}")
    A("s_mov_b32 s50, 0x20000"); A("s_mov_b32 s51, 0x20000"); A("s_mov_b32 s54, 0x20000"); A("s_mov_b32 s55, 0x20000")
    A("s_mov_b32 m0, s10")
    A("s_waitcnt lgkmcnt(0)")
    A("s_add_u32 s48, s18, s8"); A("s_addc_u32 s49, s19, 0")
    A("s_add_u32 s52, s20, s8"); A("s_addc_u32 s53, s21, 0")
    def setup_mid():
        A("s_load_dword s47, s[42:43], 0")
        g.selectors(S)
        A("v_xor_b32 v12, v3, v2")
        A("v_lshlrev_b32 v12, 4, v12")
        A("v_lshl_add_u32 v12, v3, 8, v12")
        A("v_add_u32 v12, s10, v12")
        A("v_xor_b32 v13, 64, v12")
        A("v_xor_b32 v14, 0x80, v12")
        A("v_xor_b32 v15, 0xc0, v12")
        A("v_lshlrev_b32 v10, 8, v9")
        A("v_lshl_add_u32 v10, v2, 4, v10")
        A("v_lshlrev_b32 v11, 5, v9")
        g.srd(56, 24, 4096*1152)
        A("s_mov_b64 s[60:61], s[32:33]")
        A("s_cmp_lt_u32 s4, 6")
        A(f"s_cselect_b32 s62, {4608*1152}, 0")
        A("s_mov_b32 s63, 0x20000")
        A("s_waitcnt lgkmcnt(0)")
        A("s_barrier")
        g.tag()
    def vload(idx):
        j, r = idx // 4, idx % 4
        d = VD + 16*j + 4*r
        A(f"buffer_load_dwordx4 v[{d}:{d+3}], v8, s[52:55], s{64+j} offen offset:{256*r} nt")
    def qk_tile(j):
        for jj in range(4):
            A(f"ds_read_b128 v[{KF+4*jj}:{KF+4*jj+3}], v{12+jj} offset:{4096*j}")
        for jj in range(4):
            A(f"s_waitcnt lgkmcnt({3-jj})")
            c = "0" if jj == 0 else f"v[{S+4*j}:{S+4*j+3}]"
            A(f"v_mfma_f32_16x16x32_bf16 v[{S+4*j}:{S+4*j+3}], v[{KF+4*jj}:{KF+4*jj+3}], v[{QF+4*jj}:{QF+4*jj+3}], {c}")
    def c_q01():
        g.stamp(1)
        A("v_mov_b32 v4, 0")
        g.label("L_qspin")
        A(f"ds_read_b32 v5, v4 offset:{QFLAG}")
        for jj in range(4):
            A(f"ds_read_b128 v[{QF+4*jj}:{QF+4*jj+3}], v10 offset:{QB+64*jj}")
        A("s_waitcnt lgkmcnt(4)")
        A("v_readfirstlane_b32 s72, v5")
        A("s_cmp_eq_u32 s72, 1")
        A("s_cbranch_scc1 L_qok")
        A("s_sleep 2")
        A("s_sub_u32 s75, s75, 1")
        A("s_cmp_lg_u32 s75, 0")
        A("s_cbranch_scc1 L_qspin")
        g.label("L_qok")
        g.stamp(2)
        qk_tile(0); qk_tile(1)
    def c_q23():
        qk_tile(2); qk_tile(3)
        A("s_nop 3")
    def c_round():
        for j in range(4):
            for h in range(2):
                a = S + 4*j + 2*h
                A(f"v_cvt_pk_bf16_f32 v{T}, v{a}, v{a+1}")
                A(f"v_lshlrev_b32 v{a}, 16, v{T}")
                A(f"v_and_b32 v{a+1}, 0xffff0000, v{T}")
                A(f"v_mul_f32 v{a}, {SCALE:#x}, v{a}")
                A(f"v_mul_f32 v{a+1}, {SCALE:#x}, v{a+1}")
                A(f"v_cvt_pk_bf16_f32 v{T}, v{a}, v{a+1}")
                A(f"v_lshlrev_b32 v{a}, 16, v{T}")
                A(f"v_and_b32 v{a+1}, 0xffff0000, v{T}")
    def c_soft():
        A(f"v_max3_f32 v{T}, v{S}, v{S+1}, v{S+2}")
        for k in range(3, 15, 2):
            A(f"v_max3_f32 v{T}, v{T}, v{S+k}, v{S+k+1}")
        A(f"v_max_f32 v{T}, v{T}, v{S+15}")
        g.swap_reduce("v_max_f32", T, T+1, 16)
        g.swap_reduce("v_max_f32", T, T+1, 32)
        A("s_lshl_b32 s11, s4, 2")
        A(f"v_add_u32 v{T+3}, s11, v11")
        A(f"s_mov_b32 s72, {LOG2E:#x}")
        A(f"v_mul_f32 v{T+1}, {LOG2E^0x80000000:#x}, v{T}")
        for k in range(16):
            A(f"v_fma_f32 v{S+k}, v{S+k}, s72, v{T+1}")
        for k in range(16):
            A(f"v_exp_f32 v{S+k}, v{S+k}")
        A("s_nop 0")
        for k in range(8):
            A(f"v_cvt_pk_bf16_f32 v{P+k}, v{S+2*k}, v{S+2*k+1}")
        A(f"v_add_f32 v{T+2}, v{S}, v{S+1}")
        for k in range(2, 16):
            A(f"v_add_f32 v{T+2}, v{T+2}, v{S+k}")
        g.swap_reduce("v_add_f32", T+2, T+1, 16)
        g.swap_reduce("v_add_f32", T+2, T+1, 32)
        A("s_mov_b64 exec, 0x101")
        A(f"ds_write_b32 v{T+3}, v{T} offset:{MW}")
        A(f"ds_write_b32 v{T+3}, v{T+2} offset:{LW}")
        A("s_mov_b64 exec, -1")
        g.stamp(3)
    def c_addr():
        g.srd(48, 42, WS_BYTES)
        A("s_lshl_b32 s72, s4, 10")
        A(f"v_lshlrev_b32 v{aL16}, 4, v0")
        A(f"v_add_u32 v{aRED0}, s72, v{aL16}")
        A(f"v_add_u32 v{aRED1}, s72, v{aRED0}")
        A("s_and_b32 s72, s4, 1")
        A("s_lshl_b32 s73, s72, 9")
        A(f"v_and_b32 v{aPUBR}, 1, v0")
        A(f"v_lshlrev_b32 v{aPUBR}, 8, v{aPUBR}")
        A(f"v_bfe_u32 v4, v0, 1, 4")
        A(f"v_lshl_add_u32 v{aPUBR}, v4, 4, v{aPUBR}")
        A(f"v_add_u32 v{aPUBR}, s73, v{aPUBR}")
        A("s_lshl_b32 s12, s7, 1"); A("s_add_u32 s12, s12, s72"); A("s_lshl_b32 s12, s12, 1"); A("s_add_u32 s12, s12, s44")
        A("s_lshl_b32 s12, s12, 3"); A("s_add_u32 s12, s12, s45"); A(f"s_mul_i32 s12, s12, {OREC}"); A(f"s_add_u32 s12, s12, {OPT}")
        A("s_lshl_b32 s13, s72, 5")
        A("v_mov_b32 v7, s13")
        A(f"s_movk_i32 s72, {OREC}")
        A(f"v_and_b32 v4, 3, v0")
        A(f"v_lshlrev_b32 v4, 4, v4")
        A(f"v_lshrrev_b32 v5, 2, v0")
        A(f"v_mad_u32_u24 v{aG0}, v5, s72, v4")
        A(f"s_mul_i32 s14, s46, {16*OREC}")
        A(f"s_add_u32 s14, s14, {OPT}")
        A("s_lshl_b32 s15, s4, 6")
        A("s_add_u32 s15, s15, s14")
        A(f"v_lshlrev_b32 v{aBP0}, 7, v9")
        A(f"v_lshl_add_u32 v{aBP0}, v2, 2, v{aBP0}")
        A(f"v_add_u32 v{aBP1}, 64, v{aBP0}")
        A("s_mul_i32 s72, s4, 48")
        A(f"v_mul_u32_u24 v{aH}, 12, v2")
        A("s_movk_i32 s73, 288")
        A(f"v_mad_u32_u24 v{aH}, v9, s73, v{aH}")
        A(f"v_add_u32 v{aH}, s72, v{aH}")
        A("s_lshl_b32 s72, s4, 6")
        A(f"v_add_u32 v4, s72, v0")
        A(f"v_lshrrev_b32 v5, 3, v4")
        A(f"v_lshlrev_b32 v{aFS}, 12, v5")
        A(f"v_and_b32 v5, 7, v0")
        A(f"v_lshl_add_u32 v{aFS}, v5, 4, v{aFS}")
        A("v_cmp_lt_u32 vcc, 35, v4")
        A("v_add_u32 v5, 92, v4")
        A("s_nop 0")
        A("v_cndmask_b32 v4, v4, v5, vcc")
        A("v_lshrrev_b32 v5, 2, v4")
        A(f"v_lshlrev_b32 v{aFR}, 4, v5")
        A("v_bfe_u32 v5, v4, 1, 1")
        A(f"v_lshl_add_u32 v{aFR}, v5, 8, v{aFR}")
        A("v_and_b32 v5, 1, v4")
        A(f"v_lshl_add_u32 v{aFR}, v5, 3, v{aFR}")
        A(f"s_mul_i32 s16, s45, {9*4096}")
        A("s_lshl_b32 s73, s46, 7"); A("s_add_u32 s16, s16, s73"); A(f"s_add_u32 s16, s16, {OP}")
        g.srd(68, 34, 1152)
        A("s_lshl_b32 s72, s46, 5")
        A("v_and_b32 v5, 7, v0")
        A("v_lshl_add_u32 v5, v5, 2, s72")
        A("v_cmp_lt_u32 vcc, 0x8f, v5")
        A("v_subrev_u32 v6, 0x90, v5")
        A("v_mov_b32 v4, 0")
        A("v_cndmask_b32 v5, v5, v6, vcc")
        A("v_mov_b32 v6, 8")
        A(f"v_cndmask_b32 v{aGA}, v4, v6, vcc")
        A("s_mul_i32 s21, s45, 144")
        A(f"buffer_load_dword v{vB2}, v5, s[68:71], s21 offen")
        A(f"v_mul_u32_u24 v6, 0x90, v{aGA}")
        A(f"v_add_u32 v{aOUT}, v5, v6")
        A("s_mul_i32 s17, s45, 9"); A("s_add_u32 s17, s17, s46"); A("s_lshl_b32 s17, s17, 12"); A(f"s_add_u32 s17, s17, {OP}")
        A(f"s_movk_i32 s72, {4*1152}")
        A("v_lshlrev_b32 v4, 4, v3")
        A("v_mad_u32_u24 v5, v2, s72, v4")
        A(f"s_movk_i32 s72, {6*1152}")
        A("v_mad_u32_u24 v6, v2, s72, v4")
        A("s_lshl_b32 s18, s46, 3"); A("s_add_u32 s18, s18, s4"); A(f"s_mul_i32 s18, s18, {16*1152}")
        A("s_mul_i32 s73, s45, 144"); A("s_add_u32 s18, s18, s73")
        A("s_mul_i32 s19, s46, 6"); A("s_add_u32 s19, s19, s4"); A(f"s_mul_i32 s19, s19, {24*1152}")
        A("s_add_u32 s19, s19, s73")
        A(f"s_add_u32 s20, s19, {3*1152}")
        A("s_mov_b32 s22, 0x01ff01ff"); A("s_mov_b32 s23, 0x01ff01ff")
    def small(k):
        if k < 4: A(f"buffer_load_dwordx4 v[{WO+4*k}:{WO+4*k+3}], v5, s[56:59], s18 offen offset:{1152*k} nt")
        else:
            t = k - 4
            A(f"buffer_load_dwordx4 v[{W2R[t]}:{W2R[t]+3}], v6, s[60:63], s{19 + t//3} offen offset:{1152*(t%3)} nt")
    n = 0
    for j in range(4):
        if j > 0:
            A(f"s_add_u32 m0, s10, {4096*j}")
            if n < W: A("s_nop 0")
        for t4 in range(4):
            if n >= W: A(f"s_waitcnt vmcnt({W-1})")
            A(f"buffer_load_dwordx4 v{4+t4}, s[48:51], s{64+j} offen offset:{1024*t4} nt lds")
            n += 1
            if n == W: setup_mid()
    chunks = {NQ: c_q01, NQ+1: c_q23, NQ+2: c_round, NQ+3: c_soft, NQ+4: c_addr}
    assert NQ >= W and NQ + 4 <= 15
    for idx in range(16):
        A(f"s_waitcnt vmcnt({W-1})")
        vload(idx)
        if idx in chunks: chunks[idx]()
    g.stamp(4)
    if prio: A("s_setprio 0")
    if nsmall0:
        A("s_mov_b64 exec, s[22:23]")
        for k in range(nsmall0): small(k)
        A("s_mov_b64 exec, -1")
    issued = [nsmall0]
    def pv_after(t):
        if inter and t > 15 - W and issued[0] < 10 and t < 15:
            A("s_mov_b64 exec, s[22:23]")
            small(issued[0]); issued[0] += 1
            A("s_mov_b64 exec, -1")
    g.gemv_chain(16, P, VD, AS, OA, lambda t: None if t <= 15 - W else 15 - t + issued[0], pv_after)
    def rest_small():
        if issued[0] < 10:
            A("s_mov_b64 exec, s[22:23]")
            while issued[0] < 10:
                small(issued[0]); issued[0] += 1
            A("s_mov_b64 exec, -1")
    if smallpos == 'pre': rest_small()
    A("s_mov_b64 s[68:69], s[40:41]"); A("s_lshl_b32 s13, s7, 2"); A("s_add_u32 s13, s13, 128")
    A("s_mov_b64 s[64:65], s[42:43]")
    A("s_cmp_ge_u32 s4, 6")
    A("s_cselect_b32 s70, 256, 0"); A("s_mov_b32 s71, 0x20000")
    A(f"s_cselect_b32 s66, {WS_BYTES}, 0")
    A("s_mov_b32 s67, 0x20000")
    A("s_nop 1")
    A(f"ds_write_b128 v{aRED0}, v[{OA}:{OA+3}] offset:{RED0}")
    A("s_waitcnt lgkmcnt(0)")
    g.stamp(5)
    A("s_barrier")
    if smallpos == 'post': rest_small()
    A("s_cmp_lt_u32 s4, 6")
    A("s_cbranch_scc1 L_nopub")
    F, OR, LR, ST = PL, PL+8, PL+40, PL+48
    def ystore():
        A("s_mov_b64 s[8:9], exec")
        A("s_mov_b32 exec_lo, -1"); A("s_mov_b32 exec_hi, 0xff")
        A(f"buffer_store_dwordx4 v[{ST}:{ST+3}], v{aL16}, s[64:67], s12 offen sc1")
        A("s_mov_b32 s66, 0")
        A("s_mov_b64 exec, s[8:9]")
    A(f"ds_read_b128 v[{F}:{F+3}], v7 offset:{MW}")
    A(f"ds_read_b128 v[{F+4}:{F+7}], v7 offset:{MW+16}")
    for w in range(8):
        A(f"ds_read_b128 v[{OR+4*w}:{OR+4*w+3}], v{aPUBR} offset:{RED0+1024*w}")
    A(f"ds_read_b128 v[{LR}:{LR+3}], v7 offset:{LW}")
    A(f"ds_read_b128 v[{LR+4}:{LR+7}], v7 offset:{LW+16}")
    A(f"s_mov_b32 s72, {LOG2E:#x}")
    A("s_waitcnt lgkmcnt(10)")
    A(f"v_max3_f32 v{T+1}, v{F}, v{F+1}, v{F+2}")
    A(f"v_max3_f32 v{T}, v{F+3}, v{F+4}, v{F+5}")
    A(f"v_max3_f32 v{T+1}, v{T+1}, v{F+6}, v{F+7}")
    A(f"v_max_f32 v{T+1}, v{T+1}, v{T}")
    A(f"v_mul_f32 v{T}, {LOG2E^0x80000000:#x}, v{T+1}")
    for w in range(8): A(f"v_fma_f32 v{F+w}, v{F+w}, s72, v{T}")
    for w in range(8): A(f"v_exp_f32 v{F+w}, v{F+w}")
    A("s_waitcnt lgkmcnt(9)")
    for k in range(4): A(f"v_mul_f32 v{ST+k}, v{F}, v{OR+k}")
    for w in range(1, 8):
        A(f"s_waitcnt lgkmcnt({9-w})")
        for k in range(4): A(f"v_fmac_f32 v{ST+k}, v{F+w}, v{OR+4*w+k}")
    g.tag4(ST, [ST, ST+1, ST+2, ST+3])
    A("s_waitcnt lgkmcnt(0)")
    A("s_mov_b32 exec_lo, 0"); A("s_mov_b32 exec_hi, 0xff")
    A(f"v_mul_f32 v{ST+2}, v{F}, v{LR}")
    for k in range(1, 8): A(f"v_fmac_f32 v{ST+2}, v{F+k}, v{LR+k}")
    A(f"v_mov_b32 v{ST}, v{T+1}")
    A(f"v_mov_b32 v{ST+1}, v1")
    A(f"v_mov_b32 v{ST+3}, v1")
    A("s_mov_b32 exec_lo, -1")
    A(f"buffer_store_dwordx4 v[{ST}:{ST+3}], v{aL16}, s[48:51], s12 offen")
    A("s_mov_b64 exec, -1")
    A("s_cmp_eq_u32 s5, 0")
    A("s_cbranch_scc1 L_now2")
    ystore()
    A("s_branch L_now2")
    g.label("L_nopub")
    A(f"ds_read2_b32 v[{P}:{P+1}], v{aH} offset0:{HB//4} offset1:{HB//4+1}")
    A(f"ds_read_b32 v{P+2}, v{aH} offset:{HB+8}")
    A("s_waitcnt lgkmcnt(0)")
    g.gemv_chain(6, P, W2R, AS, DB, lambda t: 0 if t == 0 else None)
    A("s_nop 7")
    A(f"ds_write_b128 v{aRED1}, v[{DB}:{DB+3}] offset:{RED1+1024}")
    g.label("L_now2")
    A("v_mov_b32 v7, 0")
    g.stamp(6)
    def issue1():
        A(f"buffer_load_dwordx4 v[{PL}:{PL+3}], v{aG0}, s[48:51], s15 offen sc1")
        A(f"buffer_load_dwordx4 v[{PL+4}:{PL+7}], v{aG0}, s[48:51], s14 offen offset:512 sc1")
    def check1():
        A(f"v_cmpx_eq_u32 vcc, s47, v{PL+5}")
        A(f"v_cmpx_eq_u32 vcc, s47, v{PL+7}")
        g.check4(PL, PL+8)
    g.poll("1", issue1, check1, "-1", s1[0], s1[1], 16, st=10, fallback=ystore)
    A(f"buffer_load_dword v{T+2}, v7, s[68:71], s13 offen sc1")
    A("s_nop 2")
    g.stamp(7)
    Ms, Ls = PL+4, PL+6
    m, w_, t_, u_ = PL+8, PL+9, PL+10, PL+11
    g.dpp("v_max_f32", m, Ms, "row_ror:4")
    A("s_nop 1")
    g.dpp("v_max_f32", m, m, "row_ror:8")
    g.swap_reduce("v_max_f32", m, u_, 16)
    A(f"v_sub_f32 v{w_}, v{Ms}, v{m}")
    A(f"v_mul_f32 v{w_}, {LOG2E:#x}, v{w_}")
    A(f"v_exp_f32 v{w_}, v{w_}")
    A("s_nop 0")
    A(f"v_mul_f32 v{t_}, v{w_}, v{Ls}")
    for k in range(4): A(f"v_mul_f32 v{PL+k}, v{w_}, v{PL+k}")
    for ctl in ("row_ror:4", "row_ror:8"):
        for r in (t_, PL, PL+1, PL+2, PL+3):
            g.dpp("v_add_f32", r, r, ctl)
    A(f"v_mov_b32 v{u_}, v{t_}")
    A("s_nop 0")
    A(f"v_permlane16_swap_b32 v{PL}, v{PL+2}")
    A(f"v_permlane16_swap_b32 v{PL+1}, v{PL+3}")
    A(f"v_permlane16_swap_b32 v{t_}, v{u_}")
    A(f"v_add_f32 v{PL}, v{PL}, v{PL+2}")
    A(f"v_add_f32 v{PL+1}, v{PL+1}, v{PL+3}")
    A(f"v_add_f32 v{t_}, v{t_}, v{u_}")
    A(f"v_rcp_f32 v{t_}, v{t_}")
    A("s_nop 0")
    A(f"v_mul_f32 v{PL}, v{t_}, v{PL}")
    A(f"v_mul_f32 v{PL+1}, v{t_}, v{PL+1}")
    A(f"v_cvt_pk_bf16_f32 v{PL}, v{PL}, v{PL+1}")
    A(f"ds_bpermute_b32 v{P}, v{aBP0}, v{PL}")
    A(f"ds_bpermute_b32 v{P+1}, v{aBP1}, v{PL}")
    A("s_waitcnt lgkmcnt(0)")
    g.gemv_chain(4, P, WO, AS, DA, lambda t: None)
    A("s_nop 7")
    A(f"ds_write_b128 v{aRED1}, v[{DA}:{DA+3}] offset:{RED1}")
    A("s_waitcnt lgkmcnt(0)")
    g.stamp(8)
    A("s_barrier")
    A("s_cmp_ge_u32 s4, 2")
    A("s_cbranch_scc1 L_final")
    A("s_cmp_eq_u32 s4, 0")
    A("s_cselect_b64 exec, -1, 0xff")
    RA, RB = PL+8, PL+24
    for w in range(8):
        A(f"ds_read_b64 v[{RA+2*w}:{RA+2*w+1}], v{aFR} offset:{RED1+2048*w}")
    for w in range(6):
        A(f"ds_read_b64 v[{RB+2*w}:{RB+2*w+1}], v{aFR} offset:{RED1+1024+2048*w}")
    A("s_waitcnt lgkmcnt(12)")
    A(f"v_add_f32 v{PL}, v{RA}, v{RA+2}")
    A(f"v_add_f32 v{PL+2}, v{RA+1}, v{RA+3}")
    for w in range(2, 8):
        A(f"s_waitcnt lgkmcnt({13-w})")
        A(f"v_add_f32 v{PL}, v{PL}, v{RA+2*w}")
        A(f"v_add_f32 v{PL+2}, v{PL+2}, v{RA+2*w+1}")
    A("s_waitcnt lgkmcnt(4)")
    A(f"v_add_f32 v{PL+1}, v{RB}, v{RB+2}")
    A(f"v_add_f32 v{PL+3}, v{RB+1}, v{RB+3}")
    for w in range(2, 6):
        A(f"s_waitcnt lgkmcnt({5-w})")
        A(f"v_add_f32 v{PL+1}, v{PL+1}, v{RB+2*w}")
        A(f"v_add_f32 v{PL+3}, v{PL+3}, v{RB+2*w+1}")
    g.tag4(PL, [PL, PL+1, PL+2, PL+3])
    A(f"buffer_store_dwordx4 v[{PL}:{PL+3}], v{aFS}, s[48:51], s16 offen {ofl}")
    if probe:
        A("s_cmp_ge_u32 s2, 8"); A("s_cbranch_scc1 L_end")
        A("s_memrealtime s[76:77]"); A("s_movk_i32 s70, 256")
        A("s_lshl_b32 s12, s2, 2"); A("s_add_u32 s12, s12, 32"); A("v_mov_b32 v4, 0"); A("s_waitcnt lgkmcnt(0)"); A("v_mov_b32 v5, s76")
        A("s_mov_b64 exec, 1")
        A("buffer_store_dword v5, v4, s[68:71], s12 offen")
    if diag:
        g.stamp(9)
        g.label("L_dump")
        g.dump_stamps(12)
    A("s_endpgm")
    g.label("L_final")
    A("s_cmp_lt_u32 s4, 6")
    A("s_cbranch_scc1 L_nohelp")
    A("s_waitcnt vmcnt(0)")
    A(f"v_readfirstlane_b32 s10, v{T+2}")
    A("s_cmp_eq_u32 s10, 0")
    A("s_cbranch_scc1 L_nohelp")
    ystore()
    g.label("L_nohelp")
    if diag: A("s_mov_b32 s94, 0")
    A("s_cmp_lg_u32 s4, 4")
    A("s_cbranch_scc1 " + ("L_dump" if diag else "L_end"))
    A("s_cmp_ge_u32 s46, 9")
    A("s_cbranch_scc1 " + ("L_dump" if diag else "L_end"))
    FIN = PL + 44 if stag else PL
    def issue2():
        for k in range(4):
            A(f"buffer_load_dwordx4 v[{PL+4*k}:{PL+4*k+3}], v{aL16}, s[48:51], s17 offen offset:{1024*k} sc1")
    def check2():
        for k in range(4): g.check4(PL+4*k, PL+20)
    if not stag: issue2()
    if stag: issue2()
    A(f"ds_read_b64 v[{PL+18}:{PL+19}], v{aGA} offset:{GB}")
    g.srd(56, 38, 2304)
    A("s_waitcnt lgkmcnt(0)")
    if not stag:
        g.poll("2", issue2, check2, "-1", 1, 4, 24, first_issue=False)
        g.stamp(10)
        for k in range(1, 4):
            for e in range(4): A(f"v_add_f32 v{PL+e}, v{PL+e}, v{PL+4*k+e}")
    else:
        SA, SB = PL, PL+24
        def iss(base):
            for k in range(4):
                A(f"buffer_load_dwordx4 v[{base+4*k}:{base+4*k+3}], v{aL16}, s[48:51], s17 offen offset:{1024*k} sc1")
        def chk(base, lab):
            for k in range(4): g.check4(base+4*k, PL+20)
            A("s_nop 1")
            A("s_cmp_eq_u64 exec, -1")
            A("s_mov_b64 exec, -1")
            A(f"s_cbranch_scc1 {lab}")
        g.label("L_p2")
        A(f"s_sleep {stag}")
        iss(SB)
        A("s_waitcnt vmcnt(4)")
        chk(SA, "L_p2a")
        A(f"s_sleep {stag}")
        iss(SA)
        A("s_waitcnt vmcnt(4)")
        chk(SB, "L_p2b")
        A("s_sub_u32 s75, s75, 1")
        A("s_cmp_lg_u32 s75, 0")
        A("s_cbranch_scc1 L_p2")
        g.label("L_p2b")
        for e in range(4): A(f"v_add_f32 v{SB+e}, v{SB+e}, v{SB+4+e}")
        for e in range(4): A(f"v_add_f32 v{SB+8+e}, v{SB+8+e}, v{SB+12+e}")
        for e in range(4): A(f"v_add_f32 v{FIN+e}, v{SB+e}, v{SB+8+e}")
        A("s_branch L_p2c")
        g.label("L_p2a")
        for e in range(4): A(f"v_add_f32 v{SA+e}, v{SA+e}, v{SA+4+e}")
        for e in range(4): A(f"v_add_f32 v{SA+8+e}, v{SA+8+e}, v{SA+12+e}")
        for e in range(4): A(f"v_add_f32 v{FIN+e}, v{SA+e}, v{SA+8+e}")
        g.label("L_p2c")
        g.stamp(10)
    for e in range(4): g.dpp("v_add_f32", FIN+e, FIN+e, "row_ror:8")
    for which in (16, 32):
        for e in range(4): A(f"v_mov_b32 v{FIN+4+e}, v{FIN+e}")
        for e in range(4): A(f"v_permlane{which}_swap_b32 v{FIN+e}, v{FIN+4+e}")
        for e in range(4): A(f"v_add_f32 v{FIN+e}, v{FIN+e}, v{FIN+4+e}")
    a0, b0, a1, b1 = FIN, FIN+1, FIN+2, FIN+3
    A(f"v_cvt_pk_bf16_f32 v{a0}, v{a0}, v{a1}")
    A(f"v_cvt_pk_bf16_f32 v{b0}, v{b0}, v{b1}")
    A(f"v_and_b32 v{a1}, 0xffff0000, v{a0}")
    A(f"v_lshlrev_b32 v{a0}, 16, v{a0}")
    A(f"v_and_b32 v{b1}, 0xffff0000, v{b0}")
    A(f"v_lshlrev_b32 v{b0}, 16, v{b0}")
    A(f"v_and_b32 v{PL+17}, 0xffff0000, v{vB2}")
    A(f"v_lshlrev_b32 v{PL+16}, 16, v{vB2}")
    A(f"v_add_f32 v{b0}, v{b0}, v{PL+16}")
    A(f"v_add_f32 v{b1}, v{b1}, v{PL+17}")
    A(f"v_mul_f32 v{a0}, v{PL+18}, v{a0}")
    A(f"v_mul_f32 v{a1}, v{PL+18}, v{a1}")
    A(f"v_cvt_pk_bf16_f32 v{b0}, v{b0}, v{b1}")
    A(f"v_cvt_pk_bf16_f32 v{a0}, v{a0}, v{a1}")
    A(f"v_and_b32 v{b1}, 0xffff0000, v{b0}")
    A(f"v_lshlrev_b32 v{b0}, 16, v{b0}")
    A(f"v_mul_f32 v{b0}, v{PL+19}, v{b0}")
    A(f"v_mul_f32 v{b1}, v{PL+19}, v{b1}")
    A(f"v_and_b32 v{a1}, 0xffff0000, v{a0}")
    A(f"v_lshlrev_b32 v{a0}, 16, v{a0}")
    A(f"v_cvt_pk_bf16_f32 v{b0}, v{b0}, v{b1}")
    A(f"v_and_b32 v{b1}, 0xffff0000, v{b0}")
    A(f"v_lshlrev_b32 v{b0}, 16, v{b0}")
    A(f"v_add_f32 v{a0}, v{a0}, v{b0}")
    A(f"v_add_f32 v{a1}, v{a1}, v{b1}")
    A(f"v_cvt_pk_bf16_f32 v{a0}, v{a0}, v{a1}")
    A("s_mov_b64 exec, 0xff")
    A(f"buffer_store_dword v{a0}, v{aOUT}, s[56:59], s21 offen")
    A("s_or_b32 s8, s45, s46")
    A("s_cmp_lg_u32 s8, 0")
    A("s_cbranch_scc1 L_fin2")
    A("s_mov_b64 exec, 1")
    A(f"buffer_store_dword v1, v7, s[48:51], 0 offen sc1")
    g.label("L_fin2")
    if diag:
        g.stamp(9)
        g.dump_stamps(12)
    A("s_endpgm")

    g.label("L_s0b")
    XR, WD, AS, D, GX, GW = 24, 40, 112, 120, 124, 134
    A("s_load_dword s47, s[42:43], 0")
    g.srd(56, 36, 1152)
    A("v_and_b32 v6, 31, v0")
    A("v_mul_u32_u24 v8, 36, v6")
    A("v_lshrrev_b32 v7, 5, v0")
    A("s_movk_i32 s8, 1152")
    A("v_mad_u32_u24 v11, v7, s8, v8")
    A(f"buffer_load_dwordx4 v[{GX}:{GX+3}], v11, s[48:51], 0 offen")
    A(f"buffer_load_dwordx4 v[{GX+4}:{GX+7}], v11, s[48:51], 0 offen offset:16")
    A(f"buffer_load_dword v{GX+8}, v11, s[48:51], 0 offen offset:32")
    A(f"buffer_load_dwordx4 v[{GW}:{GW+3}], v8, s[56:59], 0 offen")
    A(f"buffer_load_dwordx4 v[{GW+4}:{GW+7}], v8, s[56:59], 0 offen offset:16")
    A(f"buffer_load_dword v{GW+8}, v8, s[56:59], 0 offen offset:32")
    g.selectors(144)
    g.srd(60, 42, WS_BYTES)
    A("v_lshlrev_b32 v10, 13, v7")
    A("v_lshl_add_u32 v10, v6, 4, v10")
    A("s_lshl_b32 s10, s7, 14"); A("s_lshl_b32 s11, s45, 10"); A("s_add_u32 s11, s11, s10")
    A("s_lshl_b32 s8, s44, 9"); A("s_add_u32 s11, s11, s8"); A(f"s_add_u32 s11, s11, {QP}")
    A("s_lshl_b32 s8, s44, 13"); A("s_add_u32 s64, s10, s8"); A(f"s_add_u32 s64, s64, {QP}")
    A("s_add_u32 s65, s64, 4096")
    A("v_lshlrev_b32 v12, 4, v0")
    A("v_lshlrev_b32 v13, 9, v0")
    A("v_lshlrev_b32 v14, 4, v3")
    A("v_and_b32 v15, 1, v2")
    A("v_lshl_add_u32 v14, v15, 3, v14")
    A("v_lshl_add_u32 v14, v7, 8, v14")
    g.srd(68, 40, 256)
    A("s_lshl_b32 s13, s7, 2"); A("s_add_u32 s13, s13, 128")
    A("s_cmp_eq_u32 s5, 0")
    A("s_cbranch_scc1 L_placed")
    A("v_mov_b32 v4, 0"); A("v_mov_b32 v5, 1")
    A("buffer_store_dword v5, v4, s[68:71], s13 offen sc1")
    A("s_waitcnt vmcnt(0)")
    g.label("L_placed")
    if probe:
        A("s_cmp_ge_u32 s2, 8"); A("s_cbranch_scc1 L_np0")
        A("s_lshl_b32 s12, s2, 2"); A("v_mov_b32 v4, 0"); A("v_mov_b32 v5, s76")
        A("s_mov_b64 exec, 1")
        A("buffer_store_dword v5, v4, s[68:71], s12 offen")
        A("s_mov_b64 exec, -1")
        A("s_waitcnt vmcnt(0)")
        g.label("L_np0")
    A("s_waitcnt lgkmcnt(0)")
    A("s_barrier")
    g.tag()
    A("s_waitcnt vmcnt(24)")
    g.stamp(3)
    g.gemv_chain(18, XR, WD, AS, D, lambda t: 17 - t + 6)
    A("s_nop 7")
    g.tag4(AS, [D, D+1, D+2, D+3])
    def ys0():
        A("s_mov_b64 s[72:73], exec")
        A("s_mov_b64 exec, -1")
        A(f"buffer_store_dwordx4 v[{AS}:{AS+3}], v10, s[60:63], s11 offen sc1")
        A("s_mov_b64 exec, s[72:73]")
    def helpcheck(name, ys):
        A("v_mov_b32 v4, 0")
        A("buffer_load_dword v5, v4, s[68:71], s13 offen sc1")
        A("s_waitcnt vmcnt(0)")
        A("v_readfirstlane_b32 s8, v5")
        A("s_cmp_eq_u32 s8, 0")
        A(f"s_cbranch_scc1 L_nh_{name}")
        ys()
        g.label(f"L_nh_{name}")
    A(f"buffer_store_dwordx4 v[{AS}:{AS+3}], v10, s[60:63], s11 offen")
    A("s_cmp_eq_u32 s5, 0")
    A("s_cbranch_scc1 L_q_placed")
    ys0()
    A("s_waitcnt vmcnt(0)")
    g.label("L_q_placed")
    g.stamp(1)
    A("s_waitcnt vmcnt(1)")
    acc, t0, t1, t2, t3 = 144, 145, 146, 147, 148
    A(f"v_mov_b32 v{acc}, 0")
    for k in range(9):
        A(f"v_lshlrev_b32 v{t0}, 16, v{GX+k}")
        A(f"v_and_b32 v{t1}, 0xffff0000, v{GX+k}")
        A(f"v_lshlrev_b32 v{t2}, 16, v{GW+k}")
        A(f"v_and_b32 v{t3}, 0xffff0000, v{GW+k}")
        A(f"v_mul_f32 v{t0}, v{t0}, v{t2}")
        A(f"v_mul_f32 v{t1}, v{t1}, v{t3}")
        A(f"v_cvt_pk_bf16_f32 v{t0}, v{t0}, v{t1}")
        A(f"v_lshlrev_b32 v{t1}, 16, v{t0}")
        A(f"v_and_b32 v{t0}, 0xffff0000, v{t0}")
        A(f"v_add_f32 v{acc}, v{acc}, v{t1}")
        A(f"v_add_f32 v{acc}, v{acc}, v{t0}")
    for ctl in ("quad_perm:[1,0,3,2]", "quad_perm:[2,3,0,1]", "row_half_mirror", "row_mirror"):
        A("s_nop 1")
        g.dpp("v_add_f32", acc, acc, ctl)
    g.swap_reduce("v_add_f32", acc, t0, 16)
    g.bf16r(acc, acc)
    A(f"v_mul_f32 v{acc}, {LOG2E^0x80000000:#x}, v{acc}")
    A(f"v_exp_f32 v{acc}, v{acc}")
    A("s_nop 0")
    A(f"v_add_f32 v{acc}, 1.0, v{acc}")
    A(f"v_rcp_f32 v{acc}, v{acc}")
    A("s_nop 0")
    g.bf16r(acc, acc)
    A(f"v_sub_f32 v{acc+1}, 1.0, v{acc}")
    g.bf16r(acc+1, acc+1)
    A("v_lshlrev_b32 v7, 3, v7")
    A("s_mov_b32 exec_lo, 1"); A("s_mov_b32 exec_hi, 1")
    A(f"ds_write_b64 v7, v[{acc}:{acc+1}] offset:{GB}")
    if prepoll:
        A("s_mov_b64 s[14:15], 0xffff")
        A("s_mov_b64 exec, s[14:15]")
        g.poll("pq", lambda: A(f"buffer_load_dwordx4 v[{WD}:{WD+3}], v13, s[60:63], s64 offen offset:496 sc1"), lambda: g.check4(WD, t0), "s[14:15]", 4, 0, 64, fallback=ys0, fbmask=15)
    A("s_mov_b64 exec, -1")
    g.stamp(4)
    def issueq():
        for rb in range(8):
            A(f"buffer_load_dwordx4 v[{WD+4*rb}:{WD+4*rb+3}], v12, s[60:63], s{64+rb//4} offen offset:{1024*(rb%4)} sc1")
    def checkq():
        for rb in range(8): g.check4(WD+4*rb, t0)
    g.poll("q", issueq, checkq, "-1", 4, 0, 64, fallback=ys0, fbmask=15)
    g.stamp(2)
    for rb in range(1, 8):
        for e in range(4): A(f"v_add_f32 v{WD+e}, v{WD+e}, v{WD+4*rb+e}")
    A(f"v_cvt_pk_bf16_f32 v{WD}, v{WD}, v{WD+1}")
    A(f"v_cvt_pk_bf16_f32 v{WD+1}, v{WD+2}, v{WD+3}")
    A(f"ds_write_b64 v14, v[{WD}:{WD+1}] offset:{QB}")
    A("v_mov_b32 v5, 1")
    A("v_mov_b32 v4, 0")
    A("s_waitcnt lgkmcnt(0)")
    A(f"ds_write_b32 v4, v5 offset:{QFLAG}")
    helpcheck("q", ys0)
    A("s_waitcnt lgkmcnt(0)")
    g.dump_stamps(5)
    A("s_endpgm")
    g.label("L_s1b")
    WD, AS, D, B1 = W1, 140, 148, 152
    NT = 0
    g.srd(56, 30, 9216)
    g.srd(60, 42, WS_BYTES)
    g.srd(68, 40, 256)
    A("s_load_dword s47, s[42:43], 0")
    A("v_and_b32 v6, 31, v0")
    A("v_lshrrev_b32 v7, 5, v0")
    A("v_lshlrev_b32 v10, 4, v0")
    A("s_mul_i32 s13, s46, 18")
    A("v_add_u32 v8, s13, v6")
    A("v_lshlrev_b32 v8, 4, v8")
    A("v_cmp_lt_u32 vcc, 8, v6")
    A("v_add_u32 v12, 0xf7, v6")
    A("v_lshlrev_b32 v13, 10, v0")
    A("v_cndmask_b32 v12, v6, v12, vcc")
    A("v_lshlrev_b32 v12, 4, v12")
    A("v_lshl_add_u32 v12, v7, 9, v12")
    A("s_movk_i32 s12, 288")
    A("v_mul_u32_u24 v14, s12, v7")
    A("v_lshl_add_u32 v14, v6, 4, v14")
    A("s_lshl_b32 s64, s7, 14"); A(f"s_add_u32 s64, s64, {HP}")
    A("s_and_b32 s12, s6, 15"); A("s_lshl_b32 s12, s12, 10"); A("s_add_u32 s65, s64, s12")
    A("s_lshl_b32 s12, s44, 13"); A("s_add_u32 s64, s64, s12")
    A("s_lshl_b32 s13, s7, 2"); A("s_add_u32 s13, s13, 128")
    g.selectors(156)
    A("s_waitcnt lgkmcnt(0)")
    A("s_barrier")
    g.tag()
    A(f"s_waitcnt vmcnt({24+NT})")
    def s1_after(t):
        if t < 12:
            A("s_mov_b64 exec, s[14:15]")
            A(f"buffer_load_dwordx4 v[{W1+4*t}:{W1+4*t+3}], v5, s[52:55], s11 offen nt")
            A("s_add_u32 s11, s11, 9216")
            A("s_mov_b64 exec, -1")
    g.gemv_chain(36, X1, [W1 + 4*(t % 24) for t in range(36)], AS, D, lambda t: (24 + min(t, 12) - t - 1 + (NT if t < 24 else 0)), s1_after)
    A("s_nop 7")
    g.tag4(AS, [D, D+1, D+2, D+3])
    def ys1():
        A("s_mov_b64 s[72:73], exec")
        A("s_mov_b64 exec, -1")
        A(f"buffer_store_dwordx4 v[{AS}:{AS+3}], v10, s[60:63], s65 offen sc1")
        A("s_mov_b64 exec, s[72:73]")
    A(f"buffer_store_dwordx4 v[{AS}:{AS+3}], v10, s[60:63], s65 offen")
    A("s_cmp_eq_u32 s5, 0")
    A("s_cbranch_scc1 L_h_placed")
    ys1()
    g.label("L_h_placed")
    g.stamp(1)
    A("s_mov_b32 s14, 0x0003ffff"); A("s_mov_b32 s15, 0x0003ffff")
    A("s_mov_b64 exec, s[14:15]")
    A(f"buffer_load_dwordx4 v[{B1}:{B1+3}], v8, s[56:59], 0 offen")
    if prepoll:
        A("s_mov_b64 s[10:11], 0xff")
        A("s_mov_b64 exec, s[10:11]")
        g.poll("ph", lambda: A(f"buffer_load_dwordx4 v[{WD}:{WD+3}], v13, s[60:63], s64 offen offset:896 sc1"), lambda: g.check4(WD, 156), "s[10:11]", 8, 0, 64, fallback=ys1, fbmask=15)
        A("s_mov_b64 exec, s[14:15]")
    g.stamp(3)
    def issueh():
        for rb in range(4):
            for k in range(2):
                d = WD + 8*rb + 4*k
                A(f"buffer_load_dwordx4 v[{d}:{d+3}], v12, s[60:63], s64 offen offset:{1024*rb+256*k} sc1")
    def checkh():
        for k in range(8): g.check4(WD+4*k, 156)
    g.poll("h", issueh, checkh, "s[14:15]", 4, 0, 64, fallback=ys1, fbmask=15)
    g.stamp(2)
    for rb in range(1, 4):
        for e in range(8): A(f"v_add_f32 v{WD+e}, v{WD+e}, v{WD+8*rb+e}")
    for d in range(4):
        a, b = WD + 2*d, WD + 2*d + 1
        t0, t1 = 160, 161
        A(f"v_cvt_pk_bf16_f32 v{a}, v{a}, v{b}")
        A(f"v_lshlrev_b32 v{t0}, 16, v{B1+d}")
        A(f"v_and_b32 v{t1}, 0xffff0000, v{B1+d}")
        A(f"v_and_b32 v{b}, 0xffff0000, v{a}")
        A(f"v_lshlrev_b32 v{a}, 16, v{a}")
        A(f"v_add_f32 v{a}, v{a}, v{t0}")
        A(f"v_add_f32 v{b}, v{b}, v{t1}")
        A(f"v_cvt_pk_bf16_f32 v{a}, v{a}, v{b}")
        A(f"v_and_b32 v{b}, 0xffff0000, v{a}")
        A(f"v_lshlrev_b32 v{a}, 16, v{a}")
        A(f"v_max_f32 v{a}, 0, v{a}")
        A(f"v_max_f32 v{b}, 0, v{b}")
        A(f"v_mul_f32 v{a}, v{a}, v{a}")
        A(f"v_mul_f32 v{b}, v{b}, v{b}")
        A(f"v_cvt_pk_bf16_f32 v{156+d}, v{a}, v{b}")
    A(f"ds_write_b128 v14, v[156:159] offset:{HB}")
    A("s_mov_b64 exec, -1")
    helpcheck("h", ys1)
    A("s_waitcnt lgkmcnt(0)")
    g.dump_stamps(4)
    g.label("L_end")
    A("s_endpgm")
    body = "\n".join(g.L)
    s = HEADER
    s += f"; @launch grid=(256,1,1) block=(640,1,1) lds={LDS_BYTES}\n"
    s += f""".amdgcn_target "amdgcn-amd-amdhsa--gfx950"
.text
.globl {KNAME}
.p2align 8
.type {KNAME},@function
{KNAME}:
{body}
.section .rodata,"a"
.p2align 6
.amdhsa_kernel {KNAME}
  .amdhsa_next_free_vgpr 168
  .amdhsa_next_free_sgpr 102
  .amdhsa_accum_offset 168
  .amdhsa_group_segment_fixed_size 0
  .amdhsa_kernarg_size 112
  .amdhsa_user_sgpr_count 2
  .amdhsa_user_sgpr_kernarg_segment_ptr 1
  .amdhsa_system_sgpr_workgroup_id_x 1
  .amdhsa_float_denorm_mode_32 3
.end_amdhsa_kernel
"""
    return s

if __name__ == "__main__":
    open("k13_probe.s", "w").write(build(False, stag=1, probe=True))
```

```python
import sys
from gen_common import KNAME, HEADER

QP   = 0x1000
HP   = 0x80000
OPT  = 0x100000
OREC = 640
OP   = 0x200000
WS_BYTES = 0x400000
QB, HB, GB, MW, LW, QFLAG, RED0, KB = 0, 512, 1088, 1152, 1216, 1280, 2048, 10240
RED1 = KB
LDS_BYTES = KB + 131072
LOG2E = 0x3fb8aa3b
SCALE = 0x3db504f3
SEL = 16
SI = 24
SC = 28

class G:
    def __init__(s, diag=False, spin=100000):
        s.L = []; s.diag = diag; s.spin = spin
    def __call__(s, x): s.L.append("    " + x)
    def label(s, x): s.L.append(x + ":")
    def srd(s, d, lo, nbytes):
        s(f"s_mov_b64 s[{d}:{d+1}], s[{lo}:{lo+1}]")
        s(f"s_mov_b32 s{d+2}, {nbytes}"); s(f"s_mov_b32 s{d+3}, 0x20000")
    def stamp(s, k):
        if s.diag:
            s(f"s_memrealtime s[{76+2*k}:{77+2*k}]")
            s("s_waitcnt lgkmcnt(0)")
    def dump_stamps(s, n):
        if not s.diag: return
        s.srd(68, 40, 0x50000)
        s("s_lshl_b32 s72, s2, 10")
        s("s_lshl_b32 s73, s3, 6"); s("s_add_u32 s72, s72, s73"); s("s_add_u32 s72, s72, 4096")
        s("s_mov_b64 exec, 1")
        s("v_mov_b32 v4, 0")
        for k in range(n):
            s(f"v_mov_b32 v5, s{76+2*k}")
            s(f"buffer_store_dword v5, v4, s[68:71], s72 offen offset:{4*k}")
            s("s_nop 1")
    def tag(s):
        s("s_mul_i32 s47, s47, 0x9E3779B1")
        s("s_add_u32 s47, s47, 0x7F4A7C15")
        for k in range(4): s(f"s_mov_b32 s{SI+k}, {0x07060500+k:#x}")
        s(f"s_mov_b32 s{SC}, 0x0c0c0400"); s(f"s_mov_b32 s{SC+1}, 0x0c040100"); s(f"s_mov_b32 s{SC+2}, 0x04020100")
        s("v_mov_b32 v1, s47")
    def tag4(s, dst, src):
        for k in range(4): s(f"v_perm_b32 v{dst+k}, v{src[k]}, v1, s{SI+k}")
    def check4(s, d, t):
        s(f"v_perm_b32 v{t}, v{d+1}, v{d}, s{SC}")
        s(f"v_perm_b32 v{t}, v{d+2}, v{t}, s{SC+1}")
        s(f"v_perm_b32 v{t}, v{d+3}, v{t}, s{SC+2}")
        s(f"v_cmpx_eq_u32 vcc, s47, v{t}")
    def selectors(s, t0):
        a, b, c, d, e = t0, t0+1, t0+2, t0+3, t0+4
        s(f"v_and_b32 v{a}, 1, v0")
        s(f"v_lshlrev_b32 v{a}, 4, v{a}")
        s(f"v_bfe_u32 v{b}, v0, 1, 2")
        s(f"v_mov_b32 v{c}, 0x0d0c")
        s(f"v_mov_b32 v{d}, 0x0f0e")
        s(f"v_mov_b32 v{e}, 0x0c0c0c0c")
        s(f"v_lshlrev_b32 v{c}, v{a}, v{c}")
        s(f"v_lshlrev_b32 v{d}, v{a}, v{d}")
        s(f"v_xor_b32 v{c}, v{c}, v{e}")
        s(f"v_xor_b32 v{d}, v{d}, v{e}")
        for k in range(4):
            s(f"v_cmp_eq_u32 vcc, {k}, v{b}")
            s("s_nop 1")
            s(f"v_cndmask_b32 v{SEL+k}, v{e}, v{c}, vcc")
            s(f"v_cndmask_b32 v{SEL+4+k}, v{e}, v{d}, vcc")
    def perm4(s, dst, src, par):
        for k in range(4):
            s(f"v_perm_b32 v{dst+k}, v{src}, v{src}, v{SEL+4*par+k}")
    def gemv_chain(s, n, xreg, data, aset, acc, waitfn, after=None):
        dreg = (lambda t: data[t]) if isinstance(data, list) else (lambda t: data + 4*t)
        s.perm4(aset, xreg, 0)
        for t in range(n):
            cur = aset + 4*(t & 1); nxt = aset + 4*((t+1) & 1)
            if t+1 < n: s.perm4(nxt, xreg + ((t+1) >> 1), (t+1) & 1)
            else: s("s_nop 1")
            w = waitfn(t)
            if w is not None: s(f"s_waitcnt vmcnt({w})")
            c = "0" if t == 0 else f"v[{acc}:{acc+3}]"
            s(f"v_mfma_f32_16x16x32_bf16 v[{acc}:{acc+3}], v[{cur}:{cur+3}], v[{dreg(t)}:{dreg(t)+3}], {c}")
            if after: after(t)
    def bf16r(s, dst, src):
        s(f"v_cvt_pk_bf16_f32 v{dst}, v{src}, v{src}")
        s(f"v_and_b32 v{dst}, 0xffff0000, v{dst}")
    def swap_reduce(s, op, r, t, which):
        s(f"v_mov_b32 v{t}, v{r}")
        s("s_nop 1")
        s(f"v_permlane{which}_swap_b32 v{r}, v{t}")
        s("s_nop 1")
        s(f"{op} v{r}, v{r}, v{t}")
    def dpp(s, op, dst, src, ctl):
        s(f"{op}_dpp v{dst}, v{src}, v{src} {ctl} row_mask:0xf bank_mask:0xf")
    def poll(s, name, issue, check, full, sleep_few=2, sleep_many=8, many=16, first_issue=True, masked=True, st=None, fallback=None, fbmask=31):
        if fallback: s(f"s_or_b32 s75, s75, {fbmask}")
        if first_issue: issue()
        if st is not None and s.diag:
            s("s_waitcnt vmcnt(0)")
            s.stamp(st)
            s(f"s_mov_b32 s{76+2*(st+1)}, s75")
        s.label(f"L_poll_{name}")
        s("s_waitcnt vmcnt(0)")
        s(f"s_mov_b64 exec, {full}")
        check()
        s("s_nop 1")
        s(f"s_andn2_b64 exec, {full}, exec")
        s(f"s_cbranch_scc0 L_ok_{name}")
        s("s_bcnt1_i32_b64 s74, exec")
        if not masked: s(f"s_mov_b64 exec, {full}")
        s(f"s_sleep {sleep_few}")
        if sleep_many:
            s(f"s_cmp_lt_u32 s74, {many}")
            s(f"s_cbranch_scc1 L_ns_{name}")
            s(f"s_sleep {sleep_many}")
            s.label(f"L_ns_{name}")
        issue()
        if fallback:
            s(f"s_and_b32 s74, s75, {fbmask}")
            s(f"s_cbranch_scc1 L_nf_{name}")
            fallback()
            s.label(f"L_nf_{name}")
        s("s_sub_u32 s75, s75, 1")
        s("s_cmp_lg_u32 s75, 0")
        s(f"s_cbranch_scc1 L_poll_{name}")
        s("s_waitcnt vmcnt(0)")
        s.label(f"L_ok_{name}")
        s(f"s_mov_b64 exec, {full}")
        if st is not None and s.diag:
            s(f"s_sub_u32 s{76+2*(st+1)}, s{76+2*(st+1)}, s75")
            s(f"s_mul_i32 s{76+2*(st+1)}, s{76+2*(st+1)}, 100")
            s(f"s_add_u32 s{76+2*(st+1)}, s{76+2*(st+1)}, s76")

def build(diag=False, W=4, NQ=10, mask='bh', prepoll=False, s1=(1, 4), nsmall0=2, qfl='sc1', ofl='sc1', prio=2, inter=True, smallpos='pre', stag=False, tlb=True, tlbfl='', probe=False, xpos='first', tailprio=False, s2=(1, 4, 24), pre2=0):
    g = G(diag); A = g
    A("s_cmp_ge_u32 s2, 256")
    A("s_cbranch_scc1 L_end")
    A("s_load_dwordx16 s[16:31], s[0:1], 0")
    A("s_load_dwordx8 s[32:39], s[0:1], 64")
    A("s_load_dwordx4 s[40:43], s[0:1], 96")
    if diag or probe: A("s_memrealtime s[76:77]")
    A("v_lshrrev_b32 v1, 6, v0")
    A("v_and_b32 v0, 63, v0")
    A("v_readfirstlane_b32 s3, v1")
    A("s_and_b32 s5, s2, 7")
    A("s_lshr_b32 s6, s2, 3")
    A("s_lshr_b32 s7, s6, 4")
    A("s_lshl_b32 s8, s5, 1")
    A("s_add_u32 s7, s7, s8")
    A("s_getreg_b32 s8, hwreg(HW_REG_XCC_ID, 0, 4)")
    A("s_xor_b32 s5, s5, s8")
    A("s_bfe_u32 s44, s6, 0x10003")
    A("s_and_b32 s45, s6, 7")
    A("s_lshl_b32 s46, s7, 1")
    A("s_add_u32 s46, s46, s44")
    A("v_lshrrev_b32 v2, 4, v0")
    A("v_and_b32 v3, 15, v0")
    A(f"s_mov_b32 s75, {g.spin}")
    A("v_bfe_u32 v9, v0, 3, 1")
    A("s_cmp_gt_u32 s3, 1")
    A("s_cbranch_scc1 L_bulk")
    A("s_setprio 3")
    A("s_movk_i32 s8, 1152")
    A("v_mul_u32_u24 v4, s8, v9")
    A("v_lshlrev_b32 v5, 4, v3")
    A("s_mov_b32 s50, 2304"); A("s_mov_b32 s51, 0x20000"); A("s_mov_b32 s55, 0x20000")
    A("s_cmp_eq_u32 s3, 1")
    A("s_cbranch_scc1 L_s1a")
    XR, WD = 24, 40
    A("v_mad_u32_u24 v4, v2, 36, v4")
    A("s_mul_i32 s9, s45, 144")
    A(f"s_mov_b32 s8, {18*8192}")
    A("v_mad_u32_u24 v5, v2, s8, v5")
    A(f"s_mul_i32 s10, s45, {72*8192}")
    A("s_lshl_b32 s11, s46, 8")
    A("s_add_u32 s10, s10, s11")
    A(f"s_mov_b32 s54, {576*8192}")
    A("s_waitcnt lgkmcnt(0)")
    A("s_mov_b64 s[48:49], s[16:17]")
    A("s_mov_b64 s[52:53], s[22:23]")
    def s0x():
        A(f"buffer_load_dwordx4 v[{XR}:{XR+3}], v4, s[48:51], s9 offen")
        A(f"buffer_load_dwordx4 v[{XR+4}:{XR+7}], v4, s[48:51], s9 offen offset:16")
        A(f"buffer_load_dword v{XR+8}, v4, s[48:51], s9 offen offset:32")
    if xpos == 'first': s0x()
    for t in range(18):
        A(f"buffer_load_dwordx4 v[{WD+4*t}:{WD+4*t+3}], v5, s[52:55], s10 offen nt")
        if t < 17: A("s_add_u32 s10, s10, 8192")
    if xpos == 'last': s0x()
    A("v_mov_b32 v6, 0")
    A(f"ds_write_b32 v6, v6 offset:{QFLAG}")
    A("s_branch L_s0b")
    g.label("L_s1a")
    X1, W1 = 24, 44
    A("s_and_b32 s8, s45, 3")
    A("s_lshr_b32 s9, s6, 2")
    A("s_and_b32 s9, s9, 3")
    A("s_movk_i32 s10, 72")
    A("v_mad_u32_u24 v4, v2, s10, v4")
    A("s_mul_i32 s10, s8, 288")
    A(f"s_mov_b32 s11, {36*9216}")
    A("v_mad_u32_u24 v5, v2, s11, v5")
    A(f"s_mul_i32 s11, s8, {144*9216}")
    A("s_mul_i32 s12, s7, 576"); A("s_add_u32 s11, s11, s12")
    A("s_mul_i32 s12, s9, 144"); A("s_add_u32 s11, s11, s12")
    A(f"s_mov_b32 s54, {576*9216}")
    A("s_mov_b32 s14, 0x01ff01ff"); A("s_mov_b32 s15, 0x01ff01ff")
    A("s_waitcnt lgkmcnt(0)")
    A("s_mov_b64 s[48:49], s[16:17]")
    A("s_mov_b64 s[52:53], s[28:29]")
    if tlb:
        A("s_cmp_lg_u32 s45, 0")
        A("s_cbranch_scc1 L_notouch")
        A("s_lshl_b32 s12, s44, 4"); A("s_add_u32 s12, s12, s7"); A("s_lshl_b32 s12, s12, 23"); A("s_add_u32 s12, s12, 0x700000")
        A(f"s_mul_i32 s13, s46, {128*1152}")
        A(f"s_mul_i32 s72, s46, {144*1152}")
        A("s_lshl_b32 s73, s46, 5")
        A("s_mov_b64 exec, 1")
        A("v_mov_b32 v160, s12"); A("v_mov_b32 v161, s13"); A("v_mov_b32 v162, s72"); A("v_mov_b32 v163, s73"); A(f"v_mov_b32 v164, {OP}"); A("v_mov_b32 v166, 0")
        for (off, base) in ((160, 20), (161, 24), (162, 32), (164, 42), (163, 38), (166, 40), (163, 30), (163, 34)):
            A(f"global_load_dword v165, v{off}, s[{base}:{base+1}]{tlbfl}")
        A("s_mov_b64 exec, -1")
        g.label("L_notouch")
    def s1x():
        for k in range(4):
            A(f"buffer_load_dwordx4 v[{X1+4*k}:{X1+4*k+3}], v4, s[48:51], s10 offen offset:{16*k}")
        A(f"buffer_load_dwordx2 v[{X1+16}:{X1+17}], v4, s[48:51], s10 offen offset:64")
    if xpos == 'first': s1x()
    A("s_mov_b64 exec, s[14:15]")
    for t in range(24):
        A(f"buffer_load_dwordx4 v[{W1+4*t}:{W1+4*t+3}], v5, s[52:55], s11 offen nt")
        A("s_add_u32 s11, s11, 9216")
    A("s_mov_b64 exec, -1")
    if xpos == 'last': s1x()
    A("s_branch L_s1b")

    g.label("L_bulk")
    VD, QF, KF, S, P, AS, OA, DA, DB, T = 24, 88, 104, 120, 136, 144, 152, 80, 76, 164
    WO, PL = 88, 24
    W2R = [104, 108, 112, 116, 156, 160]
    aRED0, aPUBR, aL16, aG0, aGA, aGD, aH, aFR, aFS, aBP0, aBP1, aOUT, vB2 = (S+k for k in range(13))
    GG = S + 14
    A("s_sub_u32 s4, s3, 2")
    if prio == 1: A("s_setprio 1")
    if prio == 2:
        A("s_setprio 1")
        A("s_cmp_lt_u32 s4, 4")
        A("s_cbranch_scc1 L_prio")
        A("s_setprio 2")
        g.label("L_prio")
    A("s_lshl_b32 s11, s44, 4")
    A("s_add_u32 s11, s11, s7")
    A("s_lshl_b32 s8, s11, 23")
    A("s_lshl_b32 s9, s45, 17")
    A("s_add_u32 s8, s8, s9")
    A("s_add_u32 s8, s8, 0x700000")
    if mask == 'h':
        A("s_mul_i32 s11, s2, 0x9E3779B1"); A("s_lshr_b32 s11, s11, 27")
    for j in range(4):
        A(f"s_add_u32 s9, s4, {8*j}")
        A("s_xor_b32 s9, s9, s11")
        A(f"s_lshl_b32 s{64+j}, s9, 12")
    A("v_xor_b32 v4, v3, v2")
    A("v_lshlrev_b32 v4, 4, v4")
    A("v_lshl_add_u32 v4, v2, 8, v4")
    A("v_xor_b32 v5, 64, v4")
    A("v_xor_b32 v6, 0x80, v4")
    A("v_xor_b32 v7, 0xc0, v4")
    A("v_lshlrev_b32 v8, 4, v3")
    A("v_lshl_add_u32 v8, v2, 10, v8")
    A("s_lshl_b32 s10, s4, 14")
    A(f"s_add_u32 s10, s10, {KB}")
    A("s_mov_b32 s50, 0x20000"); A("s_mov_b32 s51, 0x20000"); A("s_mov_b32 s54, 0x20000"); A("s_mov_b32 s55, 0x20000")
    A("s_mov_b32 m0, s10")
    A("s_waitcnt lgkmcnt(0)")
    A("s_add_u32 s48, s18, s8"); A("s_addc_u32 s49, s19, 0")
    A("s_add_u32 s52, s20, s8"); A("s_addc_u32 s53, s21, 0")
    def setup_mid():
        A("s_load_dword s47, s[42:43], 0")
        g.selectors(S)
        A("v_xor_b32 v12, v3, v2")
        A("v_lshlrev_b32 v12, 4, v12")
        A("v_lshl_add_u32 v12, v3, 8, v12")
        A("v_add_u32 v12, s10, v12")
        A("v_xor_b32 v13, 64, v12")
        A("v_xor_b32 v14, 0x80, v12")
        A("v_xor_b32 v15, 0xc0, v12")
        A("v_lshlrev_b32 v10, 8, v9")
        A("v_lshl_add_u32 v10, v2, 4, v10")
        A("v_lshlrev_b32 v11, 5, v9")
        g.srd(56, 24, 4096*1152)
        A("s_mov_b64 s[60:61], s[32:33]")
        A("s_cmp_lt_u32 s4, 6")
        A(f"s_cselect_b32 s62, {4608*1152}, 0")
        A("s_mov_b32 s63, 0x20000")
        A("s_barrier")
    def vload(idx):
        j, r = idx // 4, idx % 4
        d = VD + 16*j + 4*r
        A(f"buffer_load_dwordx4 v[{d}:{d+3}], v8, s[52:55], s{64+j} offen offset:{256*r} nt")
    def qk_tile(j):
        for jj in range(4):
            A(f"ds_read_b128 v[{KF+4*jj}:{KF+4*jj+3}], v{12+jj} offset:{4096*j}")
        for jj in range(4):
            A(f"s_waitcnt lgkmcnt({3-jj})")
            c = "0" if jj == 0 else f"v[{S+4*j}:{S+4*j+3}]"
            A(f"v_mfma_f32_16x16x32_bf16 v[{S+4*j}:{S+4*j+3}], v[{KF+4*jj}:{KF+4*jj+3}], v[{QF+4*jj}:{QF+4*jj+3}], {c}")
    def c_q01():
        A("s_waitcnt lgkmcnt(0)")
        g.tag()
        g.stamp(1)
        A("v_mov_b32 v4, 0")
        g.label("L_qspin")
        A(f"ds_read_b32 v5, v4 offset:{QFLAG}")
        for jj in range(4):
            A(f"ds_read_b128 v[{QF+4*jj}:{QF+4*jj+3}], v10 offset:{QB+64*jj}")
        A("s_waitcnt lgkmcnt(4)")
        A("v_readfirstlane_b32 s72, v5")
        A("s_cmp_eq_u32 s72, 1")
        A("s_cbranch_scc1 L_qok")
        A("s_sleep 2")
        A("s_sub_u32 s75, s75, 1")
        A("s_cmp_lg_u32 s75, 0")
        A("s_cbranch_scc1 L_qspin")
        g.label("L_qok")
        g.stamp(2)
        qk_tile(0); qk_tile(1)
    def c_q23():
        qk_tile(2); qk_tile(3)
        A("s_nop 3")
    def c_round():
        for j in range(4):
            for h in range(2):
                a = S + 4*j + 2*h
                A(f"v_cvt_pk_bf16_f32 v{T}, v{a}, v{a+1}")
                A(f"v_lshlrev_b32 v{a}, 16, v{T}")
                A(f"v_and_b32 v{a+1}, 0xffff0000, v{T}")
                A(f"v_mul_f32 v{a}, {SCALE:#x}, v{a}")
                A(f"v_mul_f32 v{a+1}, {SCALE:#x}, v{a+1}")
                A(f"v_cvt_pk_bf16_f32 v{T}, v{a}, v{a+1}")
                A(f"v_lshlrev_b32 v{a}, 16, v{T}")
                A(f"v_and_b32 v{a+1}, 0xffff0000, v{T}")
    def c_soft():
        A(f"v_max3_f32 v{T}, v{S}, v{S+1}, v{S+2}")
        for k in range(3, 15, 2):
            A(f"v_max3_f32 v{T}, v{T}, v{S+k}, v{S+k+1}")
        A(f"v_max_f32 v{T}, v{T}, v{S+15}")
        g.swap_reduce("v_max_f32", T, T+1, 16)
        g.swap_reduce("v_max_f32", T, T+1, 32)
        A("s_lshl_b32 s11, s4, 2")
        A(f"v_add_u32 v{T+3}, s11, v11")
        A(f"s_mov_b32 s72, {LOG2E:#x}")
        A(f"v_mul_f32 v{T+1}, {LOG2E^0x80000000:#x}, v{T}")
        for k in range(16):
            A(f"v_fma_f32 v{S+k}, v{S+k}, s72, v{T+1}")
        for k in range(16):
            A(f"v_exp_f32 v{S+k}, v{S+k}")
        A("s_nop 0")
        for k in range(8):
            A(f"v_cvt_pk_bf16_f32 v{P+k}, v{S+2*k}, v{S+2*k+1}")
        A(f"v_add_f32 v{T+2}, v{S}, v{S+1}")
        for k in range(2, 16):
            A(f"v_add_f32 v{T+2}, v{T+2}, v{S+k}")
        g.swap_reduce("v_add_f32", T+2, T+1, 16)
        g.swap_reduce("v_add_f32", T+2, T+1, 32)
        A("s_mov_b64 exec, 0x101")
        A(f"ds_write_b32 v{T+3}, v{T} offset:{MW}")
        A(f"ds_write_b32 v{T+3}, v{T+2} offset:{LW}")
        A("s_mov_b64 exec, -1")
        g.stamp(3)
    def c_addr():
        g.srd(48, 42, WS_BYTES)
        A("s_lshl_b32 s72, s4, 10")
        A(f"v_lshlrev_b32 v{aL16}, 4, v0")
        A(f"v_add_u32 v{aRED0}, s72, v{aL16}")
        A("s_and_b32 s72, s4, 1")
        A("s_lshl_b32 s73, s72, 9")
        A(f"v_and_b32 v{aPUBR}, 1, v0")
        A(f"v_lshlrev_b32 v{aPUBR}, 8, v{aPUBR}")
        A(f"v_bfe_u32 v4, v0, 1, 4")
        A(f"v_lshl_add_u32 v{aPUBR}, v4, 4, v{aPUBR}")
        A(f"v_add_u32 v{aPUBR}, s73, v{aPUBR}")
        A("s_lshl_b32 s12, s7, 1"); A("s_add_u32 s12, s12, s72"); A("s_lshl_b32 s12, s12, 1"); A("s_add_u32 s12, s12, s44")
        A("s_lshl_b32 s12, s12, 3"); A("s_add_u32 s12, s12, s45"); A(f"s_mul_i32 s12, s12, {OREC}"); A(f"s_add_u32 s12, s12, {OPT}")
        A("s_lshl_b32 s13, s72, 5")
        A("v_mov_b32 v7, s13")
        A(f"s_movk_i32 s72, {OREC}")
        A(f"v_and_b32 v4, 3, v0")
        A(f"v_lshlrev_b32 v4, 4, v4")
        A(f"v_lshrrev_b32 v5, 2, v0")
        A(f"v_mad_u32_u24 v{aG0}, v5, s72, v4")
        A(f"s_mul_i32 s14, s46, {16*OREC}")
        A(f"s_add_u32 s14, s14, {OPT}")
        A("s_lshl_b32 s15, s4, 6")
        A("s_add_u32 s15, s15, s14")
        A(f"v_lshlrev_b32 v{aBP0}, 7, v9")
        A(f"v_lshl_add_u32 v{aBP0}, v2, 2, v{aBP0}")
        A(f"v_add_u32 v{aBP1}, 64, v{aBP0}")
        A("s_mul_i32 s72, s4, 48")
        A(f"v_mul_u32_u24 v{aH}, 12, v2")
        A("s_movk_i32 s73, 288")
        A(f"v_mad_u32_u24 v{aH}, v9, s73, v{aH}")
        A(f"v_add_u32 v{aH}, s72, v{aH}")
        A(f"v_lshrrev_b32 v5, 3, v0")
        A(f"v_lshlrev_b32 v{aFS}, 12, v5")
        A(f"v_and_b32 v6, 7, v0")
        A(f"v_lshl_add_u32 v{aFS}, v6, 4, v{aFS}")
        A("v_cmp_lt_u32 vcc, 17, v0")
        A("v_add_u32 v5, 46, v0")
        A("s_nop 0")
        A("v_cndmask_b32 v4, v0, v5, vcc")
        A("v_lshrrev_b32 v5, 1, v4")
        A(f"v_lshlrev_b32 v{aFR}, 4, v5")
        A("v_and_b32 v5, 1, v4")
        A(f"v_lshl_add_u32 v{aFR}, v5, 8, v{aFR}")
        A(f"v_and_b32 v{aFR}, 0x3ff, v{aFR}")
        A(f"s_mul_i32 s16, s45, {5*4096}")
        A("s_lshl_b32 s73, s46, 7"); A("s_add_u32 s16, s16, s73"); A(f"s_add_u32 s16, s16, {OP}")
        g.srd(68, 34, 1152)
        A("s_lshl_b32 s72, s46, 6")
        A("v_lshl_add_u32 v5, v6, 3, s72")
        A("v_cmp_lt_u32 vcc, 0x8f, v5")
        A("v_subrev_u32 v6, 0x90, v5")
        A("v_mov_b32 v4, 0")
        A("v_cndmask_b32 v5, v5, v6, vcc")
        A("v_mov_b32 v6, 8")
        A(f"v_cndmask_b32 v{aGA}, v4, v6, vcc")
        A("s_mul_i32 s21, s45, 144")
        A(f"buffer_load_dwordx2 v[{vB2}:{vB2+1}], v5, s[68:71], s21 offen")
        A(f"v_mul_u32_u24 v6, 0x90, v{aGA}")
        A(f"v_add_u32 v{aOUT}, v5, v6")
        A("s_mul_i32 s17, s45, 5"); A("s_add_u32 s17, s17, s46"); A("s_lshl_b32 s17, s17, 12"); A(f"s_add_u32 s17, s17, {OP}")
        A(f"v_lshrrev_b32 v{aGD}, 5, v0")
        A(f"v_lshlrev_b32 v{aGD}, 3, v{aGD}")
        A(f"s_movk_i32 s72, {4*1152}")
        A("v_lshlrev_b32 v4, 4, v3")
        A("v_mad_u32_u24 v5, v2, s72, v4")
        A(f"s_movk_i32 s72, {6*1152}")
        A("v_mad_u32_u24 v6, v2, s72, v4")
        A("s_lshl_b32 s18, s46, 3"); A("s_add_u32 s18, s18, s4"); A(f"s_mul_i32 s18, s18, {16*1152}")
        A("s_mul_i32 s73, s45, 144"); A("s_add_u32 s18, s18, s73")
        A("s_mul_i32 s19, s46, 6"); A("s_add_u32 s19, s19, s4"); A(f"s_mul_i32 s19, s19, {24*1152}")
        A("s_add_u32 s19, s19, s73")
        A(f"s_add_u32 s20, s19, {3*1152}")
        A("s_mov_b32 s22, 0x01ff01ff"); A("s_mov_b32 s23, 0x01ff01ff")
    def small(k):
        if k < 4: A(f"buffer_load_dwordx4 v[{WO+4*k}:{WO+4*k+3}], v5, s[56:59], s18 offen offset:{1152*k} nt")
        else:
            t = k - 4
            A(f"buffer_load_dwordx4 v[{W2R[t]}:{W2R[t]+3}], v6, s[60:63], s{19 + t//3} offen offset:{1152*(t%3)} nt")
    n = 0
    for j in range(4):
        if j > 0:
            A(f"s_add_u32 m0, s10, {4096*j}")
            if n < W: A("s_nop 0")
        for t4 in range(4):
            if n >= W: A(f"s_waitcnt vmcnt({W-1})")
            if n == W: g.stamp(12)
            A(f"buffer_load_dwordx4 v{4+t4}, s[48:51], s{64+j} offen offset:{1024*t4} nt lds")
            n += 1
            if n == W: setup_mid()
    chunks = {NQ: c_q01, NQ+1: c_q23, NQ+2: c_round, NQ+3: c_soft, NQ+4: c_addr}
    assert NQ >= W and NQ + 4 <= 15
    for idx in range(16):
        A(f"s_waitcnt vmcnt({W-1})")
        vload(idx)
        if idx in chunks: chunks[idx]()
    g.stamp(4)
    if prio: A("s_setprio 0")
    if nsmall0:
        A("s_mov_b64 exec, s[22:23]")
        for k in range(nsmall0): small(k)
        A("s_mov_b64 exec, -1")
    issued = [nsmall0]
    def pv_after(t):
        if inter and t > 15 - W and issued[0] < 10 and t < 15:
            A("s_mov_b64 exec, s[22:23]")
            small(issued[0]); issued[0] += 1
            A("s_mov_b64 exec, -1")
    g.gemv_chain(16, P, VD, AS, OA, lambda t: None if t <= 15 - W else 15 - t + issued[0], pv_after)
    def rest_small():
        if issued[0] < 10:
            A("s_mov_b64 exec, s[22:23]")
            while issued[0] < 10:
                small(issued[0]); issued[0] += 1
            A("s_mov_b64 exec, -1")
    if smallpos == 'pre': rest_small()
    A("s_mov_b64 s[68:69], s[40:41]"); A("s_lshl_b32 s13, s7, 2"); A("s_add_u32 s13, s13, 128")
    A("s_mov_b64 s[64:65], s[42:43]")
    A("s_cmp_ge_u32 s4, 6")
    A("s_cselect_b32 s70, 256, 0"); A("s_mov_b32 s71, 0x20000")
    A(f"s_cselect_b32 s66, {WS_BYTES}, 0")
    A("s_mov_b32 s67, 0x20000")
    A("s_nop 1")
    A(f"ds_write_b128 v{aRED0}, v[{OA}:{OA+3}] offset:{RED0}")
    A("s_waitcnt lgkmcnt(0)")
    g.stamp(5)
    A("s_barrier")
    if smallpos == 'post': rest_small()
    A(f"ds_read_b64 v[{GG}:{GG+1}], v{aGD} offset:{GB}")
    A("s_cmp_lt_u32 s4, 6")
    A("s_cbranch_scc1 L_nopub")
    F, OR, LR, ST = PL, PL+8, PL+40, PL+48
    def ystore():
        A("s_mov_b64 s[8:9], exec")
        A("s_mov_b32 exec_lo, -1"); A("s_mov_b32 exec_hi, 0xff")
        A(f"buffer_store_dwordx4 v[{ST}:{ST+3}], v{aL16}, s[64:67], s12 offen sc1")
        A("s_mov_b32 s66, 0")
        A("s_mov_b64 exec, s[8:9]")
    if tailprio: A("s_setprio 3")
    A(f"ds_read_b128 v[{F}:{F+3}], v7 offset:{MW}")
    A(f"ds_read_b128 v[{F+4}:{F+7}], v7 offset:{MW+16}")
    for w in range(8):
        A(f"ds_read_b128 v[{OR+4*w}:{OR+4*w+3}], v{aPUBR} offset:{RED0+1024*w}")
    A(f"ds_read_b128 v[{LR}:{LR+3}], v7 offset:{LW}")
    A(f"ds_read_b128 v[{LR+4}:{LR+7}], v7 offset:{LW+16}")
    A(f"s_mov_b32 s72, {LOG2E:#x}")
    A("s_waitcnt lgkmcnt(10)")
    A(f"v_max3_f32 v{T+1}, v{F}, v{F+1}, v{F+2}")
    A(f"v_max3_f32 v{T}, v{F+3}, v{F+4}, v{F+5}")
    A(f"v_max3_f32 v{T+1}, v{T+1}, v{F+6}, v{F+7}")
    A(f"v_max_f32 v{T+1}, v{T+1}, v{T}")
    A(f"v_mul_f32 v{T}, {LOG2E^0x80000000:#x}, v{T+1}")
    for w in range(8): A(f"v_fma_f32 v{F+w}, v{F+w}, s72, v{T}")
    for w in range(8): A(f"v_exp_f32 v{F+w}, v{F+w}")
    A("s_waitcnt lgkmcnt(9)")
    for k in range(4): A(f"v_mul_f32 v{ST+k}, v{F}, v{OR+k}")
    for w in range(1, 8):
        A(f"s_waitcnt lgkmcnt({9-w})")
        for k in range(4): A(f"v_fmac_f32 v{ST+k}, v{F+w}, v{OR+4*w+k}")
    g.tag4(ST, [ST, ST+1, ST+2, ST+3])
    A("s_waitcnt lgkmcnt(0)")
    A("s_mov_b32 exec_lo, 0"); A("s_mov_b32 exec_hi, 0xff")
    A(f"v_mul_f32 v{ST+2}, v{F}, v{LR}")
    for k in range(1, 8): A(f"v_fmac_f32 v{ST+2}, v{F+k}, v{LR+k}")
    A(f"v_mov_b32 v{ST}, v{T+1}")
    A(f"v_mov_b32 v{ST+1}, v1")
    A(f"v_mov_b32 v{ST+3}, v1")
    A("s_mov_b32 exec_lo, -1")
    A(f"buffer_store_dwordx4 v[{ST}:{ST+3}], v{aL16}, s[48:51], s12 offen")
    A("s_mov_b64 exec, -1")
    for k in range(4): A(f"v_mov_b32 v{DB+k}, 0")
    A("s_cmp_eq_u32 s5, 0")
    A("s_cbranch_scc1 L_now2")
    ystore()
    A("s_branch L_now2")
    g.label("L_nopub")
    A(f"ds_read2_b32 v[{P}:{P+1}], v{aH} offset0:{HB//4} offset1:{HB//4+1}")
    A(f"ds_read_b32 v{P+2}, v{aH} offset:{HB+8}")
    A("s_waitcnt lgkmcnt(0)")
    g.gemv_chain(6, P, W2R, AS, DB, lambda t: 0 if t == 0 else None)
    A("s_nop 7")
    for k in range(4): A(f"v_mul_f32 v{DB+k}, v{GG+1}, v{DB+k}")
    g.label("L_now2")
    A("v_mov_b32 v7, 0")
    g.stamp(6)
    def issue1():
        A(f"buffer_load_dwordx4 v[{PL}:{PL+3}], v{aG0}, s[48:51], s15 offen sc1")
        A(f"buffer_load_dwordx4 v[{PL+4}:{PL+7}], v{aG0}, s[48:51], s14 offen offset:512 sc1")
    def check1():
        A(f"v_cmpx_eq_u32 vcc, s47, v{PL+5}")
        A(f"v_cmpx_eq_u32 vcc, s47, v{PL+7}")
        g.check4(PL, PL+8)
    g.poll("1", issue1, check1, "-1", s1[0], s1[1], 16, st=10, fallback=ystore)
    A(f"buffer_load_dword v{T+2}, v7, s[68:71], s13 offen sc1")
    A("s_nop 2")
    g.stamp(7)
    Ms, Ls = PL+4, PL+6
    m, w_, t_, u_ = PL+8, PL+9, PL+10, PL+11
    g.dpp("v_max_f32", m, Ms, "row_ror:4")
    A("s_nop 1")
    g.dpp("v_max_f32", m, m, "row_ror:8")
    g.swap_reduce("v_max_f32", m, u_, 16)
    A(f"v_sub_f32 v{w_}, v{Ms}, v{m}")
    A(f"v_mul_f32 v{w_}, {LOG2E:#x}, v{w_}")
    A(f"v_exp_f32 v{w_}, v{w_}")
    A("s_nop 0")
    A(f"v_mul_f32 v{t_}, v{w_}, v{Ls}")
    for k in range(4): A(f"v_mul_f32 v{PL+k}, v{w_}, v{PL+k}")
    for ctl in ("row_ror:4", "row_ror:8"):
        for r in (t_, PL, PL+1, PL+2, PL+3):
            g.dpp("v_add_f32", r, r, ctl)
    A(f"v_mov_b32 v{u_}, v{t_}")
    A("s_nop 0")
    A(f"v_permlane16_swap_b32 v{PL}, v{PL+2}")
    A(f"v_permlane16_swap_b32 v{PL+1}, v{PL+3}")
    A(f"v_permlane16_swap_b32 v{t_}, v{u_}")
    A(f"v_add_f32 v{PL}, v{PL}, v{PL+2}")
    A(f"v_add_f32 v{PL+1}, v{PL+1}, v{PL+3}")
    A(f"v_add_f32 v{t_}, v{t_}, v{u_}")
    A(f"v_rcp_f32 v{t_}, v{t_}")
    A("s_nop 0")
    A(f"v_mul_f32 v{PL}, v{t_}, v{PL}")
    A(f"v_mul_f32 v{PL+1}, v{t_}, v{PL+1}")
    A(f"v_cvt_pk_bf16_f32 v{PL}, v{PL}, v{PL+1}")
    A(f"ds_bpermute_b32 v{P}, v{aBP0}, v{PL}")
    A(f"ds_bpermute_b32 v{P+1}, v{aBP1}, v{PL}")
    A("s_waitcnt lgkmcnt(0)")
    g.gemv_chain(4, P, WO, AS, DA, lambda t: None)
    A("s_nop 7")
    for k in range(4): A(f"v_fmac_f32 v{DB+k}, v{GG}, v{DA+k}")
    A(f"ds_write_b128 v{aRED0}, v[{DB}:{DB+3}] offset:{RED1}")
    A("s_waitcnt lgkmcnt(0)")
    g.stamp(8)
    A("s_barrier")
    A("s_cmp_ge_u32 s4, 1")
    A("s_cbranch_scc1 L_final")
    RA = PL+8
    for w in range(8):
        A(f"ds_read_b128 v[{RA+4*w}:{RA+4*w+3}], v{aFR} offset:{RED1+1024*w}")
    A("s_mov_b32 exec_hi, 0xff")
    A("s_waitcnt lgkmcnt(6)")
    for e in range(4): A(f"v_add_f32 v{PL+e}, v{RA+e}, v{RA+4+e}")
    for w in range(2, 8):
        A(f"s_waitcnt lgkmcnt({7-w})")
        for e in range(4): A(f"v_add_f32 v{PL+e}, v{PL+e}, v{RA+4*w+e}")
    g.tag4(PL, [PL, PL+1, PL+2, PL+3])
    A(f"buffer_store_dwordx4 v[{PL}:{PL+3}], v{aFS}, s[48:51], s16 offen {ofl}")
    if probe:
        A("s_cmp_ge_u32 s2, 8"); A("s_cbranch_scc1 L_end")
        A("s_memrealtime s[76:77]"); A("s_movk_i32 s70, 256")
        A("s_lshl_b32 s12, s2, 2"); A("s_add_u32 s12, s12, 32"); A("v_mov_b32 v4, 0"); A("s_waitcnt lgkmcnt(0)"); A("v_mov_b32 v5, s76")
        A("s_mov_b64 exec, 1")
        A("buffer_store_dword v5, v4, s[68:71], s12 offen")
    if diag:
        g.stamp(9)
        g.label("L_dump")
        g.dump_stamps(13)
    A("s_endpgm")
    g.label("L_final")
    A("s_cmp_lt_u32 s4, 6")
    A("s_cbranch_scc1 L_nohelp")
    A("s_waitcnt vmcnt(0)")
    A(f"v_readfirstlane_b32 s10, v{T+2}")
    A("s_cmp_eq_u32 s10, 0")
    A("s_cbranch_scc1 L_nohelp")
    ystore()
    g.label("L_nohelp")
    if diag: A("s_mov_b32 s94, 0")
    A("s_cmp_lg_u32 s4, 4")
    A("s_cbranch_scc1 " + ("L_dump" if diag else "L_end"))
    A("s_cmp_ge_u32 s46, 5")
    A("s_cbranch_scc1 " + ("L_dump" if diag else "L_end"))
    FIN = PL + 44 if stag else PL
    def issue2():
        for k in range(4):
            A(f"buffer_load_dwordx4 v[{PL+4*k}:{PL+4*k+3}], v{aL16}, s[48:51], s17 offen offset:{1024*k} sc1")
    def check2():
        for k in range(4): g.check4(PL+4*k, PL+20)
    if pre2: A(f's_sleep {pre2}')
    if not stag: issue2()
    if stag: issue2()
    A(f"ds_read_b64 v[{PL+18}:{PL+19}], v{aGA} offset:{GB}")
    g.srd(56, 38, 2304)
    A("s_cmp_eq_u32 s46, 4")
    A("s_cselect_b64 s[10:11], 0xf, 0xff")
    A("s_waitcnt lgkmcnt(0)")
    BI = PL + 52
    A(f"v_lshlrev_b32 v{BI}, 16, v{vB2}"); A(f"v_and_b32 v{BI+1}, 0xffff0000, v{vB2}")
    A(f"v_lshlrev_b32 v{BI+2}, 16, v{vB2+1}"); A(f"v_and_b32 v{BI+3}, 0xffff0000, v{vB2+1}")
    for e in range(4): A(f"v_mul_f32 v{BI+e}, v{PL+19}, v{BI+e}")
    if not stag:
        g.poll("2", issue2, check2, "-1", s2[0], s2[1], s2[2], first_issue=False)
        g.stamp(10)
        for k in range(1, 4):
            for e in range(4): A(f"v_add_f32 v{PL+e}, v{PL+e}, v{PL+4*k+e}")
    else:
        SA, SB = PL, PL+24
        def iss(base):
            for k in range(4):
                A(f"buffer_load_dwordx4 v[{base+4*k}:{base+4*k+3}], v{aL16}, s[48:51], s17 offen offset:{1024*k} sc1")
        def chk(base, lab):
            for k in range(4): g.check4(base+4*k, PL+20)
            A("s_nop 1")
            A("s_cmp_eq_u64 exec, -1")
            A("s_mov_b64 exec, -1")
            A(f"s_cbranch_scc1 {lab}")
        g.label("L_p2")
        A(f"s_sleep {stag}")
        iss(SB)
        A("s_waitcnt vmcnt(4)")
        chk(SA, "L_p2a")
        A(f"s_sleep {stag}")
        iss(SA)
        A("s_waitcnt vmcnt(4)")
        chk(SB, "L_p2b")
        A("s_sub_u32 s75, s75, 1")
        A("s_cmp_lg_u32 s75, 0")
        A("s_cbranch_scc1 L_p2")
        g.label("L_p2b")
        for e in range(4): A(f"v_add_f32 v{SB+e}, v{SB+e}, v{SB+4+e}")
        for e in range(4): A(f"v_add_f32 v{SB+8+e}, v{SB+8+e}, v{SB+12+e}")
        for e in range(4): A(f"v_add_f32 v{FIN+e}, v{SB+e}, v{SB+8+e}")
        A("s_branch L_p2c")
        g.label("L_p2a")
        for e in range(4): A(f"v_add_f32 v{SA+e}, v{SA+e}, v{SA+4+e}")
        for e in range(4): A(f"v_add_f32 v{SA+8+e}, v{SA+8+e}, v{SA+12+e}")
        for e in range(4): A(f"v_add_f32 v{FIN+e}, v{SA+e}, v{SA+8+e}")
        g.label("L_p2c")
        g.stamp(10)
    for e in range(4): g.dpp("v_add_f32", FIN+e, FIN+e, "row_ror:8")
    for which in (16, 32):
        for e in range(4): A(f"v_mov_b32 v{FIN+4+e}, v{FIN+e}")
        for e in range(4): A(f"v_permlane{which}_swap_b32 v{FIN+e}, v{FIN+4+e}")
        for e in range(4): A(f"v_add_f32 v{FIN+e}, v{FIN+e}, v{FIN+4+e}")
    for e in range(4): A(f"v_add_f32 v{FIN+e}, v{FIN+e}, v{BI+e}")
    A(f"v_cvt_pk_bf16_f32 v{FIN}, v{FIN}, v{FIN+1}")
    A(f"v_cvt_pk_bf16_f32 v{FIN+1}, v{FIN+2}, v{FIN+3}")
    A("s_mov_b64 exec, s[10:11]")
    A(f"buffer_store_dwordx2 v[{FIN}:{FIN+1}], v{aOUT}, s[56:59], s21 offen")
    A("s_or_b32 s8, s45, s46")
    A("s_cmp_lg_u32 s8, 0")
    A("s_cbranch_scc1 L_fin2")
    A("s_mov_b64 exec, 1")
    A(f"buffer_store_dword v1, v7, s[48:51], 0 offen sc1")
    g.label("L_fin2")
    if diag:
        g.stamp(9)
        g.dump_stamps(13)
    A("s_endpgm")

    g.label("L_s0b")
    XR, WD, AS, D, GX, GW = 24, 40, 112, 120, 124, 134
    g.srd(56, 36, 1152)
    A("v_and_b32 v6, 31, v0")
    A("v_mul_u32_u24 v8, 36, v6")
    A("v_lshrrev_b32 v7, 5, v0")
    A("s_movk_i32 s8, 1152")
    A("v_mad_u32_u24 v11, v7, s8, v8")
    A(f"buffer_load_dwordx4 v[{GX}:{GX+3}], v11, s[48:51], 0 offen")
    A(f"buffer_load_dwordx4 v[{GX+4}:{GX+7}], v11, s[48:51], 0 offen offset:16")
    A(f"buffer_load_dword v{GX+8}, v11, s[48:51], 0 offen offset:32")
    A(f"buffer_load_dwordx4 v[{GW}:{GW+3}], v8, s[56:59], 0 offen")
    A(f"buffer_load_dwordx4 v[{GW+4}:{GW+7}], v8, s[56:59], 0 offen offset:16")
    A(f"buffer_load_dword v{GW+8}, v8, s[56:59], 0 offen offset:32")
    g.selectors(144)
    g.srd(60, 42, WS_BYTES)
    A("v_lshlrev_b32 v10, 13, v7")
    A("v_lshl_add_u32 v10, v6, 4, v10")
    A("s_lshl_b32 s10, s7, 14"); A("s_lshl_b32 s11, s45, 10"); A("s_add_u32 s11, s11, s10")
    A("s_lshl_b32 s8, s44, 9"); A("s_add_u32 s11, s11, s8"); A(f"s_add_u32 s11, s11, {QP}")
    A("s_lshl_b32 s8, s44, 13"); A("s_add_u32 s64, s10, s8"); A(f"s_add_u32 s64, s64, {QP}")
    A("s_add_u32 s65, s64, 4096")
    A("v_lshlrev_b32 v12, 4, v0")
    A("v_lshlrev_b32 v13, 9, v0")
    A("v_lshlrev_b32 v14, 4, v3")
    A("v_and_b32 v15, 1, v2")
    A("v_lshl_add_u32 v14, v15, 3, v14")
    A("v_lshl_add_u32 v14, v7, 8, v14")
    g.srd(68, 40, 256)
    A("s_lshl_b32 s13, s7, 2"); A("s_add_u32 s13, s13, 128")
    A("s_cmp_eq_u32 s5, 0")
    A("s_cbranch_scc1 L_placed")
    A("v_mov_b32 v4, 0"); A("v_mov_b32 v5, 1")
    A("buffer_store_dword v5, v4, s[68:71], s13 offen sc1")
    A("s_waitcnt vmcnt(0)")
    g.label("L_placed")
    if probe:
        A("s_cmp_ge_u32 s2, 8"); A("s_cbranch_scc1 L_np0")
        A("s_lshl_b32 s12, s2, 2"); A("v_mov_b32 v4, 0"); A("v_mov_b32 v5, s76")
        A("s_mov_b64 exec, 1")
        A("buffer_store_dword v5, v4, s[68:71], s12 offen")
        A("s_mov_b64 exec, -1")
        A("s_waitcnt vmcnt(0)")
        g.label("L_np0")
    A("s_waitcnt lgkmcnt(0)")
    A("s_barrier")
    A("s_load_dword s47, s[42:43], 0")
    A("s_waitcnt vmcnt(24)" if xpos == 'first' else "s_waitcnt vmcnt(6)")
    g.stamp(3)
    g.gemv_chain(18, XR, WD, AS, D, lambda t: 17 - t + 6)
    A("s_waitcnt lgkmcnt(0)")
    g.tag()
    g.tag4(AS, [D, D+1, D+2, D+3])
    def ys0():
        A("s_mov_b64 s[72:73], exec")
        A("s_mov_b64 exec, -1")
        A(f"buffer_store_dwordx4 v[{AS}:{AS+3}], v10, s[60:63], s11 offen sc1")
        A("s_mov_b64 exec, s[72:73]")
    def helpcheck(name, ys):
        A("v_mov_b32 v4, 0")
        A("buffer_load_dword v5, v4, s[68:71], s13 offen sc1")
        A("s_waitcnt vmcnt(0)")
        A("v_readfirstlane_b32 s8, v5")
        A("s_cmp_eq_u32 s8, 0")
        A(f"s_cbranch_scc1 L_nh_{name}")
        ys()
        g.label(f"L_nh_{name}")
    A(f"buffer_store_dwordx4 v[{AS}:{AS+3}], v10, s[60:63], s11 offen")
    A("s_cmp_eq_u32 s5, 0")
    A("s_cbranch_scc1 L_q_placed")
    ys0()
    A("s_waitcnt vmcnt(0)")
    g.label("L_q_placed")
    g.stamp(1)
    A("s_waitcnt vmcnt(1)")
    acc, t0, t1, t2, t3 = 144, 145, 146, 147, 148
    A(f"v_mov_b32 v{acc}, 0")
    for k in range(9):
        A(f"v_lshlrev_b32 v{t0}, 16, v{GX+k}")
        A(f"v_and_b32 v{t1}, 0xffff0000, v{GX+k}")
        A(f"v_lshlrev_b32 v{t2}, 16, v{GW+k}")
        A(f"v_and_b32 v{t3}, 0xffff0000, v{GW+k}")
        A(f"v_mul_f32 v{t0}, v{t0}, v{t2}")
        A(f"v_mul_f32 v{t1}, v{t1}, v{t3}")
        A(f"v_cvt_pk_bf16_f32 v{t0}, v{t0}, v{t1}")
        A(f"v_lshlrev_b32 v{t1}, 16, v{t0}")
        A(f"v_and_b32 v{t0}, 0xffff0000, v{t0}")
        A(f"v_add_f32 v{acc}, v{acc}, v{t1}")
        A(f"v_add_f32 v{acc}, v{acc}, v{t0}")
    for ctl in ("quad_perm:[1,0,3,2]", "quad_perm:[2,3,0,1]", "row_half_mirror", "row_mirror"):
        A("s_nop 1")
        g.dpp("v_add_f32", acc, acc, ctl)
    g.swap_reduce("v_add_f32", acc, t0, 16)
    g.bf16r(acc, acc)
    A(f"v_mul_f32 v{acc}, {LOG2E^0x80000000:#x}, v{acc}")
    A(f"v_exp_f32 v{acc}, v{acc}")
    A("s_nop 0")
    A(f"v_add_f32 v{acc}, 1.0, v{acc}")
    A(f"v_rcp_f32 v{acc}, v{acc}")
    A("s_nop 0")
    g.bf16r(acc, acc)
    A(f"v_sub_f32 v{acc+1}, 1.0, v{acc}")
    g.bf16r(acc+1, acc+1)
    A("v_lshlrev_b32 v7, 3, v7")
    A("s_mov_b32 exec_lo, 1"); A("s_mov_b32 exec_hi, 1")
    A(f"ds_write_b64 v7, v[{acc}:{acc+1}] offset:{GB}")
    if prepoll:
        A("s_mov_b64 s[14:15], 0xffff")
        A("s_mov_b64 exec, s[14:15]")
        g.poll("pq", lambda: A(f"buffer_load_dwordx4 v[{WD}:{WD+3}], v13, s[60:63], s64 offen offset:496 sc1"), lambda: g.check4(WD, t0), "s[14:15]", 4, 0, 64, fallback=ys0, fbmask=15)
    A("s_mov_b64 exec, -1")
    g.stamp(4)
    def issueq():
        for rb in range(8):
            A(f"buffer_load_dwordx4 v[{WD+4*rb}:{WD+4*rb+3}], v12, s[60:63], s{64+rb//4} offen offset:{1024*(rb%4)} sc1")
    def checkq():
        for rb in range(8): g.check4(WD+4*rb, t0)
    g.poll("q", issueq, checkq, "-1", 4, 0, 64, fallback=ys0, fbmask=15)
    g.stamp(2)
    for rb in range(1, 8):
        for e in range(4): A(f"v_add_f32 v{WD+e}, v{WD+e}, v{WD+4*rb+e}")
    A(f"v_cvt_pk_bf16_f32 v{WD}, v{WD}, v{WD+1}")
    A(f"v_cvt_pk_bf16_f32 v{WD+1}, v{WD+2}, v{WD+3}")
    A(f"ds_write_b64 v14, v[{WD}:{WD+1}] offset:{QB}")
    A("v_mov_b32 v5, 1")
    A("v_mov_b32 v4, 0")
    A("s_waitcnt lgkmcnt(0)")
    A(f"ds_write_b32 v4, v5 offset:{QFLAG}")
    helpcheck("q", ys0)
    A("s_waitcnt lgkmcnt(0)")
    g.dump_stamps(5)
    A("s_endpgm")
    g.label("L_s1b")
    WD, AS, D, B1 = W1, 140, 148, 152
    NT = 0
    g.srd(56, 30, 9216)
    g.srd(60, 42, WS_BYTES)
    g.srd(68, 40, 256)
    A("s_load_dword s47, s[42:43], 0")
    A("v_and_b32 v6, 31, v0")
    A("v_lshrrev_b32 v7, 5, v0")
    A("v_lshlrev_b32 v10, 4, v0")
    A("s_mul_i32 s13, s46, 18")
    A("v_add_u32 v8, s13, v6")
    A("v_lshlrev_b32 v8, 4, v8")
    A("v_cmp_lt_u32 vcc, 8, v6")
    A("v_add_u32 v12, 0xf7, v6")
    A("v_lshlrev_b32 v13, 10, v0")
    A("v_cndmask_b32 v12, v6, v12, vcc")
    A("v_lshlrev_b32 v12, 4, v12")
    A("v_lshl_add_u32 v12, v7, 9, v12")
    A("s_movk_i32 s12, 288")
    A("v_mul_u32_u24 v14, s12, v7")
    A("v_lshl_add_u32 v14, v6, 4, v14")
    A("s_lshl_b32 s64, s7, 14"); A(f"s_add_u32 s64, s64, {HP}")
    A("s_and_b32 s12, s6, 15"); A("s_lshl_b32 s12, s12, 10"); A("s_add_u32 s65, s64, s12")
    A("s_lshl_b32 s12, s44, 13"); A("s_add_u32 s64, s64, s12")
    A("s_lshl_b32 s13, s7, 2"); A("s_add_u32 s13, s13, 128")
    g.selectors(156)
    A("s_barrier")
    A(f"s_waitcnt vmcnt({24+NT})" if xpos == 'first' else "s_waitcnt vmcnt(0)")
    def s1_after(t):
        if t < 12:
            A("s_mov_b64 exec, s[14:15]")
            A(f"buffer_load_dwordx4 v[{W1+4*t}:{W1+4*t+3}], v5, s[52:55], s11 offen nt")
            A("s_add_u32 s11, s11, 9216")
            A("s_mov_b64 exec, -1")
    g.gemv_chain(36, X1, [W1 + 4*(t % 24) for t in range(36)], AS, D, lambda t: (24 + min(t, 12) - t - 1 + (NT if t < 24 else 0)), s1_after)
    A("s_waitcnt lgkmcnt(0)")
    g.tag()
    g.tag4(AS, [D, D+1, D+2, D+3])
    def ys1():
        A("s_mov_b64 s[72:73], exec")
        A("s_mov_b64 exec, -1")
        A(f"buffer_store_dwordx4 v[{AS}:{AS+3}], v10, s[60:63], s65 offen sc1")
        A("s_mov_b64 exec, s[72:73]")
    A(f"buffer_store_dwordx4 v[{AS}:{AS+3}], v10, s[60:63], s65 offen")
    A("s_cmp_eq_u32 s5, 0")
    A("s_cbranch_scc1 L_h_placed")
    ys1()
    g.label("L_h_placed")
    g.stamp(1)
    A("s_mov_b32 s14, 0x0003ffff"); A("s_mov_b32 s15, 0x0003ffff")
    A("s_mov_b64 exec, s[14:15]")
    A(f"buffer_load_dwordx4 v[{B1}:{B1+3}], v8, s[56:59], 0 offen")
    if prepoll:
        A("s_mov_b64 s[10:11], 0xff")
        A("s_mov_b64 exec, s[10:11]")
        g.poll("ph", lambda: A(f"buffer_load_dwordx4 v[{WD}:{WD+3}], v13, s[60:63], s64 offen offset:896 sc1"), lambda: g.check4(WD, 156), "s[10:11]", 8, 0, 64, fallback=ys1, fbmask=15)
        A("s_mov_b64 exec, s[14:15]")
    g.stamp(3)
    def issueh():
        for rb in range(4):
            for k in range(2):
                d = WD + 8*rb + 4*k
                A(f"buffer_load_dwordx4 v[{d}:{d+3}], v12, s[60:63], s64 offen offset:{1024*rb+256*k} sc1")
    def checkh():
        for k in range(8): g.check4(WD+4*k, 156)
    g.poll("h", issueh, checkh, "s[14:15]", 4, 0, 64, fallback=ys1, fbmask=15)
    g.stamp(2)
    for rb in range(1, 4):
        for e in range(8): A(f"v_add_f32 v{WD+e}, v{WD+e}, v{WD+8*rb+e}")
    for d in range(4):
        a, b = WD + 2*d, WD + 2*d + 1
        t0, t1 = 160, 161
        A(f"v_cvt_pk_bf16_f32 v{a}, v{a}, v{b}")
        A(f"v_lshlrev_b32 v{t0}, 16, v{B1+d}")
        A(f"v_and_b32 v{t1}, 0xffff0000, v{B1+d}")
        A(f"v_and_b32 v{b}, 0xffff0000, v{a}")
        A(f"v_lshlrev_b32 v{a}, 16, v{a}")
        A(f"v_add_f32 v{a}, v{a}, v{t0}")
        A(f"v_add_f32 v{b}, v{b}, v{t1}")
        A(f"v_cvt_pk_bf16_f32 v{a}, v{a}, v{b}")
        A(f"v_and_b32 v{b}, 0xffff0000, v{a}")
        A(f"v_lshlrev_b32 v{a}, 16, v{a}")
        A(f"v_max_f32 v{a}, 0, v{a}")
        A(f"v_max_f32 v{b}, 0, v{b}")
        A(f"v_mul_f32 v{a}, v{a}, v{a}")
        A(f"v_mul_f32 v{b}, v{b}, v{b}")
        A(f"v_cvt_pk_bf16_f32 v{156+d}, v{a}, v{b}")
    A(f"ds_write_b128 v14, v[156:159] offset:{HB}")
    A("s_mov_b64 exec, -1")
    helpcheck("h", ys1)
    A("s_waitcnt lgkmcnt(0)")
    g.dump_stamps(4)
    g.label("L_end")
    A("s_endpgm")
    body = "\n".join(g.L)
    s = HEADER
    s += f"; @launch grid=(256,1,1) block=(640,1,1) lds={LDS_BYTES}\n"
    s += f""".amdgcn_target "amdgcn-amd-amdhsa--gfx950"
.text
.globl {KNAME}
.p2align 8
.type {KNAME},@function
{KNAME}:
{body}
.section .rodata,"a"
.p2align 6
.amdhsa_kernel {KNAME}
  .amdhsa_next_free_vgpr 168
  .amdhsa_next_free_sgpr 102
  .amdhsa_accum_offset 168
  .amdhsa_group_segment_fixed_size 0
  .amdhsa_kernarg_size 112
  .amdhsa_user_sgpr_count 2
  .amdhsa_user_sgpr_kernarg_segment_ptr 1
  .amdhsa_system_sgpr_workgroup_id_x 1
  .amdhsa_float_denorm_mode_32 3
.end_amdhsa_kernel
"""
    return s

if __name__ == "__main__":
    B = dict(tlb=False, mask='h', tailprio=True, stag=1)
    open("k15.s", "w").write(build(False, **B))
    open("k15d.s", "w").write(build(True, **B))
```

```python
import sys
from gen_common import KNAME, HEADER

QP   = 0x1000
HP   = 0x80000
OPT  = 0x100000
OREC = 640
OP   = 0x200000
WS_BYTES = 0x400000
QB, HB, GB, MW, LW, QFLAG, RED0, KB = 0, 512, 1088, 1152, 1216, 1280, 2048, 10240
RED1 = KB
XB, GWB = RED0, RED0 + 3072
LDS_BYTES = KB + 131072
LOG2E = 0x3fb8aa3b
SCALE = 0x3db504f3
SEL = 16
SI = 24
SC = 28

class G:
    def __init__(s, diag=False, spin=100000):
        s.L = []; s.diag = diag; s.spin = spin
    def __call__(s, x): s.L.append("    " + x)
    def label(s, x): s.L.append(x + ":")
    def srd(s, d, lo, nbytes):
        s(f"s_mov_b64 s[{d}:{d+1}], s[{lo}:{lo+1}]")
        s(f"s_mov_b32 s{d+2}, {nbytes}"); s(f"s_mov_b32 s{d+3}, 0x20000")
    def stamp(s, k):
        if s.diag:
            s(f"s_memrealtime s[{76+2*k}:{77+2*k}]")
            s("s_waitcnt lgkmcnt(0)")
    def dump_stamps(s, n):
        if not s.diag: return
        s.srd(68, 40, 0x50000)
        s("s_lshl_b32 s72, s2, 10")
        s("s_lshl_b32 s73, s3, 6"); s("s_add_u32 s72, s72, s73"); s("s_add_u32 s72, s72, 4096")
        s("s_mov_b64 exec, 1")
        s("v_mov_b32 v4, 0")
        for k in range(n):
            s(f"v_mov_b32 v5, s{76+2*k}")
            s(f"buffer_store_dword v5, v4, s[68:71], s72 offen offset:{4*k}")
            s("s_nop 1")
    def tag(s):
        s("s_mul_i32 s47, s47, 0x9E3779B1")
        s("s_add_u32 s47, s47, 0x7F4A7C15")
        for k in range(4): s(f"s_mov_b32 s{SI+k}, {0x07060500+k:#x}")
        s(f"s_mov_b32 s{SC}, 0x0c0c0400"); s(f"s_mov_b32 s{SC+1}, 0x0c040100"); s(f"s_mov_b32 s{SC+2}, 0x04020100")
        s("v_mov_b32 v1, s47")
    def tag4(s, dst, src):
        for k in range(4): s(f"v_perm_b32 v{dst+k}, v{src[k]}, v1, s{SI+k}")
    def check4(s, d, t):
        s(f"v_perm_b32 v{t}, v{d+1}, v{d}, s{SC}")
        s(f"v_perm_b32 v{t}, v{d+2}, v{t}, s{SC+1}")
        s(f"v_perm_b32 v{t}, v{d+3}, v{t}, s{SC+2}")
        s(f"v_cmpx_eq_u32 vcc, s47, v{t}")
    def selectors(s, t0):
        a, b, c, d, e = t0, t0+1, t0+2, t0+3, t0+4
        s(f"v_and_b32 v{a}, 1, v0")
        s(f"v_lshlrev_b32 v{a}, 4, v{a}")
        s(f"v_bfe_u32 v{b}, v0, 1, 2")
        s(f"v_mov_b32 v{c}, 0x0d0c")
        s(f"v_mov_b32 v{d}, 0x0f0e")
        s(f"v_mov_b32 v{e}, 0x0c0c0c0c")
        s(f"v_lshlrev_b32 v{c}, v{a}, v{c}")
        s(f"v_lshlrev_b32 v{d}, v{a}, v{d}")
        s(f"v_xor_b32 v{c}, v{c}, v{e}")
        s(f"v_xor_b32 v{d}, v{d}, v{e}")
        for k in range(4):
            s(f"v_cmp_eq_u32 vcc, {k}, v{b}")
            s("s_nop 1")
            s(f"v_cndmask_b32 v{SEL+k}, v{e}, v{c}, vcc")
            s(f"v_cndmask_b32 v{SEL+4+k}, v{e}, v{d}, vcc")
    def perm4(s, dst, src, par):
        for k in range(4):
            s(f"v_perm_b32 v{dst+k}, v{src}, v{src}, v{SEL+4*par+k}")
    def gemv_chain(s, n, xreg, data, aset, acc, waitfn, after=None):
        dreg = (lambda t: data[t]) if isinstance(data, list) else (lambda t: data + 4*t)
        s.perm4(aset, xreg, 0)
        for t in range(n):
            cur = aset + 4*(t & 1); nxt = aset + 4*((t+1) & 1)
            if t+1 < n: s.perm4(nxt, xreg + ((t+1) >> 1), (t+1) & 1)
            else: s("s_nop 1")
            w = waitfn(t)
            if w is not None: s(f"s_waitcnt vmcnt({w})")
            c = "0" if t == 0 else f"v[{acc}:{acc+3}]"
            s(f"v_mfma_f32_16x16x32_bf16 v[{acc}:{acc+3}], v[{cur}:{cur+3}], v[{dreg(t)}:{dreg(t)+3}], {c}")
            if after: after(t)
    def bf16r(s, dst, src):
        s(f"v_cvt_pk_bf16_f32 v{dst}, v{src}, v{src}")
        s(f"v_and_b32 v{dst}, 0xffff0000, v{dst}")
    def swap_reduce(s, op, r, t, which):
        s(f"v_mov_b32 v{t}, v{r}")
        s("s_nop 1")
        s(f"v_permlane{which}_swap_b32 v{r}, v{t}")
        s("s_nop 1")
        s(f"{op} v{r}, v{r}, v{t}")
    def dpp(s, op, dst, src, ctl):
        s(f"{op}_dpp v{dst}, v{src}, v{src} {ctl} row_mask:0xf bank_mask:0xf")
    def poll(s, name, issue, check, full, sleep_few=2, sleep_many=8, many=16, first_issue=True, masked=True, st=None, fallback=None, fbmask=31):
        if fallback: s(f"s_or_b32 s75, s75, {fbmask}")
        if first_issue: issue()
        if st is not None and s.diag:
            s("s_waitcnt vmcnt(0)")
            s.stamp(st)
            s(f"s_mov_b32 s{76+2*(st+1)}, s75")
        s.label(f"L_poll_{name}")
        s("s_waitcnt vmcnt(0)")
        s(f"s_mov_b64 exec, {full}")
        check()
        s("s_nop 1")
        s(f"s_andn2_b64 exec, {full}, exec")
        s(f"s_cbranch_scc0 L_ok_{name}")
        s("s_bcnt1_i32_b64 s74, exec")
        if not masked: s(f"s_mov_b64 exec, {full}")
        s(f"s_sleep {sleep_few}")
        if sleep_many:
            s(f"s_cmp_lt_u32 s74, {many}")
            s(f"s_cbranch_scc1 L_ns_{name}")
            s(f"s_sleep {sleep_many}")
            s.label(f"L_ns_{name}")
        issue()
        if fallback:
            s(f"s_and_b32 s74, s75, {fbmask}")
            s(f"s_cbranch_scc1 L_nf_{name}")
            fallback()
            s.label(f"L_nf_{name}")
        s("s_sub_u32 s75, s75, 1")
        s("s_cmp_lg_u32 s75, 0")
        s(f"s_cbranch_scc1 L_poll_{name}")
        s("s_waitcnt vmcnt(0)")
        s.label(f"L_ok_{name}")
        s(f"s_mov_b64 exec, {full}")
        if st is not None and s.diag:
            s(f"s_sub_u32 s{76+2*(st+1)}, s{76+2*(st+1)}, s75")
            s(f"s_mul_i32 s{76+2*(st+1)}, s{76+2*(st+1)}, 100")
            s(f"s_add_u32 s{76+2*(st+1)}, s{76+2*(st+1)}, s76")

def build(diag=False, W=4, NQ=10, mask='bh', prepoll=False, s1=(1, 4), nsmall0=2, qfl='sc1', ofl='sc1', prio=2, inter=True, smallpos='pre', stag=False, tlb=True, tlbfl='', probe=False, xpos='first', tailprio=False, s2=(1, 4, 24), pre2=0, W2=None, W2at=4, WK=None, psched=None, cw=0, pq='sc1 nt', p1='sc1 nt', p2='sc1', ph='sc1', xs='', xlds=True, b2one=True, optouch=''):
    g = G(diag); A = g
    A("s_cmp_ge_u32 s2, 256")
    A("s_cbranch_scc1 L_end")
    A("s_load_dwordx16 s[16:31], s[0:1], 0")
    A("s_load_dwordx8 s[32:39], s[0:1], 64")
    A("s_load_dwordx4 s[40:43], s[0:1], 96")
    if diag or probe: A("s_memrealtime s[76:77]")
    A("v_lshrrev_b32 v1, 6, v0")
    A("v_and_b32 v0, 63, v0")
    A("v_readfirstlane_b32 s3, v1")
    A("s_and_b32 s5, s2, 7")
    A("s_lshr_b32 s6, s2, 3")
    A("s_lshr_b32 s7, s6, 4")
    A("s_lshl_b32 s8, s5, 1")
    A("s_add_u32 s7, s7, s8")
    A("s_getreg_b32 s8, hwreg(HW_REG_XCC_ID, 0, 4)")
    A("s_xor_b32 s5, s5, s8")
    A("s_bfe_u32 s44, s6, 0x10003")
    A("s_and_b32 s45, s6, 7")
    A("s_lshl_b32 s46, s7, 1")
    A("s_add_u32 s46, s46, s44")
    A("v_lshrrev_b32 v2, 4, v0")
    A("v_and_b32 v3, 15, v0")
    A(f"s_mov_b32 s75, {g.spin}")
    A("v_bfe_u32 v9, v0, 3, 1")
    A("s_cmp_gt_u32 s3, 1")
    A("s_cbranch_scc1 L_bulk")
    A("s_setprio 3")
    A("s_movk_i32 s8, 1152")
    A("v_mul_u32_u24 v4, s8, v9")
    A("v_lshlrev_b32 v5, 4, v3")
    A("s_mov_b32 s50, 2304"); A("s_mov_b32 s51, 0x20000"); A("s_mov_b32 s55, 0x20000")
    A("s_cmp_eq_u32 s3, 1")
    A("s_cbranch_scc1 L_s1a")
    XR, WD = 24, 40
    A("v_mad_u32_u24 v4, v2, 36, v4")
    A("s_mul_i32 s9, s45, 144")
    A(f"s_mov_b32 s8, {18*8192}")
    A("v_mad_u32_u24 v5, v2, s8, v5")
    A(f"s_mul_i32 s10, s45, {72*8192}")
    A("s_lshl_b32 s11, s46, 8")
    A("s_add_u32 s10, s10, s11")
    A(f"s_mov_b32 s54, {576*8192}")
    A("s_waitcnt lgkmcnt(0)")
    A("s_mov_b64 s[48:49], s[16:17]")
    A("s_mov_b64 s[52:53], s[22:23]")
    def s0x():
        A(f"buffer_load_dwordx4 v[{XR}:{XR+3}], v4, s[48:51], s9 offen {xs}")
        A(f"buffer_load_dwordx4 v[{XR+4}:{XR+7}], v4, s[48:51], s9 offen offset:16 {xs}")
        A(f"buffer_load_dword v{XR+8}, v4, s[48:51], s9 offen offset:32 {xs}")
    if xlds:
        A("s_mov_b64 s[56:57], s[36:37]"); A("s_movk_i32 s58, 1152"); A("s_mov_b32 s59, 0x20000")
        A(f"s_movk_i32 m0, {XB}")
        A("v_lshlrev_b32 v6, 4, v0")
        for k in range(3): A(f"buffer_load_dwordx4 v6, s[48:51], 0 offen offset:{1024*k} lds")
        A(f"s_movk_i32 m0, {GWB}")
        A("s_nop 0")
        for k in range(2): A(f"buffer_load_dwordx4 v6, s[56:59], 0 offen offset:{1024*k} lds")
    elif xpos == 'first': s0x()
    for t in range(18):
        A(f"buffer_load_dwordx4 v[{WD+4*t}:{WD+4*t+3}], v5, s[52:55], s10 offen nt")
        if t < 17: A("s_add_u32 s10, s10, 8192")
    if xpos == 'last': s0x()
    A("v_mov_b32 v6, 0")
    A(f"ds_write_b32 v6, v6 offset:{QFLAG}")
    A("s_branch L_s0b")
    g.label("L_s1a")
    X1, W1 = 24, 44
    A("s_and_b32 s8, s45, 3")
    A("s_lshr_b32 s9, s6, 2")
    A("s_and_b32 s9, s9, 3")
    A("s_movk_i32 s10, 72")
    A("v_mad_u32_u24 v4, v2, s10, v4")
    A("s_mul_i32 s10, s8, 288")
    A(f"s_mov_b32 s11, {36*9216}")
    A("v_mad_u32_u24 v5, v2, s11, v5")
    A(f"s_mul_i32 s11, s8, {144*9216}")
    A("s_mul_i32 s12, s7, 576"); A("s_add_u32 s11, s11, s12")
    A("s_mul_i32 s12, s9, 144"); A("s_add_u32 s11, s11, s12")
    A(f"s_mov_b32 s54, {576*9216}")
    A("s_mov_b32 s14, 0x01ff01ff"); A("s_mov_b32 s15, 0x01ff01ff")
    A("s_waitcnt lgkmcnt(0)")
    A("s_mov_b64 s[48:49], s[16:17]")
    A("s_mov_b64 s[52:53], s[28:29]")
    if tlb:
        A("s_cmp_lg_u32 s45, 0")
        A("s_cbranch_scc1 L_notouch")
        A("s_lshl_b32 s12, s44, 4"); A("s_add_u32 s12, s12, s7"); A("s_lshl_b32 s12, s12, 23"); A("s_add_u32 s12, s12, 0x700000")
        A(f"s_mul_i32 s13, s46, {128*1152}")
        A(f"s_mul_i32 s72, s46, {144*1152}")
        A("s_lshl_b32 s73, s46, 5")
        A("s_mov_b64 exec, 1")
        A("v_mov_b32 v160, s12"); A("v_mov_b32 v161, s13"); A("v_mov_b32 v162, s72"); A("v_mov_b32 v163, s73"); A(f"v_mov_b32 v164, {OP}"); A("v_mov_b32 v166, 0")
        for (off, base) in ((160, 20), (161, 24), (162, 32), (164, 42), (163, 38), (166, 40), (163, 30), (163, 34)):
            A(f"global_load_dword v165, v{off}, s[{base}:{base+1}]{tlbfl}")
        A("s_mov_b64 exec, -1")
        g.label("L_notouch")
    def s1x():
        for k in range(4):
            A(f"buffer_load_dwordx4 v[{X1+4*k}:{X1+4*k+3}], v4, s[48:51], s10 offen offset:{16*k} {xs}")
        A(f"buffer_load_dwordx2 v[{X1+16}:{X1+17}], v4, s[48:51], s10 offen offset:64 {xs}")
    if xpos == 'first' and not xlds: s1x()
    A("s_mov_b64 exec, s[14:15]")
    for t in range(24):
        A(f"buffer_load_dwordx4 v[{W1+4*t}:{W1+4*t+3}], v5, s[52:55], s11 offen nt")
        A("s_add_u32 s11, s11, 9216")
    A("s_mov_b64 exec, -1")
    if xpos == 'last': s1x()
    A("s_branch L_s1b")

    g.label("L_bulk")
    VD, QF, KF, S, P, AS, OA, DA, DB, T = 24, 88, 104, 120, 136, 144, 152, 80, 76, 164
    WO, PL = 88, 24
    W2R = [104, 108, 112, 116, 156, 160]
    aRED0, aPUBR, aL16, aG0, aGA, aGD, aH, aFR, aFS, aBP0, aBP1, aOUT, vB2 = (S+k for k in range(13))
    GG = S + 14
    A("s_sub_u32 s4, s3, 2")
    if psched: A("s_setprio 2")
    if prio == 1: A("s_setprio 1")
    if prio == 2:
        A("s_setprio 1")
        A("s_cmp_lt_u32 s4, 4")
        A("s_cbranch_scc1 L_prio")
        A("s_setprio 2")
        g.label("L_prio")
    A("s_lshl_b32 s11, s44, 4")
    A("s_add_u32 s11, s11, s7")
    A("s_lshl_b32 s8, s11, 23")
    A("s_lshl_b32 s9, s45, 17")
    A("s_add_u32 s8, s8, s9")
    A("s_add_u32 s8, s8, 0x700000")
    if mask == 'h':
        A("s_mul_i32 s11, s2, 0x9E3779B1"); A("s_lshr_b32 s11, s11, 27")
    for j in range(4):
        A(f"s_add_u32 s9, s4, {8*j}")
        A("s_xor_b32 s9, s9, s11")
        A(f"s_lshl_b32 s{64+j}, s9, 12")
    A("v_xor_b32 v4, v3, v2")
    A("v_lshlrev_b32 v4, 4, v4")
    A("v_lshl_add_u32 v4, v2, 8, v4")
    A("v_xor_b32 v5, 64, v4")
    A("v_xor_b32 v6, 0x80, v4")
    A("v_xor_b32 v7, 0xc0, v4")
    A("v_lshlrev_b32 v8, 4, v3")
    A("v_lshl_add_u32 v8, v2, 10, v8")
    A("s_lshl_b32 s10, s4, 14")
    A(f"s_add_u32 s10, s10, {KB}")
    A("s_mov_b32 s50, 0x20000"); A("s_mov_b32 s51, 0x20000"); A("s_mov_b32 s54, 0x20000"); A("s_mov_b32 s55, 0x20000")
    A("s_mov_b32 m0, s10")
    A("s_waitcnt lgkmcnt(0)")
    A("s_add_u32 s48, s18, s8"); A("s_addc_u32 s49, s19, 0")
    A("s_add_u32 s52, s20, s8"); A("s_addc_u32 s53, s21, 0")
    def setup_mid():
        A("s_load_dword s47, s[42:43], 0")
        g.selectors(S)
        A("v_xor_b32 v12, v3, v2")
        A("v_lshlrev_b32 v12, 4, v12")
        A("v_lshl_add_u32 v12, v3, 8, v12")
        A("v_add_u32 v12, s10, v12")
        A("v_xor_b32 v13, 64, v12")
        A("v_xor_b32 v14, 0x80, v12")
        A("v_xor_b32 v15, 0xc0, v12")
        A("v_lshlrev_b32 v10, 8, v9")
        A("v_lshl_add_u32 v10, v2, 4, v10")
        A("v_lshlrev_b32 v11, 5, v9")
        g.srd(56, 24, 4096*1152)
        A("s_mov_b64 s[60:61], s[32:33]")
        A("s_cmp_lt_u32 s4, 6")
        A(f"s_cselect_b32 s62, {4608*1152}, 0")
        A("s_mov_b32 s63, 0x20000")
        A("s_barrier")
    def vload(idx):
        j, r = idx // 4, idx % 4
        d = VD + 16*j + 4*r
        A(f"buffer_load_dwordx4 v[{d}:{d+3}], v8, s[52:55], s{64+j} offen offset:{256*r} nt")
    def qk_tile(j):
        for jj in range(4):
            A(f"ds_read_b128 v[{KF+4*jj}:{KF+4*jj+3}], v{12+jj} offset:{4096*j}")
        for jj in range(4):
            A(f"s_waitcnt lgkmcnt({3-jj})")
            c = "0" if jj == 0 else f"v[{S+4*j}:{S+4*j+3}]"
            A(f"v_mfma_f32_16x16x32_bf16 v[{S+4*j}:{S+4*j+3}], v[{KF+4*jj}:{KF+4*jj+3}], v[{QF+4*jj}:{QF+4*jj+3}], {c}")
    def c_q01():
        A("s_waitcnt lgkmcnt(0)")
        g.tag()
        g.stamp(1)
        A("v_mov_b32 v4, 0")
        g.label("L_qspin")
        A(f"ds_read_b32 v5, v4 offset:{QFLAG}")
        for jj in range(4):
            A(f"ds_read_b128 v[{QF+4*jj}:{QF+4*jj+3}], v10 offset:{QB+64*jj}")
        A("s_waitcnt lgkmcnt(4)")
        A("v_readfirstlane_b32 s72, v5")
        A("s_cmp_eq_u32 s72, 1")
        A("s_cbranch_scc1 L_qok")
        A("s_sleep 2")
        A("s_sub_u32 s75, s75, 1")
        A("s_cmp_lg_u32 s75, 0")
        A("s_cbranch_scc1 L_qspin")
        g.label("L_qok")
        g.stamp(2)
        qk_tile(0); qk_tile(1)
    def c_q23():
        qk_tile(2); qk_tile(3)
        A("s_nop 3")
    def c_round():
        for j in range(4):
            for h in range(2):
                a = S + 4*j + 2*h
                A(f"v_cvt_pk_bf16_f32 v{T}, v{a}, v{a+1}")
                A(f"v_lshlrev_b32 v{a}, 16, v{T}")
                A(f"v_and_b32 v{a+1}, 0xffff0000, v{T}")
                A(f"v_mul_f32 v{a}, {SCALE:#x}, v{a}")
                A(f"v_mul_f32 v{a+1}, {SCALE:#x}, v{a+1}")
                A(f"v_cvt_pk_bf16_f32 v{T}, v{a}, v{a+1}")
                A(f"v_lshlrev_b32 v{a}, 16, v{T}")
                A(f"v_and_b32 v{a+1}, 0xffff0000, v{T}")
    def c_soft():
        A(f"v_max3_f32 v{T}, v{S}, v{S+1}, v{S+2}")
        for k in range(3, 15, 2):
            A(f"v_max3_f32 v{T}, v{T}, v{S+k}, v{S+k+1}")
        A(f"v_max_f32 v{T}, v{T}, v{S+15}")
        g.swap_reduce("v_max_f32", T, T+1, 16)
        g.swap_reduce("v_max_f32", T, T+1, 32)
        A("s_lshl_b32 s11, s4, 2")
        A(f"v_add_u32 v{T+3}, s11, v11")
        A(f"s_mov_b32 s72, {LOG2E:#x}")
        A(f"v_mul_f32 v{T+1}, {LOG2E^0x80000000:#x}, v{T}")
        for k in range(16):
            A(f"v_fma_f32 v{S+k}, v{S+k}, s72, v{T+1}")
        for k in range(16):
            A(f"v_exp_f32 v{S+k}, v{S+k}")
        A("s_nop 0")
        for k in range(8):
            A(f"v_cvt_pk_bf16_f32 v{P+k}, v{S+2*k}, v{S+2*k+1}")
        A(f"v_add_f32 v{T+2}, v{S}, v{S+1}")
        for k in range(2, 16):
            A(f"v_add_f32 v{T+2}, v{T+2}, v{S+k}")
        g.swap_reduce("v_add_f32", T+2, T+1, 16)
        g.swap_reduce("v_add_f32", T+2, T+1, 32)
        A("s_mov_b64 exec, 0x101")
        A(f"ds_write_b32 v{T+3}, v{T} offset:{MW}")
        A(f"ds_write_b32 v{T+3}, v{T+2} offset:{LW}")
        A("s_mov_b64 exec, -1")
        g.stamp(3)
    def c_addr():
        g.srd(48, 42, WS_BYTES)
        A("s_lshl_b32 s72, s4, 10")
        A(f"v_lshlrev_b32 v{aL16}, 4, v0")
        A(f"v_add_u32 v{aRED0}, s72, v{aL16}")
        A("s_and_b32 s72, s4, 1")
        A("s_lshl_b32 s73, s72, 9")
        A(f"v_and_b32 v{aPUBR}, 1, v0")
        A(f"v_lshlrev_b32 v{aPUBR}, 8, v{aPUBR}")
        A(f"v_bfe_u32 v4, v0, 1, 4")
        A(f"v_lshl_add_u32 v{aPUBR}, v4, 4, v{aPUBR}")
        A(f"v_add_u32 v{aPUBR}, s73, v{aPUBR}")
        A("s_lshl_b32 s12, s7, 1"); A("s_add_u32 s12, s12, s72"); A("s_lshl_b32 s12, s12, 1"); A("s_add_u32 s12, s12, s44")
        A("s_lshl_b32 s12, s12, 3"); A("s_add_u32 s12, s12, s45"); A(f"s_mul_i32 s12, s12, {OREC}"); A(f"s_add_u32 s12, s12, {OPT}")
        A("s_lshl_b32 s13, s72, 5")
        A("v_mov_b32 v7, s13")
        A(f"s_movk_i32 s72, {OREC}")
        A(f"v_and_b32 v4, 3, v0")
        A(f"v_lshlrev_b32 v4, 4, v4")
        A(f"v_lshrrev_b32 v5, 2, v0")
        A(f"v_mad_u32_u24 v{aG0}, v5, s72, v4")
        A(f"s_mul_i32 s14, s46, {16*OREC}")
        A(f"s_add_u32 s14, s14, {OPT}")
        A("s_lshl_b32 s15, s4, 6")
        A("s_add_u32 s15, s15, s14")
        A(f"v_lshlrev_b32 v{aBP0}, 7, v9")
        A(f"v_lshl_add_u32 v{aBP0}, v2, 2, v{aBP0}")
        A(f"v_add_u32 v{aBP1}, 64, v{aBP0}")
        A("s_mul_i32 s72, s4, 48")
        A(f"v_mul_u32_u24 v{aH}, 12, v2")
        A("s_movk_i32 s73, 288")
        A(f"v_mad_u32_u24 v{aH}, v9, s73, v{aH}")
        A(f"v_add_u32 v{aH}, s72, v{aH}")
        A(f"v_lshrrev_b32 v5, 3, v0")
        A(f"v_lshlrev_b32 v{aFS}, 12, v5")
        A(f"v_and_b32 v6, 7, v0")
        A(f"v_lshl_add_u32 v{aFS}, v6, 4, v{aFS}")
        A("v_cmp_lt_u32 vcc, 17, v0")
        A("v_add_u32 v5, 46, v0")
        A("s_nop 0")
        A("v_cndmask_b32 v4, v0, v5, vcc")
        A("v_lshrrev_b32 v5, 1, v4")
        A(f"v_lshlrev_b32 v{aFR}, 4, v5")
        A("v_and_b32 v5, 1, v4")
        A(f"v_lshl_add_u32 v{aFR}, v5, 8, v{aFR}")
        A(f"v_and_b32 v{aFR}, 0x3ff, v{aFR}")
        A(f"s_mul_i32 s16, s45, {5*4096}")
        A("s_lshl_b32 s73, s46, 7"); A("s_add_u32 s16, s16, s73"); A(f"s_add_u32 s16, s16, {OP}")
        g.srd(68, 34, 1152)
        if b2one:
            A("s_cmp_eq_u32 s4, 4"); A("s_cselect_b32 s70, s70, 0")
            A("s_cmp_lt_u32 s46, 5"); A("s_cselect_b32 s70, s70, 0")
        A("s_lshl_b32 s72, s46, 6")
        A("v_lshl_add_u32 v5, v6, 3, s72")
        A("v_cmp_lt_u32 vcc, 0x8f, v5")
        A("v_subrev_u32 v6, 0x90, v5")
        A("v_mov_b32 v4, 0")
        A("v_cndmask_b32 v5, v5, v6, vcc")
        A("v_mov_b32 v6, 8")
        A(f"v_cndmask_b32 v{aGA}, v4, v6, vcc")
        A("s_mul_i32 s21, s45, 144")
        A(f"buffer_load_dwordx2 v[{vB2}:{vB2+1}], v5, s[68:71], s21 offen {xs}")
        A(f"v_mul_u32_u24 v6, 0x90, v{aGA}")
        A(f"v_add_u32 v{aOUT}, v5, v6")
        A("s_mul_i32 s17, s45, 5"); A("s_add_u32 s17, s17, s46"); A("s_lshl_b32 s17, s17, 12"); A(f"s_add_u32 s17, s17, {OP}")
        A(f"v_lshrrev_b32 v{aGD}, 5, v0")
        A(f"v_lshlrev_b32 v{aGD}, 3, v{aGD}")
        A(f"s_movk_i32 s72, {4*1152}")
        A("v_lshlrev_b32 v4, 4, v3")
        A("v_mad_u32_u24 v5, v2, s72, v4")
        A(f"s_movk_i32 s72, {6*1152}")
        A("v_mad_u32_u24 v6, v2, s72, v4")
        A("s_lshl_b32 s18, s46, 3"); A("s_add_u32 s18, s18, s4"); A(f"s_mul_i32 s18, s18, {16*1152}")
        A("s_mul_i32 s73, s45, 144"); A("s_add_u32 s18, s18, s73")
        A("s_mul_i32 s19, s46, 6"); A("s_add_u32 s19, s19, s4"); A(f"s_mul_i32 s19, s19, {24*1152}")
        A("s_add_u32 s19, s19, s73")
        A(f"s_add_u32 s20, s19, {3*1152}")
        A("s_mov_b32 s22, 0x01ff01ff"); A("s_mov_b32 s23, 0x01ff01ff")
    def small(k):
        if k < 4: A(f"buffer_load_dwordx4 v[{WO+4*k}:{WO+4*k+3}], v5, s[56:59], s18 offen offset:{1152*k} nt")
        else:
            t = k - 4
            A(f"buffer_load_dwordx4 v[{W2R[t]}:{W2R[t]+3}], v6, s[60:63], s{19 + t//3} offen offset:{1152*(t%3)} nt")
    n = 0
    for j in range(4):
        if j > 0:
            A(f"s_add_u32 m0, s10, {4096*j}")
            if n < W: A("s_nop 0")
        for t4 in range(4):
            if n >= W: A(f"s_waitcnt vmcnt({W-1})")
            if n == W: g.stamp(12)
            A(f"buffer_load_dwordx4 v{4+t4}, s[48:51], s{64+j} offen offset:{1024*t4} nt lds")
            n += 1
            if n == W: setup_mid()
    chunks = {NQ: c_q01, NQ+1: c_q23, NQ+2: c_round, NQ+3: c_soft, NQ+4: c_addr}
    assert NQ >= W and NQ + 4 <= 15
    WL = W if W2 is None else W2
    assert NQ >= WL
    for idx in range(16):
        A(f"s_waitcnt vmcnt({(W if idx < W2at else WL)-1})")
        vload(idx)
        if psched and idx in psched: A(f"s_setprio {psched[idx]}")
        if idx in chunks: chunks[idx]()
    g.stamp(4)
    if prio: A("s_setprio 0")
    if nsmall0:
        A("s_mov_b64 exec, s[22:23]")
        for k in range(nsmall0): small(k)
        A("s_mov_b64 exec, -1")
    issued = [nsmall0]
    def pv_after(t):
        if inter and t > 15 - WL and issued[0] < 10 and t < 15:
            A("s_mov_b64 exec, s[22:23]")
            small(issued[0]); issued[0] += 1
            A("s_mov_b64 exec, -1")
    g.gemv_chain(16, P, VD, AS, OA, lambda t: None if t <= 15 - WL else 15 - t + issued[0], pv_after)
    def rest_small():
        if issued[0] < 10:
            A("s_mov_b64 exec, s[22:23]")
            while issued[0] < 10:
                small(issued[0]); issued[0] += 1
            A("s_mov_b64 exec, -1")
    if smallpos == 'pre': rest_small()
    A("s_mov_b64 s[68:69], s[40:41]"); A("s_lshl_b32 s13, s7, 2"); A("s_add_u32 s13, s13, 128")
    A("s_mov_b64 s[64:65], s[42:43]")
    A("s_cmp_ge_u32 s4, 6")
    A("s_cselect_b32 s70, 256, 0"); A("s_mov_b32 s71, 0x20000")
    A(f"s_cselect_b32 s66, {WS_BYTES}, 0")
    A("s_mov_b32 s67, 0x20000")
    A("s_nop 1")
    A(f"ds_write_b128 v{aRED0}, v[{OA}:{OA+3}] offset:{RED0}")
    A("s_waitcnt lgkmcnt(0)")
    g.stamp(5)
    A("s_barrier")
    if smallpos == 'post': rest_small()
    A(f"ds_read_b64 v[{GG}:{GG+1}], v{aGD} offset:{GB}")
    A("s_cmp_lt_u32 s4, 6")
    A("s_cbranch_scc1 L_nopub")
    F, OR, LR, ST = PL, PL+8, PL+40, PL+48
    def ystore():
        A("s_mov_b64 s[8:9], exec")
        A("s_mov_b32 exec_lo, -1"); A("s_mov_b32 exec_hi, 0xff")
        A(f"buffer_store_dwordx4 v[{ST}:{ST+3}], v{aL16}, s[64:67], s12 offen sc1")
        A("s_mov_b32 s66, 0")
        A("s_mov_b64 exec, s[8:9]")
    if tailprio: A("s_setprio 3")
    A(f"ds_read_b128 v[{F}:{F+3}], v7 offset:{MW}")
    A(f"ds_read_b128 v[{F+4}:{F+7}], v7 offset:{MW+16}")
    for w in range(8):
        A(f"ds_read_b128 v[{OR+4*w}:{OR+4*w+3}], v{aPUBR} offset:{RED0+1024*w}")
    A(f"ds_read_b128 v[{LR}:{LR+3}], v7 offset:{LW}")
    A(f"ds_read_b128 v[{LR+4}:{LR+7}], v7 offset:{LW+16}")
    A(f"s_mov_b32 s72, {LOG2E:#x}")
    A("s_waitcnt lgkmcnt(10)")
    A(f"v_max3_f32 v{T+1}, v{F}, v{F+1}, v{F+2}")
    A(f"v_max3_f32 v{T}, v{F+3}, v{F+4}, v{F+5}")
    A(f"v_max3_f32 v{T+1}, v{T+1}, v{F+6}, v{F+7}")
    A(f"v_max_f32 v{T+1}, v{T+1}, v{T}")
    A(f"v_mul_f32 v{T}, {LOG2E^0x80000000:#x}, v{T+1}")
    for w in range(8): A(f"v_fma_f32 v{F+w}, v{F+w}, s72, v{T}")
    for w in range(8): A(f"v_exp_f32 v{F+w}, v{F+w}")
    A("s_waitcnt lgkmcnt(9)")
    for k in range(4): A(f"v_mul_f32 v{ST+k}, v{F}, v{OR+k}")
    for w in range(1, 8):
        A(f"s_waitcnt lgkmcnt({9-w})")
        for k in range(4): A(f"v_fmac_f32 v{ST+k}, v{F+w}, v{OR+4*w+k}")
    g.tag4(ST, [ST, ST+1, ST+2, ST+3])
    A("s_waitcnt lgkmcnt(0)")
    A("s_mov_b32 exec_lo, 0"); A("s_mov_b32 exec_hi, 0xff")
    A(f"v_mul_f32 v{ST+2}, v{F}, v{LR}")
    for k in range(1, 8): A(f"v_fmac_f32 v{ST+2}, v{F+k}, v{LR+k}")
    A(f"v_mov_b32 v{ST}, v{T+1}")
    A(f"v_mov_b32 v{ST+1}, v1")
    A(f"v_mov_b32 v{ST+3}, v1")
    A("s_mov_b32 exec_lo, -1")
    A(f"buffer_store_dwordx4 v[{ST}:{ST+3}], v{aL16}, s[48:51], s12 offen")
    A("s_mov_b64 exec, -1")
    for k in range(4): A(f"v_mov_b32 v{DB+k}, 0")
    A("s_cmp_eq_u32 s5, 0")
    A("s_cbranch_scc1 L_now2")
    ystore()
    A("s_branch L_now2")
    g.label("L_nopub")
    A(f"ds_read2_b32 v[{P}:{P+1}], v{aH} offset0:{HB//4} offset1:{HB//4+1}")
    A(f"ds_read_b32 v{P+2}, v{aH} offset:{HB+8}")
    A("s_waitcnt lgkmcnt(0)")
    g.gemv_chain(6, P, W2R, AS, DB, lambda t: 0 if t == 0 else None)
    A("s_nop 7")
    for k in range(4): A(f"v_mul_f32 v{DB+k}, v{GG+1}, v{DB+k}")
    g.label("L_now2")
    A("v_mov_b32 v7, 0")
    g.stamp(6)
    def issue1():
        A(f"buffer_load_dwordx4 v[{PL}:{PL+3}], v{aG0}, s[48:51], s15 offen {p1}")
        A(f"buffer_load_dwordx4 v[{PL+4}:{PL+7}], v{aG0}, s[48:51], s14 offen offset:512 {p1}")
    def check1():
        A(f"v_cmpx_eq_u32 vcc, s47, v{PL+5}")
        A(f"v_cmpx_eq_u32 vcc, s47, v{PL+7}")
        g.check4(PL, PL+8)
    g.poll("1", issue1, check1, "-1", s1[0], s1[1], 16, st=10, fallback=ystore)
    A(f"buffer_load_dword v{T+2}, v7, s[68:71], s13 offen {ph}")
    A("s_nop 2")
    g.stamp(7)
    Ms, Ls = PL+4, PL+6
    m, w_, t_, u_ = PL+8, PL+9, PL+10, PL+11
    g.dpp("v_max_f32", m, Ms, "row_ror:4")
    A("s_nop 1")
    g.dpp("v_max_f32", m, m, "row_ror:8")
    g.swap_reduce("v_max_f32", m, u_, 16)
    A(f"v_sub_f32 v{w_}, v{Ms}, v{m}")
    A(f"v_mul_f32 v{w_}, {LOG2E:#x}, v{w_}")
    A(f"v_exp_f32 v{w_}, v{w_}")
    A("s_nop 0")
    A(f"v_mul_f32 v{t_}, v{w_}, v{Ls}")
    for k in range(4): A(f"v_mul_f32 v{PL+k}, v{w_}, v{PL+k}")
    for ctl in ("row_ror:4", "row_ror:8"):
        for r in (t_, PL, PL+1, PL+2, PL+3):
            g.dpp("v_add_f32", r, r, ctl)
    A(f"v_mov_b32 v{u_}, v{t_}")
    A("s_nop 0")
    A(f"v_permlane16_swap_b32 v{PL}, v{PL+2}")
    A(f"v_permlane16_swap_b32 v{PL+1}, v{PL+3}")
    A(f"v_permlane16_swap_b32 v{t_}, v{u_}")
    A(f"v_add_f32 v{PL}, v{PL}, v{PL+2}")
    A(f"v_add_f32 v{PL+1}, v{PL+1}, v{PL+3}")
    A(f"v_add_f32 v{t_}, v{t_}, v{u_}")
    A(f"v_rcp_f32 v{t_}, v{t_}")
    A("s_nop 0")
    A(f"v_mul_f32 v{PL}, v{t_}, v{PL}")
    A(f"v_mul_f32 v{PL+1}, v{t_}, v{PL+1}")
    A(f"v_cvt_pk_bf16_f32 v{PL}, v{PL}, v{PL+1}")
    A(f"ds_bpermute_b32 v{P}, v{aBP0}, v{PL}")
    A(f"ds_bpermute_b32 v{P+1}, v{aBP1}, v{PL}")
    A("s_waitcnt lgkmcnt(0)")
    g.gemv_chain(4, P, WO, AS, DA, lambda t: None)
    A("s_nop 7")
    for k in range(4): A(f"v_fmac_f32 v{DB+k}, v{GG}, v{DA+k}")
    A(f"ds_write_b128 v{aRED0}, v[{DB}:{DB+3}] offset:{RED1}")
    A("s_waitcnt lgkmcnt(0)")
    g.stamp(8)
    A("s_barrier")
    A("s_cmp_ge_u32 s4, 1")
    A("s_cbranch_scc1 L_final")
    RA = PL+8
    for w in range(8):
        A(f"ds_read_b128 v[{RA+4*w}:{RA+4*w+3}], v{aFR} offset:{RED1+1024*w}")
    A("s_mov_b32 exec_hi, 0xff")
    A("s_waitcnt lgkmcnt(6)")
    for e in range(4): A(f"v_add_f32 v{PL+e}, v{RA+e}, v{RA+4+e}")
    for w in range(2, 8):
        A(f"s_waitcnt lgkmcnt({7-w})")
        for e in range(4): A(f"v_add_f32 v{PL+e}, v{PL+e}, v{RA+4*w+e}")
    g.tag4(PL, [PL, PL+1, PL+2, PL+3])
    A(f"buffer_store_dwordx4 v[{PL}:{PL+3}], v{aFS}, s[48:51], s16 offen {ofl}")
    if probe:
        A("s_cmp_ge_u32 s2, 8"); A("s_cbranch_scc1 L_end")
        A("s_memrealtime s[76:77]"); A("s_movk_i32 s70, 256")
        A("s_lshl_b32 s12, s2, 2"); A("s_add_u32 s12, s12, 32"); A("v_mov_b32 v4, 0"); A("s_waitcnt lgkmcnt(0)"); A("v_mov_b32 v5, s76")
        A("s_mov_b64 exec, 1")
        A("buffer_store_dword v5, v4, s[68:71], s12 offen")
    if diag:
        g.stamp(9)
        g.label("L_dump")
        g.dump_stamps(13)
    A("s_endpgm")
    g.label("L_final")
    A("s_cmp_lt_u32 s4, 6")
    A("s_cbranch_scc1 L_nohelp")
    A("s_waitcnt vmcnt(0)")
    A(f"v_readfirstlane_b32 s10, v{T+2}")
    A("s_cmp_eq_u32 s10, 0")
    A("s_cbranch_scc1 L_nohelp")
    ystore()
    g.label("L_nohelp")
    if diag: A("s_mov_b32 s94, 0")
    A("s_cmp_lg_u32 s4, 4")
    A("s_cbranch_scc1 " + ("L_dump" if diag else "L_end"))
    A("s_cmp_ge_u32 s46, 5")
    A("s_cbranch_scc1 " + ("L_dump" if diag else "L_end"))
    FIN = PL + 44 if stag else PL
    def issue2():
        for k in range(4):
            A(f"buffer_load_dwordx4 v[{PL+4*k}:{PL+4*k+3}], v{aL16}, s[48:51], s17 offen offset:{1024*k} {p2}")
    def check2():
        for k in range(4): g.check4(PL+4*k, PL+20)
    if pre2: A(f's_sleep {pre2}')
    if not stag: issue2()
    if stag: issue2()
    A(f"ds_read_b64 v[{PL+18}:{PL+19}], v{aGA} offset:{GB}")
    g.srd(56, 38, 2304)
    A("s_cmp_eq_u32 s46, 4")
    A("s_cselect_b64 s[10:11], 0xf, 0xff")
    A("s_waitcnt lgkmcnt(0)")
    BI = PL + 52
    A(f"v_lshlrev_b32 v{BI}, 16, v{vB2}"); A(f"v_and_b32 v{BI+1}, 0xffff0000, v{vB2}")
    A(f"v_lshlrev_b32 v{BI+2}, 16, v{vB2+1}"); A(f"v_and_b32 v{BI+3}, 0xffff0000, v{vB2+1}")
    for e in range(4): A(f"v_mul_f32 v{BI+e}, v{PL+19}, v{BI+e}")
    if not stag:
        g.poll("2", issue2, check2, "-1", s2[0], s2[1], s2[2], first_issue=False)
        g.stamp(10)
        for k in range(1, 4):
            for e in range(4): A(f"v_add_f32 v{PL+e}, v{PL+e}, v{PL+4*k+e}")
    else:
        SA, SB = PL, PL+24
        def iss(base):
            for k in range(4):
                A(f"buffer_load_dwordx4 v[{base+4*k}:{base+4*k+3}], v{aL16}, s[48:51], s17 offen offset:{1024*k} {p2}")
        def chk(base, lab):
            for k in range(4): g.check4(base+4*k, PL+20)
            A("s_nop 1")
            A("s_cmp_eq_u64 exec, -1")
            A("s_mov_b64 exec, -1")
            A(f"s_cbranch_scc1 {lab}")
        g.label("L_p2")
        A(f"s_sleep {stag}")
        iss(SB)
        A("s_waitcnt vmcnt(4)")
        chk(SA, "L_p2a")
        A(f"s_sleep {stag}")
        iss(SA)
        A("s_waitcnt vmcnt(4)")
        chk(SB, "L_p2b")
        A("s_sub_u32 s75, s75, 1")
        A("s_cmp_lg_u32 s75, 0")
        A("s_cbranch_scc1 L_p2")
        g.label("L_p2b")
        for e in range(4): A(f"v_add_f32 v{SB+e}, v{SB+e}, v{SB+4+e}")
        for e in range(4): A(f"v_add_f32 v{SB+8+e}, v{SB+8+e}, v{SB+12+e}")
        for e in range(4): A(f"v_add_f32 v{FIN+e}, v{SB+e}, v{SB+8+e}")
        A("s_branch L_p2c")
        g.label("L_p2a")
        for e in range(4): A(f"v_add_f32 v{SA+e}, v{SA+e}, v{SA+4+e}")
        for e in range(4): A(f"v_add_f32 v{SA+8+e}, v{SA+8+e}, v{SA+12+e}")
        for e in range(4): A(f"v_add_f32 v{FIN+e}, v{SA+e}, v{SA+8+e}")
        g.label("L_p2c")
        g.stamp(10)
    for e in range(4): g.dpp("v_add_f32", FIN+e, FIN+e, "row_ror:8")
    for which in (16, 32):
        for e in range(4): A(f"v_mov_b32 v{FIN+4+e}, v{FIN+e}")
        for e in range(4): A(f"v_permlane{which}_swap_b32 v{FIN+e}, v{FIN+4+e}")
        for e in range(4): A(f"v_add_f32 v{FIN+e}, v{FIN+e}, v{FIN+4+e}")
    for e in range(4): A(f"v_add_f32 v{FIN+e}, v{FIN+e}, v{BI+e}")
    A(f"v_cvt_pk_bf16_f32 v{FIN}, v{FIN}, v{FIN+1}")
    A(f"v_cvt_pk_bf16_f32 v{FIN+1}, v{FIN+2}, v{FIN+3}")
    A("s_mov_b64 exec, s[10:11]")
    A(f"buffer_store_dwordx2 v[{FIN}:{FIN+1}], v{aOUT}, s[56:59], s21 offen")
    A("s_or_b32 s8, s45, s46")
    A("s_cmp_lg_u32 s8, 0")
    A("s_cbranch_scc1 L_fin2")
    A("s_mov_b64 exec, 1")
    A(f"buffer_store_dword v1, v7, s[48:51], 0 offen sc1")
    g.label("L_fin2")
    if diag:
        g.stamp(9)
        g.dump_stamps(13)
    A("s_endpgm")

    g.label("L_s0b")
    XR, WD, AS, D, GX, GW = 24, 40, 112, 120, 124, 134
    A("v_and_b32 v6, 31, v0")
    A("v_mul_u32_u24 v8, 36, v6")
    A("v_lshrrev_b32 v7, 5, v0")
    A("s_movk_i32 s8, 1152")
    A("v_mad_u32_u24 v11, v7, s8, v8")
    if not xlds:
        g.srd(56, 36, 1152)
        A(f"buffer_load_dwordx4 v[{GX}:{GX+3}], v11, s[48:51], 0 offen {xs}")
        A(f"buffer_load_dwordx4 v[{GX+4}:{GX+7}], v11, s[48:51], 0 offen offset:16 {xs}")
        A(f"buffer_load_dword v{GX+8}, v11, s[48:51], 0 offen offset:32 {xs}")
        A(f"buffer_load_dwordx4 v[{GW}:{GW+3}], v8, s[56:59], 0 offen {xs}")
        A(f"buffer_load_dwordx4 v[{GW+4}:{GW+7}], v8, s[56:59], 0 offen offset:16 {xs}")
        A(f"buffer_load_dword v{GW+8}, v8, s[56:59], 0 offen offset:32 {xs}")
    g.selectors(144)
    g.srd(60, 42, WS_BYTES)
    A("v_lshlrev_b32 v10, 13, v7")
    A("v_lshl_add_u32 v10, v6, 4, v10")
    A("s_lshl_b32 s10, s7, 14"); A("s_lshl_b32 s11, s45, 10"); A("s_add_u32 s11, s11, s10")
    A("s_lshl_b32 s8, s44, 9"); A("s_add_u32 s11, s11, s8"); A(f"s_add_u32 s11, s11, {QP}")
    A("s_lshl_b32 s8, s44, 13"); A("s_add_u32 s64, s10, s8"); A(f"s_add_u32 s64, s64, {QP}")
    A("s_add_u32 s65, s64, 4096")
    A("v_lshlrev_b32 v12, 4, v0")
    A("v_lshlrev_b32 v13, 9, v0")
    A("v_lshlrev_b32 v14, 4, v3")
    A("v_and_b32 v15, 1, v2")
    A("v_lshl_add_u32 v14, v15, 3, v14")
    A("v_lshl_add_u32 v14, v7, 8, v14")
    g.srd(68, 40, 256)
    A("s_lshl_b32 s13, s7, 2"); A("s_add_u32 s13, s13, 128")
    A("s_cmp_eq_u32 s5, 0")
    A("s_cbranch_scc1 L_placed")
    A("v_mov_b32 v150, 0"); A("v_mov_b32 v5, 1")
    A("buffer_store_dword v5, v150, s[68:71], s13 offen sc1")
    A("s_waitcnt vmcnt(0)")
    g.label("L_placed")
    if probe:
        A("s_cmp_ge_u32 s2, 8"); A("s_cbranch_scc1 L_np0")
        A("s_lshl_b32 s12, s2, 2"); A("v_mov_b32 v4, 0"); A("v_mov_b32 v5, s76")
        A("s_mov_b64 exec, 1")
        A("buffer_store_dword v5, v4, s[68:71], s12 offen")
        A("s_mov_b64 exec, -1")
        A("s_waitcnt vmcnt(0)")
        g.label("L_np0")
    A("s_waitcnt lgkmcnt(0)" + (" vmcnt(18)" if xlds else ""))
    A("s_barrier")
    NG = 0 if xlds else 6
    if xlds:
        A(f"s_add_u32 s9, s9, {XB}")
        A("v_add_u32 v4, s9, v4")
        for k in range(4): A(f"ds_read2_b32 v[{XR+2*k}:{XR+2*k+1}], v4 offset0:{2*k} offset1:{2*k+1}")
        A(f"ds_read_b32 v{XR+8}, v4 offset:32")
        for k in range(9): A(f"ds_read_b32 v{GX+k}, v11 offset:{XB+4*k}")
        A("s_waitcnt lgkmcnt(9)")
        for k in range(5): A(f"ds_read_b32 v{GW+k}, v8 offset:{GWB+4*k}")
        A("s_waitcnt lgkmcnt(5)")
        for k in range(5, 9): A(f"ds_read_b32 v{GW+k}, v8 offset:{GWB+4*k}")
        A("s_waitcnt lgkmcnt(0)")
    A("s_load_dword s47, s[42:43], 0")
    if not xlds: A("s_waitcnt vmcnt(24)" if xpos == 'first' else "s_waitcnt vmcnt(6)")
    g.stamp(3)
    g.gemv_chain(18, XR, WD, AS, D, lambda t: 17 - t + NG)
    A("s_waitcnt lgkmcnt(0)")
    g.tag()
    g.tag4(AS, [D, D+1, D+2, D+3])
    def ys0():
        A("s_mov_b64 s[72:73], exec")
        A("s_mov_b64 exec, -1")
        A(f"buffer_store_dwordx4 v[{AS}:{AS+3}], v10, s[60:63], s11 offen sc1")
        A("s_mov_b64 exec, s[72:73]")
    def helpcheck(name, ys):
        A("v_mov_b32 v4, 0")
        A(f"buffer_load_dword v5, v4, s[68:71], s13 offen {ph}")
        A("s_waitcnt vmcnt(0)")
        A("v_readfirstlane_b32 s8, v5")
        A("s_cmp_eq_u32 s8, 0")
        A(f"s_cbranch_scc1 L_nh_{name}")
        ys()
        g.label(f"L_nh_{name}")
    A(f"buffer_store_dwordx4 v[{AS}:{AS+3}], v10, s[60:63], s11 offen")
    A("s_cmp_eq_u32 s5, 0")
    A("s_cbranch_scc1 L_q_placed")
    ys0()
    A("s_waitcnt vmcnt(0)")
    g.label("L_q_placed")
    g.stamp(1)
    A("s_waitcnt vmcnt(1)")
    acc, t0, t1, t2, t3 = 144, 145, 146, 147, 148
    A(f"v_mov_b32 v{acc}, 0")
    for k in range(9):
        A(f"v_lshlrev_b32 v{t0}, 16, v{GX+k}")
        A(f"v_and_b32 v{t1}, 0xffff0000, v{GX+k}")
        A(f"v_lshlrev_b32 v{t2}, 16, v{GW+k}")
        A(f"v_and_b32 v{t3}, 0xffff0000, v{GW+k}")
        A(f"v_mul_f32 v{t0}, v{t0}, v{t2}")
        A(f"v_mul_f32 v{t1}, v{t1}, v{t3}")
        A(f"v_cvt_pk_bf16_f32 v{t0}, v{t0}, v{t1}")
        A(f"v_lshlrev_b32 v{t1}, 16, v{t0}")
        A(f"v_and_b32 v{t0}, 0xffff0000, v{t0}")
        A(f"v_add_f32 v{acc}, v{acc}, v{t1}")
        A(f"v_add_f32 v{acc}, v{acc}, v{t0}")
    for ctl in ("quad_perm:[1,0,3,2]", "quad_perm:[2,3,0,1]", "row_half_mirror", "row_mirror"):
        A("s_nop 1")
        g.dpp("v_add_f32", acc, acc, ctl)
    g.swap_reduce("v_add_f32", acc, t0, 16)
    g.bf16r(acc, acc)
    A(f"v_mul_f32 v{acc}, {LOG2E^0x80000000:#x}, v{acc}")
    A(f"v_exp_f32 v{acc}, v{acc}")
    A("s_nop 0")
    A(f"v_add_f32 v{acc}, 1.0, v{acc}")
    A(f"v_rcp_f32 v{acc}, v{acc}")
    A("s_nop 0")
    g.bf16r(acc, acc)
    A(f"v_sub_f32 v{acc+1}, 1.0, v{acc}")
    g.bf16r(acc+1, acc+1)
    A("v_lshlrev_b32 v7, 3, v7")
    A("s_mov_b32 exec_lo, 1"); A("s_mov_b32 exec_hi, 1")
    A(f"ds_write_b64 v7, v[{acc}:{acc+1}] offset:{GB}")
    if prepoll:
        A("s_mov_b64 s[14:15], 0xffff")
        A("s_mov_b64 exec, s[14:15]")
        g.poll("pq", lambda: A(f"buffer_load_dwordx4 v[{WD}:{WD+3}], v13, s[60:63], s64 offen offset:496 sc1"), lambda: g.check4(WD, t0), "s[14:15]", 4, 0, 64, fallback=ys0, fbmask=15)
    A("s_mov_b64 exec, -1")
    g.stamp(4)
    def issueq():
        for rb in range(8):
            A(f"buffer_load_dwordx4 v[{WD+4*rb}:{WD+4*rb+3}], v12, s[60:63], s{64+rb//4} offen offset:{1024*(rb%4)} {pq}")
    def checkq():
        for rb in range(8): g.check4(WD+4*rb, t0)
    g.poll("q", issueq, checkq, "-1", 4, 0, 64, fallback=ys0, fbmask=15)
    g.stamp(2)
    for rb in range(1, 8):
        for e in range(4): A(f"v_add_f32 v{WD+e}, v{WD+e}, v{WD+4*rb+e}")
    A(f"v_cvt_pk_bf16_f32 v{WD}, v{WD}, v{WD+1}")
    A(f"v_cvt_pk_bf16_f32 v{WD+1}, v{WD+2}, v{WD+3}")
    A(f"ds_write_b64 v14, v[{WD}:{WD+1}] offset:{QB}")
    A("v_mov_b32 v5, 1")
    A("v_mov_b32 v4, 0")
    A("s_waitcnt lgkmcnt(0)")
    A(f"ds_write_b32 v4, v5 offset:{QFLAG}")
    helpcheck("q", ys0)
    A("s_waitcnt lgkmcnt(0)")
    g.stamp(5)
    g.dump_stamps(6)
    A("s_endpgm")
    g.label("L_s1b")
    WD, AS, D, B1 = W1, 140, 148, 152
    NT = 0
    if cw & 1:
        A("s_getpc_b64 s[72:73]")
        g.label("L_pc")
        A(f"s_sub_u32 s72, s72, (L_pc - {KNAME})")
        A("s_subb_u32 s73, s73, 0")
        for k in range(1, 7):
            A(f"s_load_dword s{66+ (k%2)}, s[72:73], {2048*k}")
    if cw & 2:
        A("s_cmp_lg_u32 s45, 0")
        A("s_cbranch_scc1 L_nocw")
        A("s_getpc_b64 s[72:73]")
        g.label("L_pc2")
        A(f"s_sub_u32 s72, s72, (L_pc2 - {KNAME})")
        A("s_subb_u32 s73, s73, 0")
        A("v_lshlrev_b32 v160, 7, v0")
        A("global_load_dword v161, v160, s[72:73]")
        A("v_add_u32 v160, 0x2000, v160")
        A("s_mov_b32 exec_hi, 0")
        A("global_load_dword v161, v160, s[72:73]")
        A("s_mov_b64 exec, -1")
        A("s_waitcnt vmcnt(0)")
        g.label("L_nocw")
    g.srd(56, 30, 9216)
    g.srd(60, 42, WS_BYTES)
    g.srd(68, 40, 256)
    A("s_load_dword s47, s[42:43], 0")
    A("v_and_b32 v6, 31, v0")
    A("v_lshrrev_b32 v7, 5, v0")
    A("v_lshlrev_b32 v10, 4, v0")
    A("s_mul_i32 s13, s46, 18")
    A("v_add_u32 v8, s13, v6")
    A("v_lshlrev_b32 v8, 4, v8")
    A("v_cmp_lt_u32 vcc, 8, v6")
    A("v_add_u32 v12, 0xf7, v6")
    A("v_lshlrev_b32 v13, 10, v0")
    A("v_cndmask_b32 v12, v6, v12, vcc")
    A("v_lshlrev_b32 v12, 4, v12")
    A("v_lshl_add_u32 v12, v7, 9, v12")
    A("s_movk_i32 s12, 288")
    A("v_mul_u32_u24 v14, s12, v7")
    A("v_lshl_add_u32 v14, v6, 4, v14")
    A("s_lshl_b32 s64, s7, 14"); A(f"s_add_u32 s64, s64, {HP}")
    A("s_and_b32 s12, s6, 15"); A("s_lshl_b32 s12, s12, 10"); A("s_add_u32 s65, s64, s12")
    A("s_lshl_b32 s12, s44, 13"); A("s_add_u32 s64, s64, s12")
    A("s_lshl_b32 s13, s7, 2"); A("s_add_u32 s13, s13, 128")
    g.selectors(156)
    A("s_barrier")
    if xlds:
        A("v_add_u32 v4, s10, v4")
        for k in range(9): A(f"ds_read_b64 v[{X1+2*k}:{X1+2*k+1}], v4 offset:{XB+8*k}")
        A("s_waitcnt lgkmcnt(0)")
    else: A(f"s_waitcnt vmcnt({24+NT})" if xpos == 'first' else "s_waitcnt vmcnt(0)")
    def s1_after(t):
        if t < 12:
            A("s_mov_b64 exec, s[14:15]")
            A(f"buffer_load_dwordx4 v[{W1+4*t}:{W1+4*t+3}], v5, s[52:55], s11 offen nt")
            A("s_add_u32 s11, s11, 9216")
            A("s_mov_b64 exec, -1")
    g.gemv_chain(36, X1, [W1 + 4*(t % 24) for t in range(36)], AS, D, lambda t: (24 + min(t, 12) - t - 1 + (NT if t < 24 else 0)), s1_after)
    A("s_waitcnt lgkmcnt(0)")
    g.tag()
    g.tag4(AS, [D, D+1, D+2, D+3])
    def ys1():
        A("s_mov_b64 s[72:73], exec")
        A("s_mov_b64 exec, -1")
        A(f"buffer_store_dwordx4 v[{AS}:{AS+3}], v10, s[60:63], s65 offen sc1")
        A("s_mov_b64 exec, s[72:73]")
    A(f"buffer_store_dwordx4 v[{AS}:{AS+3}], v10, s[60:63], s65 offen")
    A("s_cmp_eq_u32 s5, 0")
    A("s_cbranch_scc1 L_h_placed")
    ys1()
    g.label("L_h_placed")
    g.stamp(1)
    A("s_mov_b32 s14, 0x0003ffff"); A("s_mov_b32 s15, 0x0003ffff")
    A("s_mov_b64 exec, s[14:15]")
    A(f"buffer_load_dwordx4 v[{B1}:{B1+3}], v8, s[56:59], 0 offen {xs}")
    if prepoll:
        A("s_mov_b64 s[10:11], 0xff")
        A("s_mov_b64 exec, s[10:11]")
        g.poll("ph", lambda: A(f"buffer_load_dwordx4 v[{WD}:{WD+3}], v13, s[60:63], s64 offen offset:896 sc1"), lambda: g.check4(WD, 156), "s[10:11]", 8, 0, 64, fallback=ys1, fbmask=15)
        A("s_mov_b64 exec, s[14:15]")
    g.stamp(3)
    def issueh():
        for rb in range(4):
            for k in range(2):
                d = WD + 8*rb + 4*k
                A(f"buffer_load_dwordx4 v[{d}:{d+3}], v12, s[60:63], s64 offen offset:{1024*rb+256*k} {pq}")
    def checkh():
        for k in range(8): g.check4(WD+4*k, 156)
    g.poll("h", issueh, checkh, "s[14:15]", 4, 0, 64, fallback=ys1, fbmask=15)
    g.stamp(2)
    for rb in range(1, 4):
        for e in range(8): A(f"v_add_f32 v{WD+e}, v{WD+e}, v{WD+8*rb+e}")
    for d in range(4):
        a, b = WD + 2*d, WD + 2*d + 1
        t0, t1 = 160, 161
        A(f"v_cvt_pk_bf16_f32 v{a}, v{a}, v{b}")
        A(f"v_lshlrev_b32 v{t0}, 16, v{B1+d}")
        A(f"v_and_b32 v{t1}, 0xffff0000, v{B1+d}")
        A(f"v_and_b32 v{b}, 0xffff0000, v{a}")
        A(f"v_lshlrev_b32 v{a}, 16, v{a}")
        A(f"v_add_f32 v{a}, v{a}, v{t0}")
        A(f"v_add_f32 v{b}, v{b}, v{t1}")
        A(f"v_cvt_pk_bf16_f32 v{a}, v{a}, v{b}")
        A(f"v_and_b32 v{b}, 0xffff0000, v{a}")
        A(f"v_lshlrev_b32 v{a}, 16, v{a}")
        A(f"v_max_f32 v{a}, 0, v{a}")
        A(f"v_max_f32 v{b}, 0, v{b}")
        A(f"v_mul_f32 v{a}, v{a}, v{a}")
        A(f"v_mul_f32 v{b}, v{b}, v{b}")
        A(f"v_cvt_pk_bf16_f32 v{156+d}, v{a}, v{b}")
    A(f"ds_write_b128 v14, v[156:159] offset:{HB}")
    A("s_mov_b64 exec, -1")
    if optouch:
        A("s_cmp_ge_u32 s46, 5"); A("s_cbranch_scc1 L_not")
        A("s_mul_i32 s12, s45, 5"); A("s_add_u32 s12, s12, s46"); A("s_lshl_b32 s12, s12, 12"); A(f"s_add_u32 s12, s12, {OP}")
        if optouch == 'ld':
            A("v_lshlrev_b32 v15, 7, v0")
            A("s_mov_b32 exec_hi, 0")
            A("buffer_load_dword v161, v15, s[60:63], s12 offen sc1")
            A("s_mov_b64 exec, -1")
        else:
            A("v_mov_b32 v160, 0"); A("v_mov_b32 v161, 0"); A("v_mov_b32 v162, 0"); A("v_mov_b32 v163, 0")
            for k in range(4): A(f"buffer_store_dwordx4 v[160:163], v10, s[60:63], s12 offen offset:{1024*k} sc1")
        g.label("L_not")
    helpcheck("h", ys1)
    A("s_waitcnt lgkmcnt(0)")
    g.stamp(4); g.stamp(5)
    g.dump_stamps(6)
    g.label("L_end")
    A("s_endpgm")
    body = "\n".join(g.L)
    s = HEADER
    s += f"; @launch grid=(256,1,1) block=(640,1,1) lds={LDS_BYTES}\n"
    s += f""".amdgcn_target "amdgcn-amd-amdhsa--gfx950"
.text
.globl {KNAME}
.p2align 8
.type {KNAME},@function
{KNAME}:
{body}
.section .rodata,"a"
.p2align 6
.amdhsa_kernel {KNAME}
  .amdhsa_next_free_vgpr 168
  .amdhsa_next_free_sgpr 102
  .amdhsa_accum_offset 168
  .amdhsa_group_segment_fixed_size 0
  .amdhsa_kernarg_size 112
  .amdhsa_user_sgpr_count 2
  .amdhsa_user_sgpr_kernarg_segment_ptr 1
  .amdhsa_system_sgpr_workgroup_id_x 1
  .amdhsa_float_denorm_mode_32 3
.end_amdhsa_kernel
"""
    return s

if __name__ == "__main__":
    B = dict(tlb=False, mask='h', tailprio=True, stag=1)
    open("k15.s", "w").write(build(False, **B))
    open("k15d.s", "w").write(build(True, **B))
```

```python
import gen17
B = dict(tlb=False, mask='h', tailprio=True, stag=0)
V = {"a": dict(), "ld": dict(optouch='ld'), "st": dict(optouch='st'), "a2": dict()}
for k, v in V.items():
    open(f"l_{k}.s", "w").write(gen17.build(False, **{**B, **v}))
    open(f"ld_{k}.s", "w").write(gen17.build(True, **{**B, **v}))
print(" ".join(f"l_{k}.s" for k in V)); print(", ".join(f'"work/l_{k}.s", "work/ld_{k}.s"' for k in V))
```

```python
import sys
from gen_common import KNAME, HEADER

QP   = 0x1000
HP   = 0x80000
OPT  = 0x100000
OREC = 640
OP   = 0x200000
WS_BYTES = 0x400000
QB, HB, GB, MW, LW, QFLAG, RED0, KB = 0, 512, 1088, 1152, 1216, 1280, 2048, 10240
RED1 = KB
XB, GWB = RED0, RED0 + 3072
LDS_BYTES = KB + 131072
LOG2E = 0x3fb8aa3b
SCALE = 0x3db504f3
SEL = 16
SI = 24
SC = 28

class G:
    def __init__(s, diag=False, spin=100000):
        s.L = []; s.diag = diag; s.spin = spin
    def __call__(s, x): s.L.append("    " + x)
    def label(s, x): s.L.append(x + ":")
    def srd(s, d, lo, nbytes):
        s(f"s_mov_b64 s[{d}:{d+1}], s[{lo}:{lo+1}]")
        s(f"s_mov_b32 s{d+2}, {nbytes}"); s(f"s_mov_b32 s{d+3}, 0x20000")
    def stamp(s, k):
        if s.diag:
            s(f"s_memrealtime s[{76+2*k}:{77+2*k}]")
            s("s_waitcnt lgkmcnt(0)")
    def dump_stamps(s, n):
        if not s.diag: return
        s.srd(68, 40, 0x50000)
        s("s_lshl_b32 s72, s2, 10")
        s("s_lshl_b32 s73, s3, 6"); s("s_add_u32 s72, s72, s73"); s("s_add_u32 s72, s72, 4096")
        s("s_mov_b64 exec, 1")
        s("v_mov_b32 v4, 0")
        for k in range(n):
            s(f"v_mov_b32 v5, s{76+2*k}")
            s(f"buffer_store_dword v5, v4, s[68:71], s72 offen offset:{4*k}")
            s("s_nop 1")
    def tag(s):
        s("s_mul_i32 s47, s47, 0x9E3779B1")
        s("s_add_u32 s47, s47, 0x7F4A7C15")
        for k in range(4): s(f"s_mov_b32 s{SI+k}, {0x07060500+k:#x}")
        s(f"s_mov_b32 s{SC}, 0x0c0c0400"); s(f"s_mov_b32 s{SC+1}, 0x0c040100"); s(f"s_mov_b32 s{SC+2}, 0x04020100")
        s("s_mov_b32 s31, 0xffffff00")
        s("v_mov_b32 v1, s47")
    def clean(s, regs):
        for r in regs: s(f"v_and_b32 v{r}, s31, v{r}")
    def tag4(s, dst, src):
        for k in range(4): s(f"v_perm_b32 v{dst+k}, v{src[k]}, v1, s{SI+k}")
    def check4(s, d, t):
        s(f"v_perm_b32 v{t}, v{d+1}, v{d}, s{SC}")
        s(f"v_perm_b32 v{t}, v{d+2}, v{t}, s{SC+1}")
        s(f"v_perm_b32 v{t}, v{d+3}, v{t}, s{SC+2}")
        s(f"v_cmpx_eq_u32 vcc, s47, v{t}")
    def selectors(s, t0):
        a, b, c, d, e = t0, t0+1, t0+2, t0+3, t0+4
        s(f"v_and_b32 v{a}, 1, v0")
        s(f"v_lshlrev_b32 v{a}, 4, v{a}")
        s(f"v_bfe_u32 v{b}, v0, 1, 2")
        s(f"v_mov_b32 v{c}, 0x0d0c")
        s(f"v_mov_b32 v{d}, 0x0f0e")
        s(f"v_mov_b32 v{e}, 0x0c0c0c0c")
        s(f"v_lshlrev_b32 v{c}, v{a}, v{c}")
        s(f"v_lshlrev_b32 v{d}, v{a}, v{d}")
        s(f"v_xor_b32 v{c}, v{c}, v{e}")
        s(f"v_xor_b32 v{d}, v{d}, v{e}")
        for k in range(4):
            s(f"v_cmp_eq_u32 vcc, {k}, v{b}")
            s("s_nop 1")
            s(f"v_cndmask_b32 v{SEL+k}, v{e}, v{c}, vcc")
            s(f"v_cndmask_b32 v{SEL+4+k}, v{e}, v{d}, vcc")
    def perm4(s, dst, src, par):
        for k in range(4):
            s(f"v_perm_b32 v{dst+k}, v{src}, v{src}, v{SEL+4*par+k}")
    def gemv_chain(s, n, xreg, data, aset, acc, waitfn, after=None):
        dreg = (lambda t: data[t]) if isinstance(data, list) else (lambda t: data + 4*t)
        s.perm4(aset, xreg, 0)
        for t in range(n):
            cur = aset + 4*(t & 1); nxt = aset + 4*((t+1) & 1)
            if t+1 < n: s.perm4(nxt, xreg + ((t+1) >> 1), (t+1) & 1)
            else: s("s_nop 1")
            w = waitfn(t)
            if w is not None: s(f"s_waitcnt vmcnt({w})")
            c = "0" if t == 0 else f"v[{acc}:{acc+3}]"
            s(f"v_mfma_f32_16x16x32_bf16 v[{acc}:{acc+3}], v[{cur}:{cur+3}], v[{dreg(t)}:{dreg(t)+3}], {c}")
            if after: after(t)
    def bf16r(s, dst, src):
        s(f"v_cvt_pk_bf16_f32 v{dst}, v{src}, v{src}")
        s(f"v_and_b32 v{dst}, 0xffff0000, v{dst}")
    def swap_reduce(s, op, r, t, which):
        s(f"v_mov_b32 v{t}, v{r}")
        s("s_nop 1")
        s(f"v_permlane{which}_swap_b32 v{r}, v{t}")
        s("s_nop 1")
        s(f"{op} v{r}, v{r}, v{t}")
    def dpp(s, op, dst, src, ctl):
        s(f"{op}_dpp v{dst}, v{src}, v{src} {ctl} row_mask:0xf bank_mask:0xf")
    def poll(s, name, issue, check, full, sleep_few=2, sleep_many=8, many=16, first_issue=True, masked=True, st=None, fallback=None, fbmask=31):
        if fallback: s(f"s_or_b32 s75, s75, {fbmask}")
        if first_issue: issue()
        if st is not None and s.diag:
            s("s_waitcnt vmcnt(0)")
            s.stamp(st)
            s(f"s_mov_b32 s{76+2*(st+1)}, s75")
        s.label(f"L_poll_{name}")
        s("s_waitcnt vmcnt(0)")
        s(f"s_mov_b64 exec, {full}")
        check()
        s("s_nop 1")
        s(f"s_andn2_b64 exec, {full}, exec")
        s(f"s_cbranch_scc0 L_ok_{name}")
        s("s_bcnt1_i32_b64 s74, exec")
        if not masked: s(f"s_mov_b64 exec, {full}")
        s(f"s_sleep {sleep_few}")
        if sleep_many:
            s(f"s_cmp_lt_u32 s74, {many}")
            s(f"s_cbranch_scc1 L_ns_{name}")
            s(f"s_sleep {sleep_many}")
            s.label(f"L_ns_{name}")
        issue()
        if fallback:
            s(f"s_and_b32 s74, s75, {fbmask}")
            s(f"s_cbranch_scc1 L_nf_{name}")
            fallback()
            s.label(f"L_nf_{name}")
        s("s_sub_u32 s75, s75, 1")
        s("s_cmp_lg_u32 s75, 0")
        s(f"s_cbranch_scc1 L_poll_{name}")
        s("s_waitcnt vmcnt(0)")
        s.label(f"L_ok_{name}")
        s(f"s_mov_b64 exec, {full}")
        if st is not None and s.diag:
            s(f"s_sub_u32 s{76+2*(st+1)}, s{76+2*(st+1)}, s75")
            s(f"s_mul_i32 s{76+2*(st+1)}, s{76+2*(st+1)}, 100")
            s(f"s_add_u32 s{76+2*(st+1)}, s{76+2*(st+1)}, s76")

def build(diag=False, W=4, NQ=10, mask='bh', prepoll=False, s1=(1, 4), nsmall0=2, qfl='sc1', ofl='sc1', prio=2, inter=True, smallpos='pre', stag=False, tlb=True, tlbfl='', probe=False, xpos='first', tailprio=False, s2=(1, 4, 24), pre2=0, W2=None, W2at=4, WK=None, psched=None, cw=0, pq='sc1 nt', p1='sc1 nt', p2='sc1', ph='sc1', xs='', xlds=True, b2one=True, optouch='', stouch=0, hm=0x9E3779B1, hs=27, vm=None, rspread=True):
    g = G(diag); A = g
    A("s_cmp_ge_u32 s2, 256")
    A("s_cbranch_scc1 L_end")
    A("s_load_dwordx16 s[16:31], s[0:1], 0")
    A("s_load_dwordx8 s[32:39], s[0:1], 64")
    A("s_load_dwordx4 s[40:43], s[0:1], 96")
    if diag or probe: A("s_memrealtime s[76:77]")
    A("v_lshrrev_b32 v1, 6, v0")
    A("v_and_b32 v0, 63, v0")
    A("v_readfirstlane_b32 s3, v1")
    A("s_and_b32 s5, s2, 7")
    A("s_lshr_b32 s6, s2, 3")
    A("s_lshr_b32 s7, s6, 4")
    A("s_lshl_b32 s8, s5, 1")
    A("s_add_u32 s7, s7, s8")
    A("s_getreg_b32 s8, hwreg(HW_REG_XCC_ID, 0, 4)")
    A("s_xor_b32 s5, s5, s8")
    A("s_bfe_u32 s44, s6, 0x10003")
    A("s_and_b32 s45, s6, 7")
    A("s_lshl_b32 s46, s7, 1")
    A("s_add_u32 s46, s46, s44")
    A("v_lshrrev_b32 v2, 4, v0")
    A("v_and_b32 v3, 15, v0")
    A(f"s_mov_b32 s75, {g.spin}")
    A("v_bfe_u32 v9, v0, 3, 1")
    A("s_cmp_gt_u32 s3, 1")
    A("s_cbranch_scc1 L_bulk")
    A("s_setprio 3")
    A("s_movk_i32 s8, 1152")
    A("v_mul_u32_u24 v4, s8, v9")
    A("v_lshlrev_b32 v5, 4, v3")
    A("s_mov_b32 s50, 2304"); A("s_mov_b32 s51, 0x20000"); A("s_mov_b32 s55, 0x20000")
    A("s_cmp_eq_u32 s3, 1")
    A("s_cbranch_scc1 L_s1a")
    XR, WD = 24, 40
    A("v_mad_u32_u24 v4, v2, 36, v4")
    A("s_mul_i32 s9, s45, 144")
    A(f"s_mov_b32 s8, {18*8192}")
    A("v_mad_u32_u24 v5, v2, s8, v5")
    A(f"s_mul_i32 s10, s45, {72*8192}")
    A("s_lshl_b32 s11, s46, 8")
    A("s_add_u32 s10, s10, s11")
    A(f"s_mov_b32 s54, {576*8192}")
    A("s_waitcnt lgkmcnt(0)")
    A("s_mov_b64 s[48:49], s[16:17]")
    A("s_mov_b64 s[52:53], s[22:23]")
    def s0x():
        A(f"buffer_load_dwordx4 v[{XR}:{XR+3}], v4, s[48:51], s9 offen {xs}")
        A(f"buffer_load_dwordx4 v[{XR+4}:{XR+7}], v4, s[48:51], s9 offen offset:16 {xs}")
        A(f"buffer_load_dword v{XR+8}, v4, s[48:51], s9 offen offset:32 {xs}")
    if xlds:
        A("s_mov_b64 s[56:57], s[36:37]"); A("s_movk_i32 s58, 1152"); A("s_mov_b32 s59, 0x20000")
        A(f"s_movk_i32 m0, {XB}")
        A("v_lshlrev_b32 v6, 4, v0")
        for k in range(3): A(f"buffer_load_dwordx4 v6, s[48:51], 0 offen offset:{1024*k} lds")
        A(f"s_movk_i32 m0, {GWB}")
        A("s_nop 0")
        for k in range(2): A(f"buffer_load_dwordx4 v6, s[56:59], 0 offen offset:{1024*k} lds")
    elif xpos == 'first': s0x()
    for t in range(18):
        A(f"buffer_load_dwordx4 v[{WD+4*t}:{WD+4*t+3}], v5, s[52:55], s10 offen nt")
        if t < 17: A("s_add_u32 s10, s10, 8192")
    if xpos == 'last': s0x()
    A("v_mov_b32 v6, 0")
    A(f"ds_write_b32 v6, v6 offset:{QFLAG}")
    A("s_branch L_s0b")
    g.label("L_s1a")
    X1, W1 = 24, 44
    A("s_and_b32 s8, s45, 3")
    A("s_lshr_b32 s9, s6, 2")
    A("s_and_b32 s9, s9, 3")
    A("s_movk_i32 s10, 72")
    A("v_mad_u32_u24 v4, v2, s10, v4")
    A("s_mul_i32 s10, s8, 288")
    A(f"s_mov_b32 s11, {36*9216}")
    A("v_mad_u32_u24 v5, v2, s11, v5")
    A(f"s_mul_i32 s11, s8, {144*9216}")
    A("s_mul_i32 s12, s7, 576"); A("s_add_u32 s11, s11, s12")
    A("s_mul_i32 s12, s9, 144"); A("s_add_u32 s11, s11, s12")
    A(f"s_mov_b32 s54, {576*9216}")
    A("s_mov_b32 s14, 0x01ff01ff"); A("s_mov_b32 s15, 0x01ff01ff")
    A("s_waitcnt lgkmcnt(0)")
    A("s_mov_b64 s[48:49], s[16:17]")
    A("s_mov_b64 s[52:53], s[28:29]")
    def stouches():
        A("s_lshl_b32 s12, s44, 4"); A("s_add_u32 s12, s12, s7"); A("s_lshl_b32 s12, s12, 23"); A("s_add_u32 s12, s12, 0x700000")
        A(f"s_mul_i32 s13, s46, {128*1152}")
        A(f"s_mul_i32 s72, s46, {144*1152}")
        A("s_load_dword s66, s[20:21], s12")
        A("s_load_dword s66, s[24:25], s13")
        A("s_load_dword s66, s[32:33], s72")
        A(f"s_load_dword s66, s[42:43], {0x80000}")
        A(f"s_mov_b32 s73, {OP}")
        A("s_load_dword s66, s[42:43], s73")
        A("s_load_dword s66, s[38:39], 0")
        A("s_load_dword s66, s[40:41], 0")
        A("s_load_dword s66, s[30:31], 0")
        A("s_load_dword s66, s[34:35], 0")
    if stouch == 1: stouches()
    if tlb:
        A("s_cmp_lg_u32 s45, 0")
        A("s_cbranch_scc1 L_notouch")
        A("s_lshl_b32 s12, s44, 4"); A("s_add_u32 s12, s12, s7"); A("s_lshl_b32 s12, s12, 23"); A("s_add_u32 s12, s12, 0x700000")
        A(f"s_mul_i32 s13, s46, {128*1152}")
        A(f"s_mul_i32 s72, s46, {144*1152}")
        A("s_lshl_b32 s73, s46, 5")
        A("s_mov_b64 exec, 1")
        A("v_mov_b32 v160, s12"); A("v_mov_b32 v161, s13"); A("v_mov_b32 v162, s72"); A("v_mov_b32 v163, s73"); A(f"v_mov_b32 v164, {OP}"); A("v_mov_b32 v166, 0")
        for (off, base) in ((160, 20), (161, 24), (162, 32), (164, 42), (163, 38), (166, 40), (163, 30), (163, 34)):
            A(f"global_load_dword v165, v{off}, s[{base}:{base+1}]{tlbfl}")
        A("s_mov_b64 exec, -1")
        g.label("L_notouch")
    def s1x():
        for k in range(4):
            A(f"buffer_load_dwordx4 v[{X1+4*k}:{X1+4*k+3}], v4, s[48:51], s10 offen offset:{16*k} {xs}")
        A(f"buffer_load_dwordx2 v[{X1+16}:{X1+17}], v4, s[48:51], s10 offen offset:64 {xs}")
    if xpos == 'first' and not xlds: s1x()
    A("s_mov_b64 exec, s[14:15]")
    for t in range(24):
        A(f"buffer_load_dwordx4 v[{W1+4*t}:{W1+4*t+3}], v5, s[52:55], s11 offen nt")
        A("s_add_u32 s11, s11, 9216")
    A("s_mov_b64 exec, -1")
    if xpos == 'last': s1x()
    if stouch == 2: stouches()
    A("s_branch L_s1b")

    g.label("L_bulk")
    VD, QF, KF, S, P, AS, OA, DA, DB, T = 24, 88, 104, 120, 136, 144, 152, 80, 76, 164
    WO, PL = 88, 24
    W2R = [104, 108, 112, 116, 156, 160]
    aRED0, aPUBR, aL16, aG0, aGA, aGD, aH, aFR, aFS, aBP0, aBP1, aOUT, vB2 = (S+k for k in range(13))
    GG = S + 14
    A("s_sub_u32 s4, s3, 2")
    if psched: A("s_setprio 2")
    if prio == 1: A("s_setprio 1")
    if prio == 2:
        A("s_setprio 1")
        A("s_cmp_lt_u32 s4, 4")
        A("s_cbranch_scc1 L_prio")
        A("s_setprio 2")
        g.label("L_prio")
    A("s_lshl_b32 s11, s44, 4")
    A("s_add_u32 s11, s11, s7")
    A("s_lshl_b32 s8, s11, 23")
    A("s_lshl_b32 s9, s45, 17")
    A("s_add_u32 s8, s8, s9")
    A("s_add_u32 s8, s8, 0x700000")
    if mask == 'h':
        A(f"s_mul_i32 s11, s2, {hm:#x}"); A(f"s_bfe_u32 s11, s11, {0x50000+hs:#x}")
    for j in range(4):
        A(f"s_add_u32 s9, s4, {8*j}")
        A("s_xor_b32 s9, s9, s11")
        A(f"s_lshl_b32 s{64+j}, s9, 12")
    A("v_xor_b32 v4, v3, v2")
    A("v_lshlrev_b32 v4, 4, v4")
    A("v_lshl_add_u32 v4, v2, 8, v4")
    A("v_xor_b32 v5, 64, v4")
    A("v_xor_b32 v6, 0x80, v4")
    A("v_xor_b32 v7, 0xc0, v4")
    A("v_lshlrev_b32 v8, 4, v3")
    A("v_lshl_add_u32 v8, v2, 10, v8")
    A("s_lshl_b32 s10, s4, 14")
    A(f"s_add_u32 s10, s10, {KB}")
    A("s_mov_b32 s50, 0x20000"); A("s_mov_b32 s51, 0x20000"); A("s_mov_b32 s54, 0x20000"); A("s_mov_b32 s55, 0x20000")
    A("s_mov_b32 m0, s10")
    A("s_waitcnt lgkmcnt(0)")
    A("s_add_u32 s48, s18, s8"); A("s_addc_u32 s49, s19, 0")
    A("s_add_u32 s52, s20, s8"); A("s_addc_u32 s53, s21, 0")
    def setup_mid():
        A("s_load_dword s47, s[42:43], 0")
        g.selectors(S)
        A("v_xor_b32 v12, v3, v2")
        A("v_lshlrev_b32 v12, 4, v12")
        A("v_lshl_add_u32 v12, v3, 8, v12")
        A("v_add_u32 v12, s10, v12")
        A("v_xor_b32 v13, 64, v12")
        A("v_xor_b32 v14, 0x80, v12")
        A("v_xor_b32 v15, 0xc0, v12")
        A("v_lshlrev_b32 v10, 8, v9")
        A("v_lshl_add_u32 v10, v2, 4, v10")
        A("v_lshlrev_b32 v11, 5, v9")
        g.srd(56, 24, 4096*1152)
        A("s_mov_b64 s[60:61], s[32:33]")
        A("s_cmp_lt_u32 s4, 6")
        A(f"s_cselect_b32 s62, {4608*1152}, 0")
        A("s_mov_b32 s63, 0x20000")
        A("s_barrier")
    def vload(idx):
        j, r = idx // 4, idx % 4
        d = VD + 16*j + 4*r
        A(f"buffer_load_dwordx4 v[{d}:{d+3}], v8, s[52:55], s{64+j} offen offset:{256*r} nt")
    def qk_tile(j):
        for jj in range(4):
            A(f"ds_read_b128 v[{KF+4*jj}:{KF+4*jj+3}], v{12+jj} offset:{4096*j}")
        for jj in range(4):
            A(f"s_waitcnt lgkmcnt({3-jj})")
            c = "0" if jj == 0 else f"v[{S+4*j}:{S+4*j+3}]"
            A(f"v_mfma_f32_16x16x32_bf16 v[{S+4*j}:{S+4*j+3}], v[{KF+4*jj}:{KF+4*jj+3}], v[{QF+4*jj}:{QF+4*jj+3}], {c}")
    def c_q01():
        A("s_waitcnt lgkmcnt(0)")
        g.tag()
        g.stamp(1)
        A("v_mov_b32 v4, 0")
        g.label("L_qspin")
        A(f"ds_read_b32 v5, v4 offset:{QFLAG}")
        for jj in range(4):
            A(f"ds_read_b128 v[{QF+4*jj}:{QF+4*jj+3}], v10 offset:{QB+64*jj}")
        A("s_waitcnt lgkmcnt(4)")
        A("v_readfirstlane_b32 s72, v5")
        A("s_cmp_eq_u32 s72, 1")
        A("s_cbranch_scc1 L_qok")
        A("s_sleep 2")
        A("s_sub_u32 s75, s75, 1")
        A("s_cmp_lg_u32 s75, 0")
        A("s_cbranch_scc1 L_qspin")
        g.label("L_qok")
        g.stamp(2)
        qk_tile(0); qk_tile(1)
    def c_q23():
        qk_tile(2); qk_tile(3)
        A("s_nop 3")
    def c_round():
        for j in range(4):
            for h in range(2):
                a = S + 4*j + 2*h
                A(f"v_cvt_pk_bf16_f32 v{T}, v{a}, v{a+1}")
                A(f"v_lshlrev_b32 v{a}, 16, v{T}")
                A(f"v_and_b32 v{a+1}, 0xffff0000, v{T}")
                A(f"v_mul_f32 v{a}, {SCALE:#x}, v{a}")
                A(f"v_mul_f32 v{a+1}, {SCALE:#x}, v{a+1}")
                A(f"v_cvt_pk_bf16_f32 v{T}, v{a}, v{a+1}")
                A(f"v_lshlrev_b32 v{a}, 16, v{T}")
                A(f"v_and_b32 v{a+1}, 0xffff0000, v{T}")
    def c_soft():
        A(f"v_max3_f32 v{T}, v{S}, v{S+1}, v{S+2}")
        for k in range(3, 15, 2):
            A(f"v_max3_f32 v{T}, v{T}, v{S+k}, v{S+k+1}")
        A(f"v_max_f32 v{T}, v{T}, v{S+15}")
        g.swap_reduce("v_max_f32", T, T+1, 16)
        g.swap_reduce("v_max_f32", T, T+1, 32)
        A("s_lshl_b32 s11, s4, 2")
        A(f"v_add_u32 v{T+3}, s11, v11")
        A(f"s_mov_b32 s72, {LOG2E:#x}")
        A(f"v_mul_f32 v{T+1}, {LOG2E^0x80000000:#x}, v{T}")
        for k in range(16):
            A(f"v_fma_f32 v{S+k}, v{S+k}, s72, v{T+1}")
        for k in range(16):
            A(f"v_exp_f32 v{S+k}, v{S+k}")
        A("s_nop 0")
        for k in range(8):
            A(f"v_cvt_pk_bf16_f32 v{P+k}, v{S+2*k}, v{S+2*k+1}")
        A(f"v_add_f32 v{T+2}, v{S}, v{S+1}")
        for k in range(2, 16):
            A(f"v_add_f32 v{T+2}, v{T+2}, v{S+k}")
        g.swap_reduce("v_add_f32", T+2, T+1, 16)
        g.swap_reduce("v_add_f32", T+2, T+1, 32)
        A("s_mov_b64 exec, 0x101")
        A(f"ds_write_b32 v{T+3}, v{T} offset:{MW}")
        A(f"ds_write_b32 v{T+3}, v{T+2} offset:{LW}")
        A("s_mov_b64 exec, -1")
        g.stamp(3)
    def c_addr():
        g.srd(48, 42, WS_BYTES)
        A("s_lshl_b32 s72, s4, 10")
        A(f"v_lshlrev_b32 v{aL16}, 4, v0")
        A(f"v_add_u32 v{aRED0}, s72, v{aL16}")
        A("s_and_b32 s72, s4, 1")
        A("s_lshl_b32 s73, s72, 9")
        A(f"v_and_b32 v{aPUBR}, 1, v0")
        A(f"v_lshlrev_b32 v{aPUBR}, 8, v{aPUBR}")
        A(f"v_bfe_u32 v4, v0, 1, 4")
        A(f"v_lshl_add_u32 v{aPUBR}, v4, 4, v{aPUBR}")
        A(f"v_add_u32 v{aPUBR}, s73, v{aPUBR}")
        A("s_lshl_b32 s12, s7, 1"); A("s_add_u32 s12, s12, s72"); A("s_lshl_b32 s12, s12, 1"); A("s_add_u32 s12, s12, s44")
        A("s_lshl_b32 s12, s12, 3"); A("s_add_u32 s12, s12, s45"); A(f"s_mul_i32 s12, s12, {OREC}"); A(f"s_add_u32 s12, s12, {OPT}")
        A("s_lshl_b32 s13, s72, 5")
        A("v_mov_b32 v7, s13")
        A(f"s_movk_i32 s72, {OREC}")
        A(f"v_and_b32 v4, 3, v0")
        A(f"v_lshlrev_b32 v4, 4, v4")
        A(f"v_lshrrev_b32 v5, 2, v0")
        A(f"v_mad_u32_u24 v{aG0}, v5, s72, v4")
        A(f"s_mul_i32 s14, s46, {16*OREC}")
        A(f"s_add_u32 s14, s14, {OPT}")
        A("s_lshl_b32 s15, s4, 6")
        A("s_add_u32 s15, s15, s14")
        A(f"v_lshlrev_b32 v{aBP0}, 7, v9")
        A(f"v_lshl_add_u32 v{aBP0}, v2, 2, v{aBP0}")
        A(f"v_add_u32 v{aBP1}, 64, v{aBP0}")
        A("s_mul_i32 s72, s4, 48")
        A(f"v_mul_u32_u24 v{aH}, 12, v2")
        A("s_movk_i32 s73, 288")
        A(f"v_mad_u32_u24 v{aH}, v9, s73, v{aH}")
        A(f"v_add_u32 v{aH}, s72, v{aH}")
        A(f"v_lshrrev_b32 v5, 3, v0")
        A(f"v_lshlrev_b32 v{aFS}, 12, v5")
        A(f"v_and_b32 v6, 7, v0")
        A(f"v_lshl_add_u32 v{aFS}, v6, 4, v{aFS}")
        A("v_cmp_lt_u32 vcc, 17, v0")
        A("v_add_u32 v5, 46, v0")
        A("s_nop 0")
        A("v_cndmask_b32 v4, v0, v5, vcc")
        A("v_lshrrev_b32 v5, 1, v4")
        A(f"v_lshlrev_b32 v{aFR}, 4, v5")
        A("v_and_b32 v5, 1, v4")
        A(f"v_lshl_add_u32 v{aFR}, v5, 8, v{aFR}")
        A(f"v_and_b32 v{aFR}, 0x3ff, v{aFR}")
        A(f"s_mul_i32 s16, s45, {5*4096}")
        A("s_lshl_b32 s73, s46, 7"); A("s_add_u32 s16, s16, s73"); A(f"s_add_u32 s16, s16, {OP}")
        g.srd(68, 34, 1152)
        if rspread:
            A("s_lshl_b32 s6, s45, 2"); A("s_sub_u32 s6, s46, s6"); A("s_and_b32 s6, s6, 31")
        else: A("s_mov_b32 s6, s46")
        if b2one:
            A("s_cmp_eq_u32 s4, 4"); A("s_cselect_b32 s70, s70, 0")
            A("s_cmp_lt_u32 s6, 5"); A("s_cselect_b32 s70, s70, 0")
        A("s_lshl_b32 s72, s6, 6")
        A("v_lshl_add_u32 v5, v6, 3, s72")
        A("v_cmp_lt_u32 vcc, 0x8f, v5")
        A("v_subrev_u32 v6, 0x90, v5")
        A("v_mov_b32 v4, 0")
        A("v_cndmask_b32 v5, v5, v6, vcc")
        A("v_mov_b32 v6, 8")
        A(f"v_cndmask_b32 v{aGA}, v4, v6, vcc")
        A("s_mul_i32 s21, s45, 144")
        A(f"buffer_load_dwordx2 v[{vB2}:{vB2+1}], v5, s[68:71], s21 offen {xs}")
        A(f"v_mul_u32_u24 v6, 0x90, v{aGA}")
        A(f"v_add_u32 v{aOUT}, v5, v6")
        A("s_mul_i32 s17, s45, 5"); A("s_add_u32 s17, s17, s6"); A("s_lshl_b32 s17, s17, 12"); A(f"s_add_u32 s17, s17, {OP}")
        A(f"v_lshrrev_b32 v{aGD}, 5, v0")
        A(f"v_lshlrev_b32 v{aGD}, 3, v{aGD}")
        A(f"s_movk_i32 s72, {4*1152}")
        A("v_lshlrev_b32 v4, 4, v3")
        A("v_mad_u32_u24 v5, v2, s72, v4")
        A(f"s_movk_i32 s72, {6*1152}")
        A("v_mad_u32_u24 v6, v2, s72, v4")
        A("s_lshl_b32 s18, s46, 3"); A("s_add_u32 s18, s18, s4"); A(f"s_mul_i32 s18, s18, {16*1152}")
        A("s_mul_i32 s73, s45, 144"); A("s_add_u32 s18, s18, s73")
        A("s_mul_i32 s19, s46, 6"); A("s_add_u32 s19, s19, s4"); A(f"s_mul_i32 s19, s19, {24*1152}")
        A("s_add_u32 s19, s19, s73")
        A(f"s_add_u32 s20, s19, {3*1152}")
        A("s_mov_b32 s22, 0x01ff01ff"); A("s_mov_b32 s23, 0x01ff01ff")
    def small(k):
        if k < 4: A(f"buffer_load_dwordx4 v[{WO+4*k}:{WO+4*k+3}], v5, s[56:59], s18 offen offset:{1152*k} nt")
        else:
            t = k - 4
            A(f"buffer_load_dwordx4 v[{W2R[t]}:{W2R[t]+3}], v6, s[60:63], s{19 + t//3} offen offset:{1152*(t%3)} nt")
    n = 0
    for j in range(4):
        if j > 0:
            A(f"s_add_u32 m0, s10, {4096*j}")
            if n < W: A("s_nop 0")
        for t4 in range(4):
            if n >= W: A(f"s_waitcnt vmcnt({W-1})")
            if n == W: g.stamp(12)
            A(f"buffer_load_dwordx4 v{4+t4}, s[48:51], s{64+j} offen offset:{1024*t4} nt lds")
            n += 1
            if n == W: setup_mid()
    chunks = {NQ: c_q01, NQ+1: c_q23, NQ+2: c_round, NQ+3: c_soft, NQ+4: c_addr}
    assert NQ >= W and NQ + 4 <= 15
    WL = W if W2 is None else W2
    assert NQ >= WL
    for idx in range(16):
        A(f"s_waitcnt vmcnt({(W if idx < W2at else WL)-1})")
        vload(idx)
        if psched and idx in psched: A(f"s_setprio {psched[idx]}")
        if idx in chunks: chunks[idx]()
    g.stamp(4)
    if prio: A("s_setprio 0")
    if nsmall0:
        A("s_mov_b64 exec, s[22:23]")
        for k in range(nsmall0): small(k)
        A("s_mov_b64 exec, -1")
    issued = [nsmall0]
    def pv_after(t):
        if inter and t > 15 - WL and issued[0] < 10 and t < 15:
            A("s_mov_b64 exec, s[22:23]")
            small(issued[0]); issued[0] += 1
            A("s_mov_b64 exec, -1")
    g.gemv_chain(16, P, VD, AS, OA, lambda t: None if t <= 15 - WL else 15 - t + issued[0], pv_after)
    def rest_small():
        if issued[0] < 10:
            A("s_mov_b64 exec, s[22:23]")
            while issued[0] < 10:
                small(issued[0]); issued[0] += 1
            A("s_mov_b64 exec, -1")
    if smallpos == 'pre': rest_small()
    A("s_mov_b64 s[68:69], s[40:41]"); A("s_lshl_b32 s13, s7, 2"); A("s_add_u32 s13, s13, 128")
    A("s_mov_b64 s[64:65], s[42:43]")
    A("s_cmp_ge_u32 s4, 6")
    A("s_cselect_b32 s70, 256, 0"); A("s_mov_b32 s71, 0x20000")
    A(f"s_cselect_b32 s66, {WS_BYTES}, 0")
    A("s_mov_b32 s67, 0x20000")
    A("s_nop 1")
    A(f"ds_write_b128 v{aRED0}, v[{OA}:{OA+3}] offset:{RED0}")
    A("s_waitcnt lgkmcnt(0)")
    g.stamp(5)
    A("s_barrier")
    if smallpos == 'post': rest_small()
    A(f"ds_read_b64 v[{GG}:{GG+1}], v{aGD} offset:{GB}")
    A("s_cmp_lt_u32 s4, 6")
    A("s_cbranch_scc1 L_nopub")
    F, OR, LR, ST = PL, PL+8, PL+40, PL+48
    def ystore():
        A("s_mov_b64 s[8:9], exec")
        A("s_mov_b32 exec_lo, -1"); A("s_mov_b32 exec_hi, 0xff")
        A(f"buffer_store_dwordx4 v[{ST}:{ST+3}], v{aL16}, s[64:67], s12 offen sc1")
        A("s_mov_b32 s66, 0")
        A("s_mov_b64 exec, s[8:9]")
    if tailprio: A("s_setprio 3")
    A(f"ds_read_b128 v[{F}:{F+3}], v7 offset:{MW}")
    A(f"ds_read_b128 v[{F+4}:{F+7}], v7 offset:{MW+16}")
    for w in range(8):
        A(f"ds_read_b128 v[{OR+4*w}:{OR+4*w+3}], v{aPUBR} offset:{RED0+1024*w}")
    A(f"ds_read_b128 v[{LR}:{LR+3}], v7 offset:{LW}")
    A(f"ds_read_b128 v[{LR+4}:{LR+7}], v7 offset:{LW+16}")
    A(f"s_mov_b32 s72, {LOG2E:#x}")
    A("s_waitcnt lgkmcnt(10)")
    A(f"v_max3_f32 v{T+1}, v{F}, v{F+1}, v{F+2}")
    A(f"v_max3_f32 v{T}, v{F+3}, v{F+4}, v{F+5}")
    A(f"v_max3_f32 v{T+1}, v{T+1}, v{F+6}, v{F+7}")
    A(f"v_max_f32 v{T+1}, v{T+1}, v{T}")
    A(f"v_mul_f32 v{T}, {LOG2E^0x80000000:#x}, v{T+1}")
    for w in range(8): A(f"v_fma_f32 v{F+w}, v{F+w}, s72, v{T}")
    for w in range(8): A(f"v_exp_f32 v{F+w}, v{F+w}")
    A("s_waitcnt lgkmcnt(9)")
    for k in range(4): A(f"v_mul_f32 v{ST+k}, v{F}, v{OR+k}")
    for w in range(1, 8):
        A(f"s_waitcnt lgkmcnt({9-w})")
        for k in range(4): A(f"v_fmac_f32 v{ST+k}, v{F+w}, v{OR+4*w+k}")
    g.tag4(ST, [ST, ST+1, ST+2, ST+3])
    A("s_waitcnt lgkmcnt(0)")
    A("s_mov_b32 exec_lo, 0"); A("s_mov_b32 exec_hi, 0xff")
    A(f"v_mul_f32 v{ST+2}, v{F}, v{LR}")
    for k in range(1, 8): A(f"v_fmac_f32 v{ST+2}, v{F+k}, v{LR+k}")
    A(f"v_mov_b32 v{ST}, v{T+1}")
    A(f"v_mov_b32 v{ST+1}, v1")
    A(f"v_mov_b32 v{ST+3}, v1")
    A("s_mov_b32 exec_lo, -1")
    A(f"buffer_store_dwordx4 v[{ST}:{ST+3}], v{aL16}, s[48:51], s12 offen")
    A("s_mov_b64 exec, -1")
    for k in range(4): A(f"v_mov_b32 v{DB+k}, 0")
    A("s_cmp_eq_u32 s5, 0")
    A("s_cbranch_scc1 L_now2")
    ystore()
    A("s_branch L_now2")
    g.label("L_nopub")
    A(f"ds_read2_b32 v[{P}:{P+1}], v{aH} offset0:{HB//4} offset1:{HB//4+1}")
    A(f"ds_read_b32 v{P+2}, v{aH} offset:{HB+8}")
    A("s_waitcnt lgkmcnt(0)")
    g.gemv_chain(6, P, W2R, AS, DB, lambda t: 0 if t == 0 else None)
    A("s_nop 7")
    for k in range(4): A(f"v_mul_f32 v{DB+k}, v{GG+1}, v{DB+k}")
    g.label("L_now2")
    A("v_mov_b32 v7, 0")
    g.stamp(6)
    def issue1():
        A(f"buffer_load_dwordx4 v[{PL}:{PL+3}], v{aG0}, s[48:51], s15 offen {p1}")
        A(f"buffer_load_dwordx4 v[{PL+4}:{PL+7}], v{aG0}, s[48:51], s14 offen offset:512 {p1}")
    def check1():
        A(f"v_cmpx_eq_u32 vcc, s47, v{PL+5}")
        A(f"v_cmpx_eq_u32 vcc, s47, v{PL+7}")
        g.check4(PL, PL+8)
    g.poll("1", issue1, check1, "-1", s1[0], s1[1], 16, st=10, fallback=ystore)
    A(f"buffer_load_dword v{T+2}, v7, s[68:71], s13 offen {ph}")
    A("s_nop 2")
    g.stamp(7)
    Ms, Ls = PL+4, PL+6
    m, w_, t_, u_ = PL+8, PL+9, PL+10, PL+11
    g.dpp("v_max_f32", m, Ms, "row_ror:4")
    A("s_nop 1")
    g.dpp("v_max_f32", m, m, "row_ror:8")
    g.swap_reduce("v_max_f32", m, u_, 16)
    A(f"v_sub_f32 v{w_}, v{Ms}, v{m}")
    A(f"v_mul_f32 v{w_}, {LOG2E:#x}, v{w_}")
    A(f"v_exp_f32 v{w_}, v{w_}")
    g.clean(range(PL, PL+4))
    A(f"v_mul_f32 v{t_}, v{w_}, v{Ls}")
    for k in range(4): A(f"v_mul_f32 v{PL+k}, v{w_}, v{PL+k}")
    for ctl in ("row_ror:4", "row_ror:8"):
        for r in (t_, PL, PL+1, PL+2, PL+3):
            g.dpp("v_add_f32", r, r, ctl)
    A(f"v_mov_b32 v{u_}, v{t_}")
    A("s_nop 0")
    A(f"v_permlane16_swap_b32 v{PL}, v{PL+2}")
    A(f"v_permlane16_swap_b32 v{PL+1}, v{PL+3}")
    A(f"v_permlane16_swap_b32 v{t_}, v{u_}")
    A(f"v_add_f32 v{PL}, v{PL}, v{PL+2}")
    A(f"v_add_f32 v{PL+1}, v{PL+1}, v{PL+3}")
    A(f"v_add_f32 v{t_}, v{t_}, v{u_}")
    A(f"v_rcp_f32 v{t_}, v{t_}")
    A("s_nop 0")
    A(f"v_mul_f32 v{PL}, v{t_}, v{PL}")
    A(f"v_mul_f32 v{PL+1}, v{t_}, v{PL+1}")
    A(f"v_cvt_pk_bf16_f32 v{PL}, v{PL}, v{PL+1}")
    A(f"ds_bpermute_b32 v{P}, v{aBP0}, v{PL}")
    A(f"ds_bpermute_b32 v{P+1}, v{aBP1}, v{PL}")
    A("s_waitcnt lgkmcnt(0)")
    g.gemv_chain(4, P, WO, AS, DA, lambda t: None)
    A("s_nop 7")
    for k in range(4): A(f"v_fmac_f32 v{DB+k}, v{GG}, v{DA+k}")
    A(f"ds_write_b128 v{aRED0}, v[{DB}:{DB+3}] offset:{RED1}")
    A("s_waitcnt lgkmcnt(0)")
    g.stamp(8)
    A("s_barrier")
    A("s_cmp_ge_u32 s4, 1")
    A("s_cbranch_scc1 L_final")
    RA = PL+8
    for w in range(8):
        A(f"ds_read_b128 v[{RA+4*w}:{RA+4*w+3}], v{aFR} offset:{RED1+1024*w}")
    A("s_mov_b32 exec_hi, 0xff")
    A("s_waitcnt lgkmcnt(6)")
    for e in range(4): A(f"v_add_f32 v{PL+e}, v{RA+e}, v{RA+4+e}")
    for w in range(2, 8):
        A(f"s_waitcnt lgkmcnt({7-w})")
        for e in range(4): A(f"v_add_f32 v{PL+e}, v{PL+e}, v{RA+4*w+e}")
    g.tag4(PL, [PL, PL+1, PL+2, PL+3])
    A(f"buffer_store_dwordx4 v[{PL}:{PL+3}], v{aFS}, s[48:51], s16 offen {ofl}")
    if probe:
        A("s_cmp_ge_u32 s2, 8"); A("s_cbranch_scc1 L_end")
        A("s_memrealtime s[76:77]"); A("s_movk_i32 s70, 256")
        A("s_lshl_b32 s12, s2, 2"); A("s_add_u32 s12, s12, 32"); A("v_mov_b32 v4, 0"); A("s_waitcnt lgkmcnt(0)"); A("v_mov_b32 v5, s76")
        A("s_mov_b64 exec, 1")
        A("buffer_store_dword v5, v4, s[68:71], s12 offen")
    if diag:
        g.stamp(9)
        g.label("L_dump")
        g.dump_stamps(13)
    A("s_endpgm")
    g.label("L_final")
    A("s_cmp_lt_u32 s4, 6")
    A("s_cbranch_scc1 L_nohelp")
    A("s_waitcnt vmcnt(0)")
    A(f"v_readfirstlane_b32 s10, v{T+2}")
    A("s_cmp_eq_u32 s10, 0")
    A("s_cbranch_scc1 L_nohelp")
    ystore()
    g.label("L_nohelp")
    if diag: A("s_mov_b32 s94, 0")
    A("s_cmp_lg_u32 s4, 4")
    A("s_cbranch_scc1 " + ("L_dump" if diag else "L_end"))
    A("s_cmp_ge_u32 s6, 5")
    A("s_cbranch_scc1 " + ("L_dump" if diag else "L_end"))
    FIN = PL + 44 if stag else PL
    def issue2():
        for k in range(4):
            A(f"buffer_load_dwordx4 v[{PL+4*k}:{PL+4*k+3}], v{aL16}, s[48:51], s17 offen offset:{1024*k} {p2}")
    def check2():
        for k in range(4): g.check4(PL+4*k, PL+20)
    if pre2: A(f's_sleep {pre2}')
    if not stag: issue2()
    if stag: issue2()
    A(f"ds_read_b64 v[{PL+18}:{PL+19}], v{aGA} offset:{GB}")
    g.srd(56, 38, 2304)
    A("s_cmp_eq_u32 s6, 4")
    A("s_cselect_b64 s[10:11], 0xf, 0xff")
    A("s_waitcnt lgkmcnt(0)")
    BI = PL + 52
    A(f"v_lshlrev_b32 v{BI}, 16, v{vB2}"); A(f"v_and_b32 v{BI+1}, 0xffff0000, v{vB2}")
    A(f"v_lshlrev_b32 v{BI+2}, 16, v{vB2+1}"); A(f"v_and_b32 v{BI+3}, 0xffff0000, v{vB2+1}")
    for e in range(4): A(f"v_mul_f32 v{BI+e}, v{PL+19}, v{BI+e}")
    if not stag:
        g.poll("2", issue2, check2, "-1", s2[0], s2[1], s2[2], first_issue=False)
        g.stamp(10)
        g.clean(range(PL, PL+16))
        for k in range(1, 4):
            for e in range(4): A(f"v_add_f32 v{PL+e}, v{PL+e}, v{PL+4*k+e}")
    else:
        SA, SB = PL, PL+24
        def iss(base):
            for k in range(4):
                A(f"buffer_load_dwordx4 v[{base+4*k}:{base+4*k+3}], v{aL16}, s[48:51], s17 offen offset:{1024*k} {p2}")
        def chk(base, lab):
            for k in range(4): g.check4(base+4*k, PL+20)
            A("s_nop 1")
            A("s_cmp_eq_u64 exec, -1")
            A("s_mov_b64 exec, -1")
            A(f"s_cbranch_scc1 {lab}")
        g.label("L_p2")
        A(f"s_sleep {stag}")
        iss(SB)
        A("s_waitcnt vmcnt(4)")
        chk(SA, "L_p2a")
        A(f"s_sleep {stag}")
        iss(SA)
        A("s_waitcnt vmcnt(4)")
        chk(SB, "L_p2b")
        A("s_sub_u32 s75, s75, 1")
        A("s_cmp_lg_u32 s75, 0")
        A("s_cbranch_scc1 L_p2")
        g.label("L_p2b")
        g.clean(range(SB, SB+16))
        for e in range(4): A(f"v_add_f32 v{SB+e}, v{SB+e}, v{SB+4+e}")
        for e in range(4): A(f"v_add_f32 v{SB+8+e}, v{SB+8+e}, v{SB+12+e}")
        for e in range(4): A(f"v_add_f32 v{FIN+e}, v{SB+e}, v{SB+8+e}")
        A("s_branch L_p2c")
        g.label("L_p2a")
        g.clean(range(SA, SA+16))
        for e in range(4): A(f"v_add_f32 v{SA+e}, v{SA+e}, v{SA+4+e}")
        for e in range(4): A(f"v_add_f32 v{SA+8+e}, v{SA+8+e}, v{SA+12+e}")
        for e in range(4): A(f"v_add_f32 v{FIN+e}, v{SA+e}, v{SA+8+e}")
        g.label("L_p2c")
        g.stamp(10)
    for e in range(4): g.dpp("v_add_f32", FIN+e, FIN+e, "row_ror:8")
    for which in (16, 32):
        for e in range(4): A(f"v_mov_b32 v{FIN+4+e}, v{FIN+e}")
        for e in range(4): A(f"v_permlane{which}_swap_b32 v{FIN+e}, v{FIN+4+e}")
        for e in range(4): A(f"v_add_f32 v{FIN+e}, v{FIN+e}, v{FIN+4+e}")
    for e in range(4): A(f"v_add_f32 v{FIN+e}, v{FIN+e}, v{BI+e}")
    A(f"v_cvt_pk_bf16_f32 v{FIN}, v{FIN}, v{FIN+1}")
    A(f"v_cvt_pk_bf16_f32 v{FIN+1}, v{FIN+2}, v{FIN+3}")
    A("s_mov_b64 exec, s[10:11]")
    A(f"buffer_store_dwordx2 v[{FIN}:{FIN+1}], v{aOUT}, s[56:59], s21 offen")
    A("s_or_b32 s8, s45, s6")
    A("s_cmp_lg_u32 s8, 0")
    A("s_cbranch_scc1 L_fin2")
    A("s_mov_b64 exec, 1")
    A(f"buffer_store_dword v1, v7, s[48:51], 0 offen sc1")
    g.label("L_fin2")
    if diag:
        g.stamp(9)
        g.dump_stamps(13)
    A("s_endpgm")

    g.label("L_s0b")
    XR, WD, AS, D, GX, GW = 24, 40, 112, 120, 124, 134
    A("v_and_b32 v6, 31, v0")
    A("v_mul_u32_u24 v8, 36, v6")
    A("v_lshrrev_b32 v7, 5, v0")
    A("s_movk_i32 s8, 1152")
    A("v_mad_u32_u24 v11, v7, s8, v8")
    if not xlds:
        g.srd(56, 36, 1152)
        A(f"buffer_load_dwordx4 v[{GX}:{GX+3}], v11, s[48:51], 0 offen {xs}")
        A(f"buffer_load_dwordx4 v[{GX+4}:{GX+7}], v11, s[48:51], 0 offen offset:16 {xs}")
        A(f"buffer_load_dword v{GX+8}, v11, s[48:51], 0 offen offset:32 {xs}")
        A(f"buffer_load_dwordx4 v[{GW}:{GW+3}], v8, s[56:59], 0 offen {xs}")
        A(f"buffer_load_dwordx4 v[{GW+4}:{GW+7}], v8, s[56:59], 0 offen offset:16 {xs}")
        A(f"buffer_load_dword v{GW+8}, v8, s[56:59], 0 offen offset:32 {xs}")
    g.selectors(144)
    g.srd(60, 42, WS_BYTES)
    A("v_lshlrev_b32 v10, 13, v7")
    A("v_lshl_add_u32 v10, v6, 4, v10")
    A("s_lshl_b32 s10, s7, 14"); A("s_lshl_b32 s11, s45, 10"); A("s_add_u32 s11, s11, s10")
    A("s_lshl_b32 s8, s44, 9"); A("s_add_u32 s11, s11, s8"); A(f"s_add_u32 s11, s11, {QP}")
    A("s_lshl_b32 s8, s44, 13"); A("s_add_u32 s64, s10, s8"); A(f"s_add_u32 s64, s64, {QP}")
    A("s_add_u32 s65, s64, 4096")
    A("v_lshlrev_b32 v12, 4, v0")
    A("v_lshlrev_b32 v13, 9, v0")
    A("v_lshlrev_b32 v14, 4, v3")
    A("v_and_b32 v15, 1, v2")
    A("v_lshl_add_u32 v14, v15, 3, v14")
    A("v_lshl_add_u32 v14, v7, 8, v14")
    g.srd(68, 40, 256)
    A("s_lshl_b32 s13, s7, 2"); A("s_add_u32 s13, s13, 128")
    A("s_cmp_eq_u32 s5, 0")
    A("s_cbranch_scc1 L_placed")
    A("v_mov_b32 v150, 0"); A("v_mov_b32 v5, 1")
    A("buffer_store_dword v5, v150, s[68:71], s13 offen sc1")
    A("s_waitcnt vmcnt(0)")
    g.label("L_placed")
    if probe:
        A("s_cmp_ge_u32 s2, 8"); A("s_cbranch_scc1 L_np0")
        A("s_lshl_b32 s12, s2, 2"); A("v_mov_b32 v4, 0"); A("v_mov_b32 v5, s76")
        A("s_mov_b64 exec, 1")
        A("buffer_store_dword v5, v4, s[68:71], s12 offen")
        A("s_mov_b64 exec, -1")
        A("s_waitcnt vmcnt(0)")
        g.label("L_np0")
    A("s_waitcnt lgkmcnt(0)" + (" vmcnt(18)" if xlds else ""))
    A("s_barrier")
    NG = 0 if xlds else 6
    if xlds:
        A(f"s_add_u32 s9, s9, {XB}")
        A("v_add_u32 v4, s9, v4")
        for k in range(4): A(f"ds_read2_b32 v[{XR+2*k}:{XR+2*k+1}], v4 offset0:{2*k} offset1:{2*k+1}")
        A(f"ds_read_b32 v{XR+8}, v4 offset:32")
        for k in range(9): A(f"ds_read_b32 v{GX+k}, v11 offset:{XB+4*k}")
        A("s_waitcnt lgkmcnt(9)")
        for k in range(5): A(f"ds_read_b32 v{GW+k}, v8 offset:{GWB+4*k}")
        A("s_waitcnt lgkmcnt(5)")
        for k in range(5, 9): A(f"ds_read_b32 v{GW+k}, v8 offset:{GWB+4*k}")
        A("s_waitcnt lgkmcnt(0)")
    A("s_load_dword s47, s[42:43], 0")
    if not xlds: A("s_waitcnt vmcnt(24)" if xpos == 'first' else "s_waitcnt vmcnt(6)")
    g.stamp(3)
    g.gemv_chain(18, XR, WD, AS, D, lambda t: 17 - t + NG)
    A("s_waitcnt lgkmcnt(0)")
    g.tag()
    g.tag4(AS, [D, D+1, D+2, D+3])
    def ys0():
        A("s_mov_b64 s[72:73], exec")
        A("s_mov_b64 exec, -1")
        A(f"buffer_store_dwordx4 v[{AS}:{AS+3}], v10, s[60:63], s11 offen sc1")
        A("s_mov_b64 exec, s[72:73]")
    def helpcheck(name, ys):
        A("v_mov_b32 v4, 0")
        A(f"buffer_load_dword v5, v4, s[68:71], s13 offen {ph}")
        A("s_waitcnt vmcnt(0)")
        A("v_readfirstlane_b32 s8, v5")
        A("s_cmp_eq_u32 s8, 0")
        A(f"s_cbranch_scc1 L_nh_{name}")
        ys()
        g.label(f"L_nh_{name}")
    A(f"buffer_store_dwordx4 v[{AS}:{AS+3}], v10, s[60:63], s11 offen")
    A("s_cmp_eq_u32 s5, 0")
    A("s_cbranch_scc1 L_q_placed")
    ys0()
    A("s_waitcnt vmcnt(0)")
    g.label("L_q_placed")
    g.stamp(1)
    A("s_waitcnt vmcnt(1)")
    acc, t0, t1, t2, t3 = 144, 145, 146, 147, 148
    A(f"v_mov_b32 v{acc}, 0")
    for k in range(9):
        A(f"v_lshlrev_b32 v{t0}, 16, v{GX+k}")
        A(f"v_and_b32 v{t1}, 0xffff0000, v{GX+k}")
        A(f"v_lshlrev_b32 v{t2}, 16, v{GW+k}")
        A(f"v_and_b32 v{t3}, 0xffff0000, v{GW+k}")
        A(f"v_mul_f32 v{t0}, v{t0}, v{t2}")
        A(f"v_mul_f32 v{t1}, v{t1}, v{t3}")
        A(f"v_cvt_pk_bf16_f32 v{t0}, v{t0}, v{t1}")
        A(f"v_lshlrev_b32 v{t1}, 16, v{t0}")
        A(f"v_and_b32 v{t0}, 0xffff0000, v{t0}")
        A(f"v_add_f32 v{acc}, v{acc}, v{t1}")
        A(f"v_add_f32 v{acc}, v{acc}, v{t0}")
    for ctl in ("quad_perm:[1,0,3,2]", "quad_perm:[2,3,0,1]", "row_half_mirror", "row_mirror"):
        A("s_nop 1")
        g.dpp("v_add_f32", acc, acc, ctl)
    g.swap_reduce("v_add_f32", acc, t0, 16)
    g.bf16r(acc, acc)
    A(f"v_mul_f32 v{acc}, {LOG2E^0x80000000:#x}, v{acc}")
    A(f"v_exp_f32 v{acc}, v{acc}")
    A("s_nop 0")
    A(f"v_add_f32 v{acc}, 1.0, v{acc}")
    A(f"v_rcp_f32 v{acc}, v{acc}")
    A("s_nop 0")
    g.bf16r(acc, acc)
    A(f"v_sub_f32 v{acc+1}, 1.0, v{acc}")
    g.bf16r(acc+1, acc+1)
    A("v_lshlrev_b32 v7, 3, v7")
    A("s_mov_b32 exec_lo, 1"); A("s_mov_b32 exec_hi, 1")
    A(f"ds_write_b64 v7, v[{acc}:{acc+1}] offset:{GB}")
    if prepoll:
        A("s_mov_b64 s[14:15], 0xffff")
        A("s_mov_b64 exec, s[14:15]")
        g.poll("pq", lambda: A(f"buffer_load_dwordx4 v[{WD}:{WD+3}], v13, s[60:63], s64 offen offset:496 sc1"), lambda: g.check4(WD, t0), "s[14:15]", 4, 0, 64, fallback=ys0, fbmask=15)
    A("s_mov_b64 exec, -1")
    g.stamp(4)
    def issueq():
        for rb in range(8):
            A(f"buffer_load_dwordx4 v[{WD+4*rb}:{WD+4*rb+3}], v12, s[60:63], s{64+rb//4} offen offset:{1024*(rb%4)} {pq}")
    def checkq():
        for rb in range(8): g.check4(WD+4*rb, t0)
    g.poll("q", issueq, checkq, "-1", 4, 0, 64, fallback=ys0, fbmask=15)
    g.stamp(2)
    g.clean(range(WD, WD+32))
    for rb in range(1, 8):
        for e in range(4): A(f"v_add_f32 v{WD+e}, v{WD+e}, v{WD+4*rb+e}")
    A(f"v_cvt_pk_bf16_f32 v{WD}, v{WD}, v{WD+1}")
    A(f"v_cvt_pk_bf16_f32 v{WD+1}, v{WD+2}, v{WD+3}")
    A(f"ds_write_b64 v14, v[{WD}:{WD+1}] offset:{QB}")
    A("v_mov_b32 v5, 1")
    A("v_mov_b32 v4, 0")
    A("s_waitcnt lgkmcnt(0)")
    A(f"ds_write_b32 v4, v5 offset:{QFLAG}")
    helpcheck("q", ys0)
    A("s_waitcnt lgkmcnt(0)")
    g.stamp(5)
    g.dump_stamps(6)
    A("s_endpgm")
    g.label("L_s1b")
    WD, AS, D, B1 = W1, 140, 148, 152
    NT = 0
    if cw & 1:
        A("s_getpc_b64 s[72:73]")
        g.label("L_pc")
        A(f"s_sub_u32 s72, s72, (L_pc - {KNAME})")
        A("s_subb_u32 s73, s73, 0")
        for k in range(1, 7):
            A(f"s_load_dword s{66+ (k%2)}, s[72:73], {2048*k}")
    if cw & 2:
        A("s_cmp_lg_u32 s45, 0")
        A("s_cbranch_scc1 L_nocw")
        A("s_getpc_b64 s[72:73]")
        g.label("L_pc2")
        A(f"s_sub_u32 s72, s72, (L_pc2 - {KNAME})")
        A("s_subb_u32 s73, s73, 0")
        A("v_lshlrev_b32 v160, 7, v0")
        A("global_load_dword v161, v160, s[72:73]")
        A("v_add_u32 v160, 0x2000, v160")
        A("s_mov_b32 exec_hi, 0")
        A("global_load_dword v161, v160, s[72:73]")
        A("s_mov_b64 exec, -1")
        A("s_waitcnt vmcnt(0)")
        g.label("L_nocw")
    g.srd(56, 30, 9216)
    g.srd(60, 42, WS_BYTES)
    g.srd(68, 40, 256)
    A("s_load_dword s47, s[42:43], 0")
    A("v_and_b32 v6, 31, v0")
    A("v_lshrrev_b32 v7, 5, v0")
    A("v_lshlrev_b32 v10, 4, v0")
    A("s_mul_i32 s13, s46, 18")
    A("v_add_u32 v8, s13, v6")
    A("v_lshlrev_b32 v8, 4, v8")
    A("v_cmp_lt_u32 vcc, 8, v6")
    A("v_add_u32 v12, 0xf7, v6")
    A("v_lshlrev_b32 v13, 10, v0")
    A("v_cndmask_b32 v12, v6, v12, vcc")
    A("v_lshlrev_b32 v12, 4, v12")
    A("v_lshl_add_u32 v12, v7, 9, v12")
    A("s_movk_i32 s12, 288")
    A("v_mul_u32_u24 v14, s12, v7")
    A("v_lshl_add_u32 v14, v6, 4, v14")
    A("s_lshl_b32 s64, s7, 14"); A(f"s_add_u32 s64, s64, {HP}")
    A("s_and_b32 s12, s6, 15"); A("s_lshl_b32 s12, s12, 10"); A("s_add_u32 s65, s64, s12")
    A("s_lshl_b32 s12, s44, 13"); A("s_add_u32 s64, s64, s12")
    A("s_lshl_b32 s13, s7, 2"); A("s_add_u32 s13, s13, 128")
    g.selectors(156)
    A("s_barrier")
    if xlds:
        A("v_add_u32 v4, s10, v4")
        for k in range(9): A(f"ds_read_b64 v[{X1+2*k}:{X1+2*k+1}], v4 offset:{XB+8*k}")
        A("s_waitcnt lgkmcnt(0)")
    else: A(f"s_waitcnt vmcnt({24+NT})" if xpos == 'first' else "s_waitcnt vmcnt(0)")
    def s1_after(t):
        if t < 12:
            A("s_mov_b64 exec, s[14:15]")
            A(f"buffer_load_dwordx4 v[{W1+4*t}:{W1+4*t+3}], v5, s[52:55], s11 offen nt")
            A("s_add_u32 s11, s11, 9216")
            A("s_mov_b64 exec, -1")
    g.gemv_chain(36, X1, [W1 + 4*(t % 24) for t in range(36)], AS, D, lambda t: (24 + min(t, 12) - t - 1 + (NT if t < 24 else 0)), s1_after)
    A("s_waitcnt lgkmcnt(0)")
    g.tag()
    g.tag4(AS, [D, D+1, D+2, D+3])
    def ys1():
        A("s_mov_b64 s[72:73], exec")
        A("s_mov_b64 exec, -1")
        A(f"buffer_store_dwordx4 v[{AS}:{AS+3}], v10, s[60:63], s65 offen sc1")
        A("s_mov_b64 exec, s[72:73]")
    A(f"buffer_store_dwordx4 v[{AS}:{AS+3}], v10, s[60:63], s65 offen")
    A("s_cmp_eq_u32 s5, 0")
    A("s_cbranch_scc1 L_h_placed")
    ys1()
    g.label("L_h_placed")
    g.stamp(1)
    A("s_mov_b32 s14, 0x0003ffff"); A("s_mov_b32 s15, 0x0003ffff")
    A("s_mov_b64 exec, s[14:15]")
    A(f"buffer_load_dwordx4 v[{B1}:{B1+3}], v8, s[56:59], 0 offen {xs}")
    if prepoll:
        A("s_mov_b64 s[10:11], 0xff")
        A("s_mov_b64 exec, s[10:11]")
        g.poll("ph", lambda: A(f"buffer_load_dwordx4 v[{WD}:{WD+3}], v13, s[60:63], s64 offen offset:896 sc1"), lambda: g.check4(WD, 156), "s[10:11]", 8, 0, 64, fallback=ys1, fbmask=15)
        A("s_mov_b64 exec, s[14:15]")
    g.stamp(3)
    def issueh():
        for rb in range(4):
            for k in range(2):
                d = WD + 8*rb + 4*k
                A(f"buffer_load_dwordx4 v[{d}:{d+3}], v12, s[60:63], s64 offen offset:{1024*rb+256*k} {pq}")
    def checkh():
        for k in range(8): g.check4(WD+4*k, 156)
    g.poll("h", issueh, checkh, "s[14:15]", 4, 0, 64, fallback=ys1, fbmask=15)
    g.stamp(2)
    g.clean(range(WD, WD+32))
    for rb in range(1, 4):
        for e in range(8): A(f"v_add_f32 v{WD+e}, v{WD+e}, v{WD+8*rb+e}")
    for d in range(4):
        a, b = WD + 2*d, WD + 2*d + 1
        t0, t1 = 160, 161
        A(f"v_cvt_pk_bf16_f32 v{a}, v{a}, v{b}")
        A(f"v_lshlrev_b32 v{t0}, 16, v{B1+d}")
        A(f"v_and_b32 v{t1}, 0xffff0000, v{B1+d}")
        A(f"v_and_b32 v{b}, 0xffff0000, v{a}")
        A(f"v_lshlrev_b32 v{a}, 16, v{a}")
        A(f"v_add_f32 v{a}, v{a}, v{t0}")
        A(f"v_add_f32 v{b}, v{b}, v{t1}")
        A(f"v_cvt_pk_bf16_f32 v{a}, v{a}, v{b}")
        A(f"v_and_b32 v{b}, 0xffff0000, v{a}")
        A(f"v_lshlrev_b32 v{a}, 16, v{a}")
        A(f"v_max_f32 v{a}, 0, v{a}")
        A(f"v_max_f32 v{b}, 0, v{b}")
        A(f"v_mul_f32 v{a}, v{a}, v{a}")
        A(f"v_mul_f32 v{b}, v{b}, v{b}")
        A(f"v_cvt_pk_bf16_f32 v{156+d}, v{a}, v{b}")
    A(f"ds_write_b128 v14, v[156:159] offset:{HB}")
    A("s_mov_b64 exec, -1")
    if optouch:
        A("s_cmp_ge_u32 s46, 5"); A("s_cbranch_scc1 L_not")
        A("s_mul_i32 s12, s45, 5"); A("s_add_u32 s12, s12, s46"); A("s_lshl_b32 s12, s12, 12"); A(f"s_add_u32 s12, s12, {OP}")
        if optouch == 'ld':
            A("v_lshlrev_b32 v15, 7, v0")
            A("s_mov_b32 exec_hi, 0")
            A("buffer_load_dword v161, v15, s[60:63], s12 offen sc1")
            A("s_mov_b64 exec, -1")
        else:
            A("v_mov_b32 v160, 0"); A("v_mov_b32 v161, 0"); A("v_mov_b32 v162, 0"); A("v_mov_b32 v163, 0")
            for k in range(4): A(f"buffer_store_dwordx4 v[160:163], v10, s[60:63], s12 offen offset:{1024*k} sc1")
        g.label("L_not")
    helpcheck("h", ys1)
    A("s_waitcnt lgkmcnt(0)")
    g.stamp(4); g.stamp(5)
    g.dump_stamps(6)
    g.label("L_end")
    A("s_endpgm")
    body = "\n".join(g.L)
    s = HEADER
    s += f"; @launch grid=(256,1,1) block=(640,1,1) lds={LDS_BYTES}\n"
    s += f""".amdgcn_target "amdgcn-amd-amdhsa--gfx950"
.text
.globl {KNAME}
.p2align 8
.type {KNAME},@function
{KNAME}:
{body}
.section .rodata,"a"
.p2align 6
.amdhsa_kernel {KNAME}
  .amdhsa_next_free_vgpr 168
  .amdhsa_next_free_sgpr 102
  .amdhsa_accum_offset 168
  .amdhsa_group_segment_fixed_size 0
  .amdhsa_kernarg_size 112
  .amdhsa_user_sgpr_count 2
  .amdhsa_user_sgpr_kernarg_segment_ptr 1
  .amdhsa_system_sgpr_workgroup_id_x 1
  .amdhsa_float_denorm_mode_32 3
.end_amdhsa_kernel
"""
    return s

if __name__ == "__main__":
    B = dict(tlb=False, mask='h', tailprio=True, stag=0)
    open("k18.s", "w").write(build(False, **B))
    open("k18d.s", "w").write(build(True, **B))
```

```python
import gen18
B = dict(tlb=False, mask='h', tailprio=True, stag=0)
V = {"cw3": dict(cw=3), "cw1": dict(cw=1), "vt": dict(tlb=True), "st2": dict(stouch=2)}
for k, v in V.items():
    open(f"r_{k}.s", "w").write(gen18.build(False, **{**B, **v}))
```

```python
import sys
from gen_common import KNAME, HEADER

QP   = 0x1000
HP   = 0x80000
OPT  = 0x100000
OREC = 640
OP   = 0x200000
WS_BYTES = 0x400000
QB, HB, GB, MW, LW, QFLAG, RED0, KB = 0, 512, 1088, 1152, 1216, 1280, 2048, 10240
RED1 = KB
XB, GWB = RED0, RED0 + 3072
LDS_BYTES = KB + 131072
LOG2E = 0x3fb8aa3b
SCALE = 0x3db504f3
SEL = 16
SI = 24
SC = 28

class G:
    def __init__(s, diag=False, spin=100000):
        s.L = []; s.diag = diag; s.spin = spin
    def __call__(s, x): s.L.append("    " + x)
    def label(s, x): s.L.append(x + ":")
    def srd(s, d, lo, nbytes):
        s(f"s_mov_b64 s[{d}:{d+1}], s[{lo}:{lo+1}]")
        s(f"s_mov_b32 s{d+2}, {nbytes}"); s(f"s_mov_b32 s{d+3}, 0x20000")
    def stamp(s, k):
        if s.diag:
            s(f"s_memrealtime s[{76+2*k}:{77+2*k}]")
            s("s_waitcnt lgkmcnt(0)")
    def dump_stamps(s, n):
        if not s.diag: return
        s.srd(68, 40, 0x50000)
        s("s_lshl_b32 s72, s2, 10")
        s("s_lshl_b32 s73, s3, 6"); s("s_add_u32 s72, s72, s73"); s("s_add_u32 s72, s72, 4096")
        s("s_mov_b64 exec, 1")
        s("v_mov_b32 v4, 0")
        for k in range(n):
            s(f"v_mov_b32 v5, s{76+2*k}")
            s(f"buffer_store_dword v5, v4, s[68:71], s72 offen offset:{4*k}")
            s("s_nop 1")
    def tag(s):
        s("s_mul_i32 s47, s47, 0x9E3779B1")
        s("s_add_u32 s47, s47, 0x7F4A7C15")
        for k in range(4): s(f"s_mov_b32 s{SI+k}, {0x07060500+k:#x}")
        s(f"s_mov_b32 s{SC}, 0x0c0c0400"); s(f"s_mov_b32 s{SC+1}, 0x0c040100"); s(f"s_mov_b32 s{SC+2}, 0x04020100")
        s("s_mov_b32 s31, 0xffffff00")
        s("v_mov_b32 v1, s47")
    def clean(s, regs):
        for r in regs: s(f"v_and_b32 v{r}, s31, v{r}")
    def tag4(s, dst, src):
        for k in range(4): s(f"v_perm_b32 v{dst+k}, v{src[k]}, v1, s{SI+k}")
    def check4(s, d, t):
        s(f"v_perm_b32 v{t}, v{d+1}, v{d}, s{SC}")
        s(f"v_perm_b32 v{t}, v{d+2}, v{t}, s{SC+1}")
        s(f"v_perm_b32 v{t}, v{d+3}, v{t}, s{SC+2}")
        s(f"v_cmpx_eq_u32 vcc, s47, v{t}")
    def selectors(s, t0):
        a, b, c, d, e = t0, t0+1, t0+2, t0+3, t0+4
        s(f"v_and_b32 v{a}, 1, v0")
        s(f"v_lshlrev_b32 v{a}, 4, v{a}")
        s(f"v_bfe_u32 v{b}, v0, 1, 2")
        s(f"v_mov_b32 v{c}, 0x0d0c")
        s(f"v_mov_b32 v{d}, 0x0f0e")
        s(f"v_mov_b32 v{e}, 0x0c0c0c0c")
        s(f"v_lshlrev_b32 v{c}, v{a}, v{c}")
        s(f"v_lshlrev_b32 v{d}, v{a}, v{d}")
        s(f"v_xor_b32 v{c}, v{c}, v{e}")
        s(f"v_xor_b32 v{d}, v{d}, v{e}")
        for k in range(4):
            s(f"v_cmp_eq_u32 vcc, {k}, v{b}")
            s("s_nop 1")
            s(f"v_cndmask_b32 v{SEL+k}, v{e}, v{c}, vcc")
            s(f"v_cndmask_b32 v{SEL+4+k}, v{e}, v{d}, vcc")
    def perm4(s, dst, src, par):
        for k in range(4):
            s(f"v_perm_b32 v{dst+k}, v{src}, v{src}, v{SEL+4*par+k}")
    def gemv_chain(s, n, xreg, data, aset, acc, waitfn, after=None):
        dreg = (lambda t: data[t]) if isinstance(data, list) else (lambda t: data + 4*t)
        s.perm4(aset, xreg, 0)
        for t in range(n):
            cur = aset + 4*(t & 1); nxt = aset + 4*((t+1) & 1)
            if t+1 < n: s.perm4(nxt, xreg + ((t+1) >> 1), (t+1) & 1)
            else: s("s_nop 1")
            w = waitfn(t)
            if w is not None: s(f"s_waitcnt vmcnt({w})")
            c = "0" if t == 0 else f"v[{acc}:{acc+3}]"
            s(f"v_mfma_f32_16x16x32_bf16 v[{acc}:{acc+3}], v[{cur}:{cur+3}], v[{dreg(t)}:{dreg(t)+3}], {c}")
            if after: after(t)
    def bf16r(s, dst, src):
        s(f"v_cvt_pk_bf16_f32 v{dst}, v{src}, v{src}")
        s(f"v_and_b32 v{dst}, 0xffff0000, v{dst}")
    def swap_reduce(s, op, r, t, which):
        s(f"v_mov_b32 v{t}, v{r}")
        s("s_nop 1")
        s(f"v_permlane{which}_swap_b32 v{r}, v{t}")
        s("s_nop 1")
        s(f"{op} v{r}, v{r}, v{t}")
    def dpp(s, op, dst, src, ctl):
        s(f"{op}_dpp v{dst}, v{src}, v{src} {ctl} row_mask:0xf bank_mask:0xf")
    def poll(s, name, issue, check, full, sleep_few=2, sleep_many=8, many=16, first_issue=True, masked=True, st=None, fallback=None, fbmask=31):
        if fallback: s(f"s_or_b32 s75, s75, {fbmask}")
        if first_issue: issue()
        if st is not None and s.diag:
            s("s_waitcnt vmcnt(0)")
            s.stamp(st)
            s(f"s_mov_b32 s{76+2*(st+1)}, s75")
        s.label(f"L_poll_{name}")
        s("s_waitcnt vmcnt(0)")
        s(f"s_mov_b64 exec, {full}")
        check()
        s("s_nop 1")
        s(f"s_andn2_b64 exec, {full}, exec")
        s(f"s_cbranch_scc0 L_ok_{name}")
        s("s_bcnt1_i32_b64 s74, exec")
        if not masked: s(f"s_mov_b64 exec, {full}")
        s(f"s_sleep {sleep_few}")
        if sleep_many:
            s(f"s_cmp_lt_u32 s74, {many}")
            s(f"s_cbranch_scc1 L_ns_{name}")
            s(f"s_sleep {sleep_many}")
            s.label(f"L_ns_{name}")
        issue()
        if fallback:
            s(f"s_and_b32 s74, s75, {fbmask}")
            s(f"s_cbranch_scc1 L_nf_{name}")
            fallback()
            s.label(f"L_nf_{name}")
        s("s_sub_u32 s75, s75, 1")
        s("s_cmp_lg_u32 s75, 0")
        s(f"s_cbranch_scc1 L_poll_{name}")
        s("s_waitcnt vmcnt(0)")
        s.label(f"L_ok_{name}")
        s(f"s_mov_b64 exec, {full}")
        if st is not None and s.diag:
            s(f"s_sub_u32 s{76+2*(st+1)}, s{76+2*(st+1)}, s75")
            s(f"s_mul_i32 s{76+2*(st+1)}, s{76+2*(st+1)}, 100")
            s(f"s_add_u32 s{76+2*(st+1)}, s{76+2*(st+1)}, s76")

def build(diag=False, W=4, NQ=10, mask='bh', prepoll=False, s1=(1, 4), nsmall0=2, qfl='sc1', ofl='sc1', prio=2, inter=True, smallpos='pre', stag=False, tlb=True, tlbfl='', probe=False, xpos='first', tailprio=False, s2=(1, 4, 24), pre2=0, W2=None, W2at=4, WK=None, psched=None, cw=0, pq='sc1 nt', p1='sc1 nt', p2='sc1', ph='sc1', xs='', xlds=True, b2one=True, optouch='', stouch=0, hm=0x9E3779B1, hs=27, vm=None, rspread=True, cw2=0, bfirst=False, fk='nt', fv='nt', fw='nt', fs='nt'):
    g = G(diag); A = g
    A("s_cmp_ge_u32 s2, 256")
    A("s_cbranch_scc1 L_end")
    A("s_load_dwordx16 s[16:31], s[0:1], 0")
    A("s_load_dwordx8 s[32:39], s[0:1], 64")
    A("s_load_dwordx4 s[40:43], s[0:1], 96")
    if diag or probe: A("s_memrealtime s[76:77]")
    A("v_lshrrev_b32 v1, 6, v0")
    A("v_and_b32 v0, 63, v0")
    A("v_readfirstlane_b32 s3, v1")
    A("s_and_b32 s5, s2, 7")
    A("s_lshr_b32 s6, s2, 3")
    A("s_lshr_b32 s7, s6, 4")
    A("s_lshl_b32 s8, s5, 1")
    A("s_add_u32 s7, s7, s8")
    A("s_getreg_b32 s8, hwreg(HW_REG_XCC_ID, 0, 4)")
    A("s_xor_b32 s5, s5, s8")
    A("s_bfe_u32 s44, s6, 0x10003")
    A("s_and_b32 s45, s6, 7")
    A("s_lshl_b32 s46, s7, 1")
    A("s_add_u32 s46, s46, s44")
    A("v_lshrrev_b32 v2, 4, v0")
    A("v_and_b32 v3, 15, v0")
    A(f"s_mov_b32 s75, {g.spin}")
    A("v_bfe_u32 v9, v0, 3, 1")
    if cw2:
        A("s_cmp_lg_u32 s3, 9")
        A("s_cbranch_scc1 L_nocw2")
        A("s_getpc_b64 s[8:9]")
        g.label("L_pc3")
        A(f"s_sub_u32 s8, s8, (L_pc3 - {KNAME})")
        A("s_subb_u32 s9, s9, 0")
        A("s_lshl_b32 s10, s6, 9")
        A("v_lshl_add_u32 v4, v0, 6, s10")
        A(f"v_min_u32 v4, (L_end - {KNAME}), v4")
        A("s_mov_b64 exec, 0xff")
        A("global_load_dword v167, v4, s[8:9]")
        A("s_mov_b64 exec, -1")
        g.label("L_nocw2")
    X1, W1 = 24, 44
    def service_issue():
        A("s_setprio 3")
        A("s_movk_i32 s8, 1152")
        A("v_mul_u32_u24 v4, s8, v9")
        A("v_lshlrev_b32 v5, 4, v3")
        A("s_mov_b32 s50, 2304"); A("s_mov_b32 s51, 0x20000"); A("s_mov_b32 s55, 0x20000")
        A("s_cmp_eq_u32 s3, 1")
        A("s_cbranch_scc1 L_s1a")
        XR, WD = 24, 40
        A("v_mad_u32_u24 v4, v2, 36, v4")
        A("s_mul_i32 s9, s45, 144")
        A(f"s_mov_b32 s8, {18*8192}")
        A("v_mad_u32_u24 v5, v2, s8, v5")
        A(f"s_mul_i32 s10, s45, {72*8192}")
        A("s_lshl_b32 s11, s46, 8")
        A("s_add_u32 s10, s10, s11")
        A(f"s_mov_b32 s54, {576*8192}")
        A("s_waitcnt lgkmcnt(0)")
        A("s_mov_b64 s[48:49], s[16:17]")
        A("s_mov_b64 s[52:53], s[22:23]")
        if diag: A("s_memrealtime s[88:89]")
        def s0x():
            A(f"buffer_load_dwordx4 v[{XR}:{XR+3}], v4, s[48:51], s9 offen {xs}")
            A(f"buffer_load_dwordx4 v[{XR+4}:{XR+7}], v4, s[48:51], s9 offen offset:16 {xs}")
            A(f"buffer_load_dword v{XR+8}, v4, s[48:51], s9 offen offset:32 {xs}")
        if xlds:
            A("s_mov_b64 s[56:57], s[36:37]"); A("s_movk_i32 s58, 1152"); A("s_mov_b32 s59, 0x20000")
            A(f"s_movk_i32 m0, {XB}")
            A("v_lshlrev_b32 v6, 4, v0")
            for k in range(3): A(f"buffer_load_dwordx4 v6, s[48:51], 0 offen offset:{1024*k} lds")
            A(f"s_movk_i32 m0, {GWB}")
            A("s_nop 0")
            for k in range(2): A(f"buffer_load_dwordx4 v6, s[56:59], 0 offen offset:{1024*k} lds")
        elif xpos == 'first': s0x()
        for t in range(18):
            A(f"buffer_load_dwordx4 v[{WD+4*t}:{WD+4*t+3}], v5, s[52:55], s10 offen {fw}")
            if t < 17: A("s_add_u32 s10, s10, 8192")
        if xpos == 'last': s0x()
        A("v_mov_b32 v6, 0")
        A(f"ds_write_b32 v6, v6 offset:{QFLAG}")
        A("s_branch L_s0b")
        g.label("L_s1a")
        X1, W1 = 24, 44
        A("s_and_b32 s8, s45, 3")
        A("s_lshr_b32 s9, s6, 2")
        A("s_and_b32 s9, s9, 3")
        A("s_movk_i32 s10, 72")
        A("v_mad_u32_u24 v4, v2, s10, v4")
        A("s_mul_i32 s10, s8, 288")
        A(f"s_mov_b32 s11, {36*9216}")
        A("v_mad_u32_u24 v5, v2, s11, v5")
        A(f"s_mul_i32 s11, s8, {144*9216}")
        A("s_mul_i32 s12, s7, 576"); A("s_add_u32 s11, s11, s12")
        A("s_mul_i32 s12, s9, 144"); A("s_add_u32 s11, s11, s12")
        A(f"s_mov_b32 s54, {576*9216}")
        A("s_mov_b32 s14, 0x01ff01ff"); A("s_mov_b32 s15, 0x01ff01ff")
        A("s_waitcnt lgkmcnt(0)")
        A("s_mov_b64 s[48:49], s[16:17]")
        A("s_mov_b64 s[52:53], s[28:29]")
        if diag: A("s_memrealtime s[88:89]")
        def stouches():
            A("s_lshl_b32 s12, s44, 4"); A("s_add_u32 s12, s12, s7"); A("s_lshl_b32 s12, s12, 23"); A("s_add_u32 s12, s12, 0x700000")
            A(f"s_mul_i32 s13, s46, {128*1152}")
            A(f"s_mul_i32 s72, s46, {144*1152}")
            A("s_load_dword s66, s[20:21], s12")
            A("s_load_dword s66, s[24:25], s13")
            A("s_load_dword s66, s[32:33], s72")
            A(f"s_load_dword s66, s[42:43], {0x80000}")
            A(f"s_mov_b32 s73, {OP}")
            A("s_load_dword s66, s[42:43], s73")
            A("s_load_dword s66, s[38:39], 0")
            A("s_load_dword s66, s[40:41], 0")
            A("s_load_dword s66, s[30:31], 0")
            A("s_load_dword s66, s[34:35], 0")
        if stouch == 1: stouches()
        if tlb:
            A("s_cmp_lg_u32 s45, 0")
            A("s_cbranch_scc1 L_notouch")
            A("s_lshl_b32 s12, s44, 4"); A("s_add_u32 s12, s12, s7"); A("s_lshl_b32 s12, s12, 23"); A("s_add_u32 s12, s12, 0x700000")
            A(f"s_mul_i32 s13, s46, {128*1152}")
            A(f"s_mul_i32 s72, s46, {144*1152}")
            A("s_lshl_b32 s73, s46, 5")
            A("s_mov_b64 exec, 1")
            A("v_mov_b32 v160, s12"); A("v_mov_b32 v161, s13"); A("v_mov_b32 v162, s72"); A("v_mov_b32 v163, s73"); A(f"v_mov_b32 v164, {OP}"); A("v_mov_b32 v166, 0")
            for (off, base) in ((160, 20), (161, 24), (162, 32), (164, 42), (163, 38), (166, 40), (163, 30), (163, 34)):
                A(f"global_load_dword v165, v{off}, s[{base}:{base+1}]{tlbfl}")
            A("s_mov_b64 exec, -1")
            g.label("L_notouch")
        def s1x():
            for k in range(4):
                A(f"buffer_load_dwordx4 v[{X1+4*k}:{X1+4*k+3}], v4, s[48:51], s10 offen offset:{16*k} {xs}")
            A(f"buffer_load_dwordx2 v[{X1+16}:{X1+17}], v4, s[48:51], s10 offen offset:64 {xs}")
        if xpos == 'first' and not xlds: s1x()
        A("s_mov_b64 exec, s[14:15]")
        for t in range(24):
            A(f"buffer_load_dwordx4 v[{W1+4*t}:{W1+4*t+3}], v5, s[52:55], s11 offen {fw}")
            A("s_add_u32 s11, s11, 9216")
        A("s_mov_b64 exec, -1")
        if xpos == 'last': s1x()
        if stouch == 2: stouches()
        A("s_branch L_s1b")


    if bfirst:
        A("s_cmp_lt_u32 s3, 2")
        A("s_cbranch_scc1 L_svc")
    else:
        A("s_cmp_gt_u32 s3, 1")
        A("s_cbranch_scc1 L_bulk")
        service_issue()
    g.label("L_bulk")
    VD, QF, KF, S, P, AS, OA, DA, DB, T = 24, 88, 104, 120, 136, 144, 152, 80, 76, 164
    WO, PL = 88, 24
    W2R = [104, 108, 112, 116, 156, 160]
    aRED0, aPUBR, aL16, aG0, aGA, aGD, aH, aFR, aFS, aBP0, aBP1, aOUT, vB2 = (S+k for k in range(13))
    GG = S + 14
    A("s_sub_u32 s4, s3, 2")
    if psched: A("s_setprio 2")
    if prio == 1: A("s_setprio 1")
    if prio == 2:
        A("s_setprio 1")
        A("s_cmp_lt_u32 s4, 4")
        A("s_cbranch_scc1 L_prio")
        A("s_setprio 2")
        g.label("L_prio")
    A("s_lshl_b32 s11, s44, 4")
    A("s_add_u32 s11, s11, s7")
    A("s_lshl_b32 s8, s11, 23")
    A("s_lshl_b32 s9, s45, 17")
    A("s_add_u32 s8, s8, s9")
    A("s_add_u32 s8, s8, 0x700000")
    if mask == 'h':
        A(f"s_mul_i32 s11, s2, {hm:#x}"); A(f"s_bfe_u32 s11, s11, {0x50000+hs:#x}")
    for j in range(4):
        A(f"s_add_u32 s9, s4, {8*j}")
        A("s_xor_b32 s9, s9, s11")
        A(f"s_lshl_b32 s{64+j}, s9, 12")
    A("v_xor_b32 v4, v3, v2")
    A("v_lshlrev_b32 v4, 4, v4")
    A("v_lshl_add_u32 v4, v2, 8, v4")
    A("v_xor_b32 v5, 64, v4")
    A("v_xor_b32 v6, 0x80, v4")
    A("v_xor_b32 v7, 0xc0, v4")
    A("v_lshlrev_b32 v8, 4, v3")
    A("v_lshl_add_u32 v8, v2, 10, v8")
    A("s_lshl_b32 s10, s4, 14")
    A(f"s_add_u32 s10, s10, {KB}")
    A("s_mov_b32 s50, 0x20000"); A("s_mov_b32 s51, 0x20000"); A("s_mov_b32 s54, 0x20000"); A("s_mov_b32 s55, 0x20000")
    A("s_mov_b32 m0, s10")
    A("s_waitcnt lgkmcnt(0)")
    A("s_add_u32 s48, s18, s8"); A("s_addc_u32 s49, s19, 0")
    A("s_add_u32 s52, s20, s8"); A("s_addc_u32 s53, s21, 0")
    if diag: A("s_memrealtime s[98:99]")
    def setup_mid():
        A("s_load_dword s47, s[42:43], 0")
        g.selectors(S)
        A("v_xor_b32 v12, v3, v2")
        A("v_lshlrev_b32 v12, 4, v12")
        A("v_lshl_add_u32 v12, v3, 8, v12")
        A("v_add_u32 v12, s10, v12")
        A("v_xor_b32 v13, 64, v12")
        A("v_xor_b32 v14, 0x80, v12")
        A("v_xor_b32 v15, 0xc0, v12")
        A("v_lshlrev_b32 v10, 8, v9")
        A("v_lshl_add_u32 v10, v2, 4, v10")
        A("v_lshlrev_b32 v11, 5, v9")
        g.srd(56, 24, 4096*1152)
        A("s_mov_b64 s[60:61], s[32:33]")
        A("s_cmp_lt_u32 s4, 6")
        A(f"s_cselect_b32 s62, {4608*1152}, 0")
        A("s_mov_b32 s63, 0x20000")
        A("s_barrier")
    def vload(idx):
        j, r = idx // 4, idx % 4
        d = VD + 16*j + 4*r
        A(f"buffer_load_dwordx4 v[{d}:{d+3}], v8, s[52:55], s{64+j} offen offset:{256*r} {fv}")
    def qk_tile(j):
        for jj in range(4):
            A(f"ds_read_b128 v[{KF+4*jj}:{KF+4*jj+3}], v{12+jj} offset:{4096*j}")
        for jj in range(4):
            A(f"s_waitcnt lgkmcnt({3-jj})")
            c = "0" if jj == 0 else f"v[{S+4*j}:{S+4*j+3}]"
            A(f"v_mfma_f32_16x16x32_bf16 v[{S+4*j}:{S+4*j+3}], v[{KF+4*jj}:{KF+4*jj+3}], v[{QF+4*jj}:{QF+4*jj+3}], {c}")
    def c_q01():
        A("s_waitcnt lgkmcnt(0)")
        g.tag()
        g.stamp(1)
        A("v_mov_b32 v4, 0")
        g.label("L_qspin")
        A(f"ds_read_b32 v5, v4 offset:{QFLAG}")
        for jj in range(4):
            A(f"ds_read_b128 v[{QF+4*jj}:{QF+4*jj+3}], v10 offset:{QB+64*jj}")
        A("s_waitcnt lgkmcnt(4)")
        A("v_readfirstlane_b32 s72, v5")
        A("s_cmp_eq_u32 s72, 1")
        A("s_cbranch_scc1 L_qok")
        A("s_sleep 2")
        A("s_sub_u32 s75, s75, 1")
        A("s_cmp_lg_u32 s75, 0")
        A("s_cbranch_scc1 L_qspin")
        g.label("L_qok")
        g.stamp(2)
        qk_tile(0); qk_tile(1)
    def c_q23():
        qk_tile(2); qk_tile(3)
        A("s_nop 3")
    def c_round():
        for j in range(4):
            for h in range(2):
                a = S + 4*j + 2*h
                A(f"v_cvt_pk_bf16_f32 v{T}, v{a}, v{a+1}")
                A(f"v_lshlrev_b32 v{a}, 16, v{T}")
                A(f"v_and_b32 v{a+1}, 0xffff0000, v{T}")
                A(f"v_mul_f32 v{a}, {SCALE:#x}, v{a}")
                A(f"v_mul_f32 v{a+1}, {SCALE:#x}, v{a+1}")
                A(f"v_cvt_pk_bf16_f32 v{T}, v{a}, v{a+1}")
                A(f"v_lshlrev_b32 v{a}, 16, v{T}")
                A(f"v_and_b32 v{a+1}, 0xffff0000, v{T}")
    def c_soft():
        A(f"v_max3_f32 v{T}, v{S}, v{S+1}, v{S+2}")
        for k in range(3, 15, 2):
            A(f"v_max3_f32 v{T}, v{T}, v{S+k}, v{S+k+1}")
        A(f"v_max_f32 v{T}, v{T}, v{S+15}")
        g.swap_reduce("v_max_f32", T, T+1, 16)
        g.swap_reduce("v_max_f32", T, T+1, 32)
        A("s_lshl_b32 s11, s4, 2")
        A(f"v_add_u32 v{T+3}, s11, v11")
        A(f"s_mov_b32 s72, {LOG2E:#x}")
        A(f"v_mul_f32 v{T+1}, {LOG2E^0x80000000:#x}, v{T}")
        for k in range(16):
            A(f"v_fma_f32 v{S+k}, v{S+k}, s72, v{T+1}")
        for k in range(16):
            A(f"v_exp_f32 v{S+k}, v{S+k}")
        A("s_nop 0")
        for k in range(8):
            A(f"v_cvt_pk_bf16_f32 v{P+k}, v{S+2*k}, v{S+2*k+1}")
        A(f"v_add_f32 v{T+2}, v{S}, v{S+1}")
        for k in range(2, 16):
            A(f"v_add_f32 v{T+2}, v{T+2}, v{S+k}")
        g.swap_reduce("v_add_f32", T+2, T+1, 16)
        g.swap_reduce("v_add_f32", T+2, T+1, 32)
        A("s_mov_b64 exec, 0x101")
        A(f"ds_write_b32 v{T+3}, v{T} offset:{MW}")
        A(f"ds_write_b32 v{T+3}, v{T+2} offset:{LW}")
        A("s_mov_b64 exec, -1")
        g.stamp(3)
    def c_addr():
        g.srd(48, 42, WS_BYTES)
        A("s_lshl_b32 s72, s4, 10")
        A(f"v_lshlrev_b32 v{aL16}, 4, v0")
        A(f"v_add_u32 v{aRED0}, s72, v{aL16}")
        A("s_and_b32 s72, s4, 1")
        A("s_lshl_b32 s73, s72, 9")
        A(f"v_and_b32 v{aPUBR}, 1, v0")
        A(f"v_lshlrev_b32 v{aPUBR}, 8, v{aPUBR}")
        A(f"v_bfe_u32 v4, v0, 1, 4")
        A(f"v_lshl_add_u32 v{aPUBR}, v4, 4, v{aPUBR}")
        A(f"v_add_u32 v{aPUBR}, s73, v{aPUBR}")
        A("s_lshl_b32 s12, s7, 1"); A("s_add_u32 s12, s12, s72"); A("s_lshl_b32 s12, s12, 1"); A("s_add_u32 s12, s12, s44")
        A("s_lshl_b32 s12, s12, 3"); A("s_add_u32 s12, s12, s45"); A(f"s_mul_i32 s12, s12, {OREC}"); A(f"s_add_u32 s12, s12, {OPT}")
        A("s_lshl_b32 s13, s72, 5")
        A("v_mov_b32 v7, s13")
        A(f"s_movk_i32 s72, {OREC}")
        A(f"v_and_b32 v4, 3, v0")
        A(f"v_lshlrev_b32 v4, 4, v4")
        A(f"v_lshrrev_b32 v5, 2, v0")
        A(f"v_mad_u32_u24 v{aG0}, v5, s72, v4")
        A(f"s_mul_i32 s14, s46, {16*OREC}")
        A(f"s_add_u32 s14, s14, {OPT}")
        A("s_lshl_b32 s15, s4, 6")
        A("s_add_u32 s15, s15, s14")
        A(f"v_lshlrev_b32 v{aBP0}, 7, v9")
        A(f"v_lshl_add_u32 v{aBP0}, v2, 2, v{aBP0}")
        A(f"v_add_u32 v{aBP1}, 64, v{aBP0}")
        A("s_mul_i32 s72, s4, 48")
        A(f"v_mul_u32_u24 v{aH}, 12, v2")
        A("s_movk_i32 s73, 288")
        A(f"v_mad_u32_u24 v{aH}, v9, s73, v{aH}")
        A(f"v_add_u32 v{aH}, s72, v{aH}")
        A(f"v_lshrrev_b32 v5, 3, v0")
        A(f"v_lshlrev_b32 v{aFS}, 12, v5")
        A(f"v_and_b32 v6, 7, v0")
        A(f"v_lshl_add_u32 v{aFS}, v6, 4, v{aFS}")
        A("v_cmp_lt_u32 vcc, 17, v0")
        A("v_add_u32 v5, 46, v0")
        A("s_nop 0")
        A("v_cndmask_b32 v4, v0, v5, vcc")
        A("v_lshrrev_b32 v5, 1, v4")
        A(f"v_lshlrev_b32 v{aFR}, 4, v5")
        A("v_and_b32 v5, 1, v4")
        A(f"v_lshl_add_u32 v{aFR}, v5, 8, v{aFR}")
        A(f"v_and_b32 v{aFR}, 0x3ff, v{aFR}")
        A(f"s_mul_i32 s16, s45, {5*4096}")
        A("s_lshl_b32 s73, s46, 7"); A("s_add_u32 s16, s16, s73"); A(f"s_add_u32 s16, s16, {OP}")
        g.srd(68, 34, 1152)
        if rspread:
            A("s_lshl_b32 s6, s45, 2"); A("s_sub_u32 s6, s46, s6"); A("s_and_b32 s6, s6, 31")
        else: A("s_mov_b32 s6, s46")
        if b2one:
            A("s_cmp_eq_u32 s4, 4"); A("s_cselect_b32 s70, s70, 0")
            A("s_cmp_lt_u32 s6, 5"); A("s_cselect_b32 s70, s70, 0")
        A("s_lshl_b32 s72, s6, 6")
        A("v_lshl_add_u32 v5, v6, 3, s72")
        A("v_cmp_lt_u32 vcc, 0x8f, v5")
        A("v_subrev_u32 v6, 0x90, v5")
        A("v_mov_b32 v4, 0")
        A("v_cndmask_b32 v5, v5, v6, vcc")
        A("v_mov_b32 v6, 8")
        A(f"v_cndmask_b32 v{aGA}, v4, v6, vcc")
        A("s_mul_i32 s21, s45, 144")
        A(f"buffer_load_dwordx2 v[{vB2}:{vB2+1}], v5, s[68:71], s21 offen {xs}")
        A(f"v_mul_u32_u24 v6, 0x90, v{aGA}")
        A(f"v_add_u32 v{aOUT}, v5, v6")
        A("s_mul_i32 s17, s45, 5"); A("s_add_u32 s17, s17, s6"); A("s_lshl_b32 s17, s17, 12"); A(f"s_add_u32 s17, s17, {OP}")
        A(f"v_lshrrev_b32 v{aGD}, 5, v0")
        A(f"v_lshlrev_b32 v{aGD}, 3, v{aGD}")
        A(f"s_movk_i32 s72, {4*1152}")
        A("v_lshlrev_b32 v4, 4, v3")
        A("v_mad_u32_u24 v5, v2, s72, v4")
        A(f"s_movk_i32 s72, {6*1152}")
        A("v_mad_u32_u24 v6, v2, s72, v4")
        A("s_lshl_b32 s18, s46, 3"); A("s_add_u32 s18, s18, s4"); A(f"s_mul_i32 s18, s18, {16*1152}")
        A("s_mul_i32 s73, s45, 144"); A("s_add_u32 s18, s18, s73")
        A("s_mul_i32 s19, s46, 6"); A("s_add_u32 s19, s19, s4"); A(f"s_mul_i32 s19, s19, {24*1152}")
        A("s_add_u32 s19, s19, s73")
        A(f"s_add_u32 s20, s19, {3*1152}")
        A("s_mov_b32 s22, 0x01ff01ff"); A("s_mov_b32 s23, 0x01ff01ff")
    def small(k):
        if k < 4: A(f"buffer_load_dwordx4 v[{WO+4*k}:{WO+4*k+3}], v5, s[56:59], s18 offen offset:{1152*k} {fs}")
        else:
            t = k - 4
            A(f"buffer_load_dwordx4 v[{W2R[t]}:{W2R[t]+3}], v6, s[60:63], s{19 + t//3} offen offset:{1152*(t%3)} {fs}")
    n = 0
    for j in range(4):
        if j > 0:
            A(f"s_add_u32 m0, s10, {4096*j}")
            if n < W: A("s_nop 0")
        for t4 in range(4):
            if n >= W: A(f"s_waitcnt vmcnt({W-1})")
            if n == W: g.stamp(12)
            A(f"buffer_load_dwordx4 v{4+t4}, s[48:51], s{64+j} offen offset:{1024*t4} {fk} lds")
            n += 1
            if n == W:
                if bfirst:
                    A("s_branch L_bulk2")
                    g.label("L_svc")
                    service_issue()
                    g.label("L_bulk2")
                setup_mid()
    chunks = {NQ: c_q01, NQ+1: c_q23, NQ+2: c_round, NQ+3: c_soft, NQ+4: c_addr}
    assert NQ >= W and NQ + 4 <= 15
    WL = W if W2 is None else W2
    assert NQ >= WL
    for idx in range(16):
        A(f"s_waitcnt vmcnt({(W if idx < W2at else WL)-1})")
        vload(idx)
        if psched and idx in psched: A(f"s_setprio {psched[idx]}")
        if idx in chunks: chunks[idx]()
    g.stamp(4)
    if prio: A("s_setprio 0")
    if nsmall0:
        A("s_mov_b64 exec, s[22:23]")
        for k in range(nsmall0): small(k)
        A("s_mov_b64 exec, -1")
    issued = [nsmall0]
    def pv_after(t):
        if inter and t > 15 - WL and issued[0] < 10 and t < 15:
            A("s_mov_b64 exec, s[22:23]")
            small(issued[0]); issued[0] += 1
            A("s_mov_b64 exec, -1")
    g.gemv_chain(16, P, VD, AS, OA, lambda t: None if t <= 15 - WL else 15 - t + issued[0], pv_after)
    def rest_small():
        if issued[0] < 10:
            A("s_mov_b64 exec, s[22:23]")
            while issued[0] < 10:
                small(issued[0]); issued[0] += 1
            A("s_mov_b64 exec, -1")
    if smallpos == 'pre': rest_small()
    A("s_mov_b64 s[68:69], s[40:41]"); A("s_lshl_b32 s13, s7, 2"); A("s_add_u32 s13, s13, 128")
    A("s_mov_b64 s[64:65], s[42:43]")
    A("s_cmp_ge_u32 s4, 6")
    A("s_cselect_b32 s70, 256, 0"); A("s_mov_b32 s71, 0x20000")
    A(f"s_cselect_b32 s66, {WS_BYTES}, 0")
    A("s_mov_b32 s67, 0x20000")
    A("s_nop 1")
    A(f"ds_write_b128 v{aRED0}, v[{OA}:{OA+3}] offset:{RED0}")
    A("s_waitcnt lgkmcnt(0)")
    g.stamp(5)
    A("s_barrier")
    if smallpos == 'post': rest_small()
    A(f"ds_read_b64 v[{GG}:{GG+1}], v{aGD} offset:{GB}")
    A("s_cmp_lt_u32 s4, 6")
    A("s_cbranch_scc1 L_nopub")
    F, OR, LR, ST = PL, PL+8, PL+40, PL+48
    def ystore():
        A("s_mov_b64 s[8:9], exec")
        A("s_mov_b32 exec_lo, -1"); A("s_mov_b32 exec_hi, 0xff")
        A(f"buffer_store_dwordx4 v[{ST}:{ST+3}], v{aL16}, s[64:67], s12 offen sc1")
        A("s_mov_b32 s66, 0")
        A("s_mov_b64 exec, s[8:9]")
    if tailprio: A("s_setprio 3")
    A(f"ds_read_b128 v[{F}:{F+3}], v7 offset:{MW}")
    A(f"ds_read_b128 v[{F+4}:{F+7}], v7 offset:{MW+16}")
    for w in range(8):
        A(f"ds_read_b128 v[{OR+4*w}:{OR+4*w+3}], v{aPUBR} offset:{RED0+1024*w}")
    A(f"ds_read_b128 v[{LR}:{LR+3}], v7 offset:{LW}")
    A(f"ds_read_b128 v[{LR+4}:{LR+7}], v7 offset:{LW+16}")
    A(f"s_mov_b32 s72, {LOG2E:#x}")
    A("s_waitcnt lgkmcnt(10)")
    A(f"v_max3_f32 v{T+1}, v{F}, v{F+1}, v{F+2}")
    A(f"v_max3_f32 v{T}, v{F+3}, v{F+4}, v{F+5}")
    A(f"v_max3_f32 v{T+1}, v{T+1}, v{F+6}, v{F+7}")
    A(f"v_max_f32 v{T+1}, v{T+1}, v{T}")
    A(f"v_mul_f32 v{T}, {LOG2E^0x80000000:#x}, v{T+1}")
    for w in range(8): A(f"v_fma_f32 v{F+w}, v{F+w}, s72, v{T}")
    for w in range(8): A(f"v_exp_f32 v{F+w}, v{F+w}")
    A("s_waitcnt lgkmcnt(9)")
    for k in range(4): A(f"v_mul_f32 v{ST+k}, v{F}, v{OR+k}")
    for w in range(1, 8):
        A(f"s_waitcnt lgkmcnt({9-w})")
        for k in range(4): A(f"v_fmac_f32 v{ST+k}, v{F+w}, v{OR+4*w+k}")
    g.tag4(ST, [ST, ST+1, ST+2, ST+3])
    A("s_waitcnt lgkmcnt(0)")
    A("s_mov_b32 exec_lo, 0"); A("s_mov_b32 exec_hi, 0xff")
    A(f"v_mul_f32 v{ST+2}, v{F}, v{LR}")
    for k in range(1, 8): A(f"v_fmac_f32 v{ST+2}, v{F+k}, v{LR+k}")
    A(f"v_mov_b32 v{ST}, v{T+1}")
    A(f"v_mov_b32 v{ST+1}, v1")
    A(f"v_mov_b32 v{ST+3}, v1")
    A("s_mov_b32 exec_lo, -1")
    A(f"buffer_store_dwordx4 v[{ST}:{ST+3}], v{aL16}, s[48:51], s12 offen")
    A("s_mov_b64 exec, -1")
    for k in range(4): A(f"v_mov_b32 v{DB+k}, 0")
    A("s_cmp_eq_u32 s5, 0")
    A("s_cbranch_scc1 L_now2")
    ystore()
    A("s_branch L_now2")
    g.label("L_nopub")
    A(f"ds_read2_b32 v[{P}:{P+1}], v{aH} offset0:{HB//4} offset1:{HB//4+1}")
    A(f"ds_read_b32 v{P+2}, v{aH} offset:{HB+8}")
    A("s_waitcnt lgkmcnt(0)")
    g.gemv_chain(6, P, W2R, AS, DB, lambda t: 0 if t == 0 else None)
    A("s_nop 7")
    for k in range(4): A(f"v_mul_f32 v{DB+k}, v{GG+1}, v{DB+k}")
    g.label("L_now2")
    A("v_mov_b32 v7, 0")
    g.stamp(6)
    def issue1():
        A(f"buffer_load_dwordx4 v[{PL}:{PL+3}], v{aG0}, s[48:51], s15 offen {p1}")
        A(f"buffer_load_dwordx4 v[{PL+4}:{PL+7}], v{aG0}, s[48:51], s14 offen offset:512 {p1}")
    def check1():
        A(f"v_cmpx_eq_u32 vcc, s47, v{PL+5}")
        A(f"v_cmpx_eq_u32 vcc, s47, v{PL+7}")
        g.check4(PL, PL+8)
    g.poll("1", issue1, check1, "-1", s1[0], s1[1], 16, fallback=ystore)
    A(f"buffer_load_dword v{T+2}, v7, s[68:71], s13 offen {ph}")
    A("s_nop 2")
    g.stamp(7)
    Ms, Ls = PL+4, PL+6
    m, w_, t_, u_ = PL+8, PL+9, PL+10, PL+11
    g.dpp("v_max_f32", m, Ms, "row_ror:4")
    A("s_nop 1")
    g.dpp("v_max_f32", m, m, "row_ror:8")
    g.swap_reduce("v_max_f32", m, u_, 16)
    A(f"v_sub_f32 v{w_}, v{Ms}, v{m}")
    A(f"v_mul_f32 v{w_}, {LOG2E:#x}, v{w_}")
    A(f"v_exp_f32 v{w_}, v{w_}")
    g.clean(range(PL, PL+4))
    A(f"v_mul_f32 v{t_}, v{w_}, v{Ls}")
    for k in range(4): A(f"v_mul_f32 v{PL+k}, v{w_}, v{PL+k}")
    for ctl in ("row_ror:4", "row_ror:8"):
        for r in (t_, PL, PL+1, PL+2, PL+3):
            g.dpp("v_add_f32", r, r, ctl)
    A(f"v_mov_b32 v{u_}, v{t_}")
    A("s_nop 0")
    A(f"v_permlane16_swap_b32 v{PL}, v{PL+2}")
    A(f"v_permlane16_swap_b32 v{PL+1}, v{PL+3}")
    A(f"v_permlane16_swap_b32 v{t_}, v{u_}")
    A(f"v_add_f32 v{PL}, v{PL}, v{PL+2}")
    A(f"v_add_f32 v{PL+1}, v{PL+1}, v{PL+3}")
    A(f"v_add_f32 v{t_}, v{t_}, v{u_}")
    A(f"v_rcp_f32 v{t_}, v{t_}")
    A("s_nop 0")
    A(f"v_mul_f32 v{PL}, v{t_}, v{PL}")
    A(f"v_mul_f32 v{PL+1}, v{t_}, v{PL+1}")
    A(f"v_cvt_pk_bf16_f32 v{PL}, v{PL}, v{PL+1}")
    A(f"ds_bpermute_b32 v{P}, v{aBP0}, v{PL}")
    A(f"ds_bpermute_b32 v{P+1}, v{aBP1}, v{PL}")
    A("s_waitcnt lgkmcnt(0)")
    g.gemv_chain(4, P, WO, AS, DA, lambda t: None)
    A("s_nop 7")
    for k in range(4): A(f"v_fmac_f32 v{DB+k}, v{GG}, v{DA+k}")
    A(f"ds_write_b128 v{aRED0}, v[{DB}:{DB+3}] offset:{RED1}")
    A("s_waitcnt lgkmcnt(0)")
    g.stamp(8)
    A("s_barrier")
    A("s_cmp_ge_u32 s4, 1")
    A("s_cbranch_scc1 L_final")
    RA = PL+8
    for w in range(8):
        A(f"ds_read_b128 v[{RA+4*w}:{RA+4*w+3}], v{aFR} offset:{RED1+1024*w}")
    A("s_mov_b32 exec_hi, 0xff")
    A("s_waitcnt lgkmcnt(6)")
    for e in range(4): A(f"v_add_f32 v{PL+e}, v{RA+e}, v{RA+4+e}")
    for w in range(2, 8):
        A(f"s_waitcnt lgkmcnt({7-w})")
        for e in range(4): A(f"v_add_f32 v{PL+e}, v{PL+e}, v{RA+4*w+e}")
    g.tag4(PL, [PL, PL+1, PL+2, PL+3])
    A(f"buffer_store_dwordx4 v[{PL}:{PL+3}], v{aFS}, s[48:51], s16 offen {ofl}")
    if probe:
        A("s_cmp_ge_u32 s2, 8"); A("s_cbranch_scc1 L_end")
        A("s_memrealtime s[76:77]"); A("s_movk_i32 s70, 256")
        A("s_lshl_b32 s12, s2, 2"); A("s_add_u32 s12, s12, 32"); A("v_mov_b32 v4, 0"); A("s_waitcnt lgkmcnt(0)"); A("v_mov_b32 v5, s76")
        A("s_mov_b64 exec, 1")
        A("buffer_store_dword v5, v4, s[68:71], s12 offen")
    if diag:
        g.stamp(9)
        g.label("L_dump")
        g.dump_stamps(13)
    A("s_endpgm")
    g.label("L_final")
    A("s_cmp_lt_u32 s4, 6")
    A("s_cbranch_scc1 L_nohelp")
    A("s_waitcnt vmcnt(0)")
    A(f"v_readfirstlane_b32 s10, v{T+2}")
    A("s_cmp_eq_u32 s10, 0")
    A("s_cbranch_scc1 L_nohelp")
    ystore()
    g.label("L_nohelp")
    if diag: A("s_mov_b32 s94, 0")
    A("s_cmp_lg_u32 s4, 4")
    A("s_cbranch_scc1 " + ("L_dump" if diag else "L_end"))
    A("s_cmp_ge_u32 s6, 5")
    A("s_cbranch_scc1 " + ("L_dump" if diag else "L_end"))
    FIN = PL + 44 if stag else PL
    def issue2():
        for k in range(4):
            A(f"buffer_load_dwordx4 v[{PL+4*k}:{PL+4*k+3}], v{aL16}, s[48:51], s17 offen offset:{1024*k} {p2}")
    def check2():
        for k in range(4): g.check4(PL+4*k, PL+20)
    if pre2: A(f's_sleep {pre2}')
    if not stag: issue2()
    if stag: issue2()
    A(f"ds_read_b64 v[{PL+18}:{PL+19}], v{aGA} offset:{GB}")
    g.srd(56, 38, 2304)
    A("s_cmp_eq_u32 s6, 4")
    A("s_cselect_b64 s[10:11], 0xf, 0xff")
    A("s_waitcnt lgkmcnt(0)")
    BI = PL + 52
    A(f"v_lshlrev_b32 v{BI}, 16, v{vB2}"); A(f"v_and_b32 v{BI+1}, 0xffff0000, v{vB2}")
    A(f"v_lshlrev_b32 v{BI+2}, 16, v{vB2+1}"); A(f"v_and_b32 v{BI+3}, 0xffff0000, v{vB2+1}")
    for e in range(4): A(f"v_mul_f32 v{BI+e}, v{PL+19}, v{BI+e}")
    if not stag:
        g.poll("2", issue2, check2, "-1", s2[0], s2[1], s2[2], first_issue=False)
        g.stamp(10)
        g.clean(range(PL, PL+16))
        for k in range(1, 4):
            for e in range(4): A(f"v_add_f32 v{PL+e}, v{PL+e}, v{PL+4*k+e}")
    else:
        SA, SB = PL, PL+24
        def iss(base):
            for k in range(4):
                A(f"buffer_load_dwordx4 v[{base+4*k}:{base+4*k+3}], v{aL16}, s[48:51], s17 offen offset:{1024*k} {p2}")
        def chk(base, lab):
            for k in range(4): g.check4(base+4*k, PL+20)
            A("s_nop 1")
            A("s_cmp_eq_u64 exec, -1")
            A("s_mov_b64 exec, -1")
            A(f"s_cbranch_scc1 {lab}")
        g.label("L_p2")
        A(f"s_sleep {stag}")
        iss(SB)
        A("s_waitcnt vmcnt(4)")
        chk(SA, "L_p2a")
        A(f"s_sleep {stag}")
        iss(SA)
        A("s_waitcnt vmcnt(4)")
        chk(SB, "L_p2b")
        A("s_sub_u32 s75, s75, 1")
        A("s_cmp_lg_u32 s75, 0")
        A("s_cbranch_scc1 L_p2")
        g.label("L_p2b")
        g.clean(range(SB, SB+16))
        for e in range(4): A(f"v_add_f32 v{SB+e}, v{SB+e}, v{SB+4+e}")
        for e in range(4): A(f"v_add_f32 v{SB+8+e}, v{SB+8+e}, v{SB+12+e}")
        for e in range(4): A(f"v_add_f32 v{FIN+e}, v{SB+e}, v{SB+8+e}")
        A("s_branch L_p2c")
        g.label("L_p2a")
        g.clean(range(SA, SA+16))
        for e in range(4): A(f"v_add_f32 v{SA+e}, v{SA+e}, v{SA+4+e}")
        for e in range(4): A(f"v_add_f32 v{SA+8+e}, v{SA+8+e}, v{SA+12+e}")
        for e in range(4): A(f"v_add_f32 v{FIN+e}, v{SA+e}, v{SA+8+e}")
        g.label("L_p2c")
        g.stamp(10)
    for e in range(4): g.dpp("v_add_f32", FIN+e, FIN+e, "row_ror:8")
    for which in (16, 32):
        for e in range(4): A(f"v_mov_b32 v{FIN+4+e}, v{FIN+e}")
        for e in range(4): A(f"v_permlane{which}_swap_b32 v{FIN+e}, v{FIN+4+e}")
        for e in range(4): A(f"v_add_f32 v{FIN+e}, v{FIN+e}, v{FIN+4+e}")
    for e in range(4): A(f"v_add_f32 v{FIN+e}, v{FIN+e}, v{BI+e}")
    A(f"v_cvt_pk_bf16_f32 v{FIN}, v{FIN}, v{FIN+1}")
    A(f"v_cvt_pk_bf16_f32 v{FIN+1}, v{FIN+2}, v{FIN+3}")
    A("s_mov_b64 exec, s[10:11]")
    A(f"buffer_store_dwordx2 v[{FIN}:{FIN+1}], v{aOUT}, s[56:59], s21 offen")
    A("s_or_b32 s8, s45, s6")
    A("s_cmp_lg_u32 s8, 0")
    A("s_cbranch_scc1 L_fin2")
    A("s_mov_b64 exec, 1")
    A(f"buffer_store_dword v1, v7, s[48:51], 0 offen sc1")
    g.label("L_fin2")
    if diag:
        g.stamp(9)
        g.dump_stamps(13)
    A("s_endpgm")

    g.label("L_s0b")
    XR, WD, AS, D, GX, GW = 24, 40, 112, 120, 124, 134
    A("v_and_b32 v6, 31, v0")
    A("v_mul_u32_u24 v8, 36, v6")
    A("v_lshrrev_b32 v7, 5, v0")
    A("s_movk_i32 s8, 1152")
    A("v_mad_u32_u24 v11, v7, s8, v8")
    if not xlds:
        g.srd(56, 36, 1152)
        A(f"buffer_load_dwordx4 v[{GX}:{GX+3}], v11, s[48:51], 0 offen {xs}")
        A(f"buffer_load_dwordx4 v[{GX+4}:{GX+7}], v11, s[48:51], 0 offen offset:16 {xs}")
        A(f"buffer_load_dword v{GX+8}, v11, s[48:51], 0 offen offset:32 {xs}")
        A(f"buffer_load_dwordx4 v[{GW}:{GW+3}], v8, s[56:59], 0 offen {xs}")
        A(f"buffer_load_dwordx4 v[{GW+4}:{GW+7}], v8, s[56:59], 0 offen offset:16 {xs}")
        A(f"buffer_load_dword v{GW+8}, v8, s[56:59], 0 offen offset:32 {xs}")
    g.selectors(144)
    g.srd(60, 42, WS_BYTES)
    A("v_lshlrev_b32 v10, 13, v7")
    A("v_lshl_add_u32 v10, v6, 4, v10")
    A("s_lshl_b32 s10, s7, 14"); A("s_lshl_b32 s11, s45, 10"); A("s_add_u32 s11, s11, s10")
    A("s_lshl_b32 s8, s44, 9"); A("s_add_u32 s11, s11, s8"); A(f"s_add_u32 s11, s11, {QP}")
    A("s_lshl_b32 s8, s44, 13"); A("s_add_u32 s64, s10, s8"); A(f"s_add_u32 s64, s64, {QP}")
    A("s_add_u32 s65, s64, 4096")
    A("v_lshlrev_b32 v12, 4, v0")
    A("v_lshlrev_b32 v13, 9, v0")
    A("v_lshlrev_b32 v14, 4, v3")
    A("v_and_b32 v15, 1, v2")
    A("v_lshl_add_u32 v14, v15, 3, v14")
    A("v_lshl_add_u32 v14, v7, 8, v14")
    g.srd(68, 40, 256)
    A("s_lshl_b32 s13, s7, 2"); A("s_add_u32 s13, s13, 128")
    A("s_cmp_eq_u32 s5, 0")
    A("s_cbranch_scc1 L_placed")
    A("v_mov_b32 v150, 0"); A("v_mov_b32 v5, 1")
    A("buffer_store_dword v5, v150, s[68:71], s13 offen sc1")
    A("s_waitcnt vmcnt(0)")
    g.label("L_placed")
    if probe:
        A("s_cmp_ge_u32 s2, 8"); A("s_cbranch_scc1 L_np0")
        A("s_lshl_b32 s12, s2, 2"); A("v_mov_b32 v4, 0"); A("v_mov_b32 v5, s76")
        A("s_mov_b64 exec, 1")
        A("buffer_store_dword v5, v4, s[68:71], s12 offen")
        A("s_mov_b64 exec, -1")
        A("s_waitcnt vmcnt(0)")
        g.label("L_np0")
    A("s_waitcnt lgkmcnt(0)" + (" vmcnt(18)" if xlds else ""))
    A("s_barrier")
    NG = 0 if xlds else 6
    if xlds:
        A(f"s_add_u32 s9, s9, {XB}")
        A("v_add_u32 v4, s9, v4")
        for k in range(4): A(f"ds_read2_b32 v[{XR+2*k}:{XR+2*k+1}], v4 offset0:{2*k} offset1:{2*k+1}")
        A(f"ds_read_b32 v{XR+8}, v4 offset:32")
        for k in range(9): A(f"ds_read_b32 v{GX+k}, v11 offset:{XB+4*k}")
        A("s_waitcnt lgkmcnt(9)")
        for k in range(5): A(f"ds_read_b32 v{GW+k}, v8 offset:{GWB+4*k}")
        A("s_waitcnt lgkmcnt(5)")
        for k in range(5, 9): A(f"ds_read_b32 v{GW+k}, v8 offset:{GWB+4*k}")
        A("s_waitcnt lgkmcnt(0)")
    A("s_load_dword s47, s[42:43], 0")
    if not xlds: A("s_waitcnt vmcnt(24)" if xpos == 'first' else "s_waitcnt vmcnt(6)")
    g.stamp(3)
    g.gemv_chain(18, XR, WD, AS, D, lambda t: 17 - t + NG)
    A("s_waitcnt lgkmcnt(0)")
    g.tag()
    g.tag4(AS, [D, D+1, D+2, D+3])
    def ys0():
        A("s_mov_b64 s[72:73], exec")
        A("s_mov_b64 exec, -1")
        A(f"buffer_store_dwordx4 v[{AS}:{AS+3}], v10, s[60:63], s11 offen sc1")
        A("s_mov_b64 exec, s[72:73]")
    def helpcheck(name, ys):
        A("v_mov_b32 v4, 0")
        A(f"buffer_load_dword v5, v4, s[68:71], s13 offen {ph}")
        A("s_waitcnt vmcnt(0)")
        A("v_readfirstlane_b32 s8, v5")
        A("s_cmp_eq_u32 s8, 0")
        A(f"s_cbranch_scc1 L_nh_{name}")
        ys()
        g.label(f"L_nh_{name}")
    A(f"buffer_store_dwordx4 v[{AS}:{AS+3}], v10, s[60:63], s11 offen")
    A("s_cmp_eq_u32 s5, 0")
    A("s_cbranch_scc1 L_q_placed")
    ys0()
    A("s_waitcnt vmcnt(0)")
    g.label("L_q_placed")
    g.stamp(1)
    A("s_waitcnt vmcnt(1)")
    acc, t0, t1, t2, t3 = 144, 145, 146, 147, 148
    A(f"v_mov_b32 v{acc}, 0")
    for k in range(9):
        A(f"v_lshlrev_b32 v{t0}, 16, v{GX+k}")
        A(f"v_and_b32 v{t1}, 0xffff0000, v{GX+k}")
        A(f"v_lshlrev_b32 v{t2}, 16, v{GW+k}")
        A(f"v_and_b32 v{t3}, 0xffff0000, v{GW+k}")
        A(f"v_mul_f32 v{t0}, v{t0}, v{t2}")
        A(f"v_mul_f32 v{t1}, v{t1}, v{t3}")
        A(f"v_cvt_pk_bf16_f32 v{t0}, v{t0}, v{t1}")
        A(f"v_lshlrev_b32 v{t1}, 16, v{t0}")
        A(f"v_and_b32 v{t0}, 0xffff0000, v{t0}")
        A(f"v_add_f32 v{acc}, v{acc}, v{t1}")
        A(f"v_add_f32 v{acc}, v{acc}, v{t0}")
    for ctl in ("quad_perm:[1,0,3,2]", "quad_perm:[2,3,0,1]", "row_half_mirror", "row_mirror"):
        A("s_nop 1")
        g.dpp("v_add_f32", acc, acc, ctl)
    g.swap_reduce("v_add_f32", acc, t0, 16)
    g.bf16r(acc, acc)
    A(f"v_mul_f32 v{acc}, {LOG2E^0x80000000:#x}, v{acc}")
    A(f"v_exp_f32 v{acc}, v{acc}")
    A("s_nop 0")
    A(f"v_add_f32 v{acc}, 1.0, v{acc}")
    A(f"v_rcp_f32 v{acc}, v{acc}")
    A("s_nop 0")
    g.bf16r(acc, acc)
    A(f"v_sub_f32 v{acc+1}, 1.0, v{acc}")
    g.bf16r(acc+1, acc+1)
    A("v_lshlrev_b32 v7, 3, v7")
    A("s_mov_b32 exec_lo, 1"); A("s_mov_b32 exec_hi, 1")
    A(f"ds_write_b64 v7, v[{acc}:{acc+1}] offset:{GB}")
    if prepoll:
        A("s_mov_b64 s[14:15], 0xffff")
        A("s_mov_b64 exec, s[14:15]")
        g.poll("pq", lambda: A(f"buffer_load_dwordx4 v[{WD}:{WD+3}], v13, s[60:63], s64 offen offset:496 sc1"), lambda: g.check4(WD, t0), "s[14:15]", 4, 0, 64, fallback=ys0, fbmask=15)
    A("s_mov_b64 exec, -1")
    g.stamp(4)
    def issueq():
        for rb in range(8):
            A(f"buffer_load_dwordx4 v[{WD+4*rb}:{WD+4*rb+3}], v12, s[60:63], s{64+rb//4} offen offset:{1024*(rb%4)} {pq}")
    def checkq():
        for rb in range(8): g.check4(WD+4*rb, t0)
    g.poll("q", issueq, checkq, "-1", 4, 0, 64, fallback=ys0, fbmask=15)
    g.stamp(2)
    g.clean(range(WD, WD+32))
    for rb in range(1, 8):
        for e in range(4): A(f"v_add_f32 v{WD+e}, v{WD+e}, v{WD+4*rb+e}")
    A(f"v_cvt_pk_bf16_f32 v{WD}, v{WD}, v{WD+1}")
    A(f"v_cvt_pk_bf16_f32 v{WD+1}, v{WD+2}, v{WD+3}")
    A(f"ds_write_b64 v14, v[{WD}:{WD+1}] offset:{QB}")
    A("v_mov_b32 v5, 1")
    A("v_mov_b32 v4, 0")
    A("s_waitcnt lgkmcnt(0)")
    A(f"ds_write_b32 v4, v5 offset:{QFLAG}")
    helpcheck("q", ys0)
    A("s_waitcnt lgkmcnt(0)")
    g.stamp(5)
    g.dump_stamps(7)
    A("s_endpgm")
    g.label("L_s1b")
    WD, AS, D, B1 = W1, 140, 148, 152
    NT = 0
    if cw & 1:
        A("s_getpc_b64 s[72:73]")
        g.label("L_pc")
        A(f"s_sub_u32 s72, s72, (L_pc - {KNAME})")
        A("s_subb_u32 s73, s73, 0")
        for k in range(1, 7):
            A(f"s_load_dword s{66+ (k%2)}, s[72:73], {2048*k}")
    if cw & 2:
        A("s_cmp_lg_u32 s45, 0")
        A("s_cbranch_scc1 L_nocw")
        A("s_getpc_b64 s[72:73]")
        g.label("L_pc2")
        A(f"s_sub_u32 s72, s72, (L_pc2 - {KNAME})")
        A("s_subb_u32 s73, s73, 0")
        A("v_lshlrev_b32 v160, 7, v0")
        A("global_load_dword v161, v160, s[72:73]")
        A("v_add_u32 v160, 0x2000, v160")
        A("s_mov_b32 exec_hi, 0")
        A("global_load_dword v161, v160, s[72:73]")
        A("s_mov_b64 exec, -1")
        A("s_waitcnt vmcnt(0)")
        g.label("L_nocw")
    g.srd(56, 30, 9216)
    g.srd(60, 42, WS_BYTES)
    g.srd(68, 40, 256)
    A("s_load_dword s47, s[42:43], 0")
    A("v_and_b32 v6, 31, v0")
    A("v_lshrrev_b32 v7, 5, v0")
    A("v_lshlrev_b32 v10, 4, v0")
    A("s_mul_i32 s13, s46, 18")
    A("v_add_u32 v8, s13, v6")
    A("v_lshlrev_b32 v8, 4, v8")
    A("v_cmp_lt_u32 vcc, 8, v6")
    A("v_add_u32 v12, 0xf7, v6")
    A("v_lshlrev_b32 v13, 10, v0")
    A("v_cndmask_b32 v12, v6, v12, vcc")
    A("v_lshlrev_b32 v12, 4, v12")
    A("v_lshl_add_u32 v12, v7, 9, v12")
    A("s_movk_i32 s12, 288")
    A("v_mul_u32_u24 v14, s12, v7")
    A("v_lshl_add_u32 v14, v6, 4, v14")
    A("s_lshl_b32 s64, s7, 14"); A(f"s_add_u32 s64, s64, {HP}")
    A("s_and_b32 s12, s6, 15"); A("s_lshl_b32 s12, s12, 10"); A("s_add_u32 s65, s64, s12")
    A("s_lshl_b32 s12, s44, 13"); A("s_add_u32 s64, s64, s12")
    A("s_lshl_b32 s13, s7, 2"); A("s_add_u32 s13, s13, 128")
    g.selectors(156)
    A("s_barrier")
    if xlds:
        A("v_add_u32 v4, s10, v4")
        for k in range(9): A(f"ds_read_b64 v[{X1+2*k}:{X1+2*k+1}], v4 offset:{XB+8*k}")
        A("s_waitcnt lgkmcnt(0)")
    else: A(f"s_waitcnt vmcnt({24+NT})" if xpos == 'first' else "s_waitcnt vmcnt(0)")
    def s1_after(t):
        if t < 12:
            A("s_mov_b64 exec, s[14:15]")
            A(f"buffer_load_dwordx4 v[{W1+4*t}:{W1+4*t+3}], v5, s[52:55], s11 offen {fw}")
            A("s_add_u32 s11, s11, 9216")
            A("s_mov_b64 exec, -1")
    g.gemv_chain(36, X1, [W1 + 4*(t % 24) for t in range(36)], AS, D, lambda t: (24 + min(t, 12) - t - 1 + (NT if t < 24 else 0)), s1_after)
    A("s_waitcnt lgkmcnt(0)")
    g.tag()
    g.tag4(AS, [D, D+1, D+2, D+3])
    def ys1():
        A("s_mov_b64 s[72:73], exec")
        A("s_mov_b64 exec, -1")
        A(f"buffer_store_dwordx4 v[{AS}:{AS+3}], v10, s[60:63], s65 offen sc1")
        A("s_mov_b64 exec, s[72:73]")
    A(f"buffer_store_dwordx4 v[{AS}:{AS+3}], v10, s[60:63], s65 offen")
    A("s_cmp_eq_u32 s5, 0")
    A("s_cbranch_scc1 L_h_placed")
    ys1()
    g.label("L_h_placed")
    g.stamp(1)
    A("s_mov_b32 s14, 0x0003ffff"); A("s_mov_b32 s15, 0x0003ffff")
    A("s_mov_b64 exec, s[14:15]")
    A(f"buffer_load_dwordx4 v[{B1}:{B1+3}], v8, s[56:59], 0 offen {xs}")
    if prepoll:
        A("s_mov_b64 s[10:11], 0xff")
        A("s_mov_b64 exec, s[10:11]")
        g.poll("ph", lambda: A(f"buffer_load_dwordx4 v[{WD}:{WD+3}], v13, s[60:63], s64 offen offset:896 sc1"), lambda: g.check4(WD, 156), "s[10:11]", 8, 0, 64, fallback=ys1, fbmask=15)
        A("s_mov_b64 exec, s[14:15]")
    g.stamp(3)
    def issueh():
        for rb in range(4):
            for k in range(2):
                d = WD + 8*rb + 4*k
                A(f"buffer_load_dwordx4 v[{d}:{d+3}], v12, s[60:63], s64 offen offset:{1024*rb+256*k} {pq}")
    def checkh():
        for k in range(8): g.check4(WD+4*k, 156)
    g.poll("h", issueh, checkh, "s[14:15]", 4, 0, 64, fallback=ys1, fbmask=15)
    g.stamp(2)
    g.clean(range(WD, WD+32))
    for rb in range(1, 4):
        for e in range(8): A(f"v_add_f32 v{WD+e}, v{WD+e}, v{WD+8*rb+e}")
    for d in range(4):
        a, b = WD + 2*d, WD + 2*d + 1
        t0, t1 = 160, 161
        A(f"v_cvt_pk_bf16_f32 v{a}, v{a}, v{b}")
        A(f"v_lshlrev_b32 v{t0}, 16, v{B1+d}")
        A(f"v_and_b32 v{t1}, 0xffff0000, v{B1+d}")
        A(f"v_and_b32 v{b}, 0xffff0000, v{a}")
        A(f"v_lshlrev_b32 v{a}, 16, v{a}")
        A(f"v_add_f32 v{a}, v{a}, v{t0}")
        A(f"v_add_f32 v{b}, v{b}, v{t1}")
        A(f"v_cvt_pk_bf16_f32 v{a}, v{a}, v{b}")
        A(f"v_and_b32 v{b}, 0xffff0000, v{a}")
        A(f"v_lshlrev_b32 v{a}, 16, v{a}")
        A(f"v_max_f32 v{a}, 0, v{a}")
        A(f"v_max_f32 v{b}, 0, v{b}")
        A(f"v_mul_f32 v{a}, v{a}, v{a}")
        A(f"v_mul_f32 v{b}, v{b}, v{b}")
        A(f"v_cvt_pk_bf16_f32 v{156+d}, v{a}, v{b}")
    A(f"ds_write_b128 v14, v[156:159] offset:{HB}")
    A("s_mov_b64 exec, -1")
    if optouch:
        A("s_cmp_ge_u32 s46, 5"); A("s_cbranch_scc1 L_not")
        A("s_mul_i32 s12, s45, 5"); A("s_add_u32 s12, s12, s46"); A("s_lshl_b32 s12, s12, 12"); A(f"s_add_u32 s12, s12, {OP}")
        if optouch == 'ld':
            A("v_lshlrev_b32 v15, 7, v0")
            A("s_mov_b32 exec_hi, 0")
            A("buffer_load_dword v161, v15, s[60:63], s12 offen sc1")
            A("s_mov_b64 exec, -1")
        else:
            A("v_mov_b32 v160, 0"); A("v_mov_b32 v161, 0"); A("v_mov_b32 v162, 0"); A("v_mov_b32 v163, 0")
            for k in range(4): A(f"buffer_store_dwordx4 v[160:163], v10, s[60:63], s12 offen offset:{1024*k} sc1")
        g.label("L_not")
    helpcheck("h", ys1)
    A("s_waitcnt lgkmcnt(0)")
    g.stamp(4); g.stamp(5)
    g.dump_stamps(7)
    g.label("L_end")
    A("s_endpgm")
    body = "\n".join(g.L)
    s = HEADER
    s += f"; @launch grid=(256,1,1) block=(640,1,1) lds={LDS_BYTES}\n"
    s += f""".amdgcn_target "amdgcn-amd-amdhsa--gfx950"
.text
.globl {KNAME}
.p2align 8
.type {KNAME},@function
{KNAME}:
{body}
.section .rodata,"a"
.p2align 6
.amdhsa_kernel {KNAME}
  .amdhsa_next_free_vgpr 168
  .amdhsa_next_free_sgpr 102
  .amdhsa_accum_offset 168
  .amdhsa_group_segment_fixed_size 0
  .amdhsa_kernarg_size 112
  .amdhsa_user_sgpr_count 2
  .amdhsa_user_sgpr_kernarg_segment_ptr 1
  .amdhsa_system_sgpr_workgroup_id_x 1
  .amdhsa_float_denorm_mode_32 3
.end_amdhsa_kernel
"""
    return s

if __name__ == "__main__":
    B = dict(tlb=False, mask='h', tailprio=True, stag=0)
    for k, v in {"a": dict(), "bf": dict(bfirst=True), "bfe": dict(bfirst=True, cw2=1), "e": dict(cw2=1)}.items():
        open(f"s_{k}.s", "w").write(build(False, **{**B, **v}))
        open(f"sd_{k}.s", "w").write(build(True, **{**B, **v}))
```

```python
import gen19
B = dict(tlb=False, mask='h', tailprio=True, stag=0, cw2=1)
V = {"a": dict(), "w": dict(fw='', fs=''), "v": dict(fv=''), "vw": dict(fv='', fw='', fs=''), "kvw": dict(fk='', fv='', fw='', fs=''), "k": dict(fk=''),
     "sc": dict(fv='sc1', fw='sc1', fs='sc1'), "s01": dict(fv='sc0 sc1 nt', fw='sc0 sc1 nt', fs='sc0 sc1 nt')}
for k, v in V.items():
    open(f"t_{k}.s", "w").write(gen19.build(False, **{**B, **v}))
print(" ".join(f"t_{k}.s" for k in V)); print(", ".join(f'"work/t_{k}.s"' for k in V))
```

```python
import sys
from gen_common import KNAME, HEADER

QP   = 0x1000
HP   = 0x80000
OPT  = 0x100000
OREC = 640
OP   = 0x200000
WS_BYTES = 0x400000
QB, HB, GB, MW, LW, QFLAG, RED0, KB = 0, 512, 1088, 1152, 1216, 1280, 7168, 15360
RED1 = KB
XB, GWB = 2048, 5120
LDS_BYTES = KB + 131072
LOG2E = 0x3fb8aa3b
SCALE = 0x3db504f3
SEL = 16
SI = 24
SC = 28

DOC = "; ---------------------------------------------------------------------------------------------\n;  launch tag (derived from the word the previous launch left at d_ws[0]); the byte is masked off\n; ---------------------------------------------------------------------------------------------\n"

class G:
    def __init__(s, diag=False, spin=100000):
        s.L = []; s.diag = diag; s.spin = spin
    def __call__(s, x): s.L.append("    " + x)
    def label(s, x): s.L.append(x + ":")
    def srd(s, d, lo, nbytes):
        s(f"s_mov_b64 s[{d}:{d+1}], s[{lo}:{lo+1}]")
        s(f"s_mov_b32 s{d+2}, {nbytes}"); s(f"s_mov_b32 s{d+3}, 0x20000")
    def stamp(s, k):
        if s.diag:
            s(f"s_memrealtime s[{76+2*k}:{77+2*k}]")
            s("s_waitcnt lgkmcnt(0)")
    def dump_stamps(s, n):
        if not s.diag: return
        s.srd(68, 40, 0x50000)
        s("s_lshl_b32 s72, s2, 10")
        s("s_lshl_b32 s73, s3, 6"); s("s_add_u32 s72, s72, s73"); s("s_add_u32 s72, s72, 4096")
        s("s_mov_b64 exec, 1")
        s("v_mov_b32 v4, 0")
        for k in range(n):
            s(f"v_mov_b32 v5, s{76+2*k}")
            s(f"buffer_store_dword v5, v4, s[68:71], s72 offen offset:{4*k}")
            s("s_nop 1")
    def tag(s):
        s("s_mul_i32 s47, s47, 0x9E3779B1")
        s("s_add_u32 s47, s47, 0x7F4A7C15")
        for k in range(4): s(f"s_mov_b32 s{SI+k}, {0x07060500+k:#x}")
        s(f"s_mov_b32 s{SC}, 0x0c0c0400"); s(f"s_mov_b32 s{SC+1}, 0x0c040100"); s(f"s_mov_b32 s{SC+2}, 0x04020100")
        s("s_mov_b32 s31, 0xffffff00")
        s("v_mov_b32 v1, s47")
    def clean(s, regs):
        for r in regs: s(f"v_and_b32 v{r}, s31, v{r}")
    def tag4(s, dst, src):
        for k in range(4): s(f"v_perm_b32 v{dst+k}, v{src[k]}, v1, s{SI+k}")
    def check4(s, d, t):
        s(f"v_perm_b32 v{t}, v{d+1}, v{d}, s{SC}")
        s(f"v_perm_b32 v{t}, v{d+2}, v{t}, s{SC+1}")
        s(f"v_perm_b32 v{t}, v{d+3}, v{t}, s{SC+2}")
        s(f"v_cmpx_eq_u32 vcc, s47, v{t}")
    def selectors(s, t0):
        a, b, c, d, e = t0, t0+1, t0+2, t0+3, t0+4
        s(f"v_and_b32 v{a}, 1, v0")
        s(f"v_lshlrev_b32 v{a}, 4, v{a}")
        s(f"v_bfe_u32 v{b}, v0, 1, 2")
        s(f"v_mov_b32 v{c}, 0x0d0c")
        s(f"v_mov_b32 v{d}, 0x0f0e")
        s(f"v_mov_b32 v{e}, 0x0c0c0c0c")
        s(f"v_lshlrev_b32 v{c}, v{a}, v{c}")
        s(f"v_lshlrev_b32 v{d}, v{a}, v{d}")
        s(f"v_xor_b32 v{c}, v{c}, v{e}")
        s(f"v_xor_b32 v{d}, v{d}, v{e}")
        for k in range(4):
            s(f"v_cmp_eq_u32 vcc, {k}, v{b}")
            s("s_nop 1")
            s(f"v_cndmask_b32 v{SEL+k}, v{e}, v{c}, vcc")
            s(f"v_cndmask_b32 v{SEL+4+k}, v{e}, v{d}, vcc")
    def perm4(s, dst, src, par):
        for k in range(4):
            s(f"v_perm_b32 v{dst+k}, v{src}, v{src}, v{SEL+4*par+k}")
    def gemv_chain(s, n, xreg, data, aset, acc, waitfn, after=None):
        dreg = (lambda t: data[t]) if isinstance(data, list) else (lambda t: data + 4*t)
        s.perm4(aset, xreg, 0)
        for t in range(n):
            cur = aset + 4*(t & 1); nxt = aset + 4*((t+1) & 1)
            if t+1 < n: s.perm4(nxt, xreg + ((t+1) >> 1), (t+1) & 1)
            else: s("s_nop 1")
            w = waitfn(t)
            if w is not None: s(f"s_waitcnt vmcnt({w})")
            c = "0" if t == 0 else f"v[{acc}:{acc+3}]"
            s(f"v_mfma_f32_16x16x32_bf16 v[{acc}:{acc+3}], v[{cur}:{cur+3}], v[{dreg(t)}:{dreg(t)+3}], {c}")
            if after: after(t)
    def bf16r(s, dst, src):
        s(f"v_cvt_pk_bf16_f32 v{dst}, v{src}, v{src}")
        s(f"v_and_b32 v{dst}, 0xffff0000, v{dst}")
    def swap_reduce(s, op, r, t, which):
        s(f"v_mov_b32 v{t}, v{r}")
        s("s_nop 1")
        s(f"v_permlane{which}_swap_b32 v{r}, v{t}")
        s("s_nop 1")
        s(f"{op} v{r}, v{r}, v{t}")
    def dpp(s, op, dst, src, ctl):
        s(f"{op}_dpp v{dst}, v{src}, v{src} {ctl} row_mask:0xf bank_mask:0xf")
    def poll(s, name, issue, check, full, sleep_few=2, sleep_many=8, many=16, first_issue=True, masked=True, st=None, fallback=None, fbmask=31):
        if fallback: s(f"s_or_b32 s75, s75, {fbmask}")
        if first_issue: issue()
        if st is not None and s.diag:
            s("s_waitcnt vmcnt(0)")
            s.stamp(st)
            s(f"s_mov_b32 s{76+2*(st+1)}, s75")
        s.label(f"L_poll_{name}")
        s("s_waitcnt vmcnt(0)")
        s(f"s_mov_b64 exec, {full}")
        check()
        s("s_nop 1")
        s(f"s_andn2_b64 exec, {full}, exec")
        s(f"s_cbranch_scc0 L_ok_{name}")
        s("s_bcnt1_i32_b64 s74, exec")
        if not masked: s(f"s_mov_b64 exec, {full}")
        s(f"s_sleep {sleep_few}")
        if sleep_many:
            s(f"s_cmp_lt_u32 s74, {many}")
            s(f"s_cbranch_scc1 L_ns_{name}")
            s(f"s_sleep {sleep_many}")
            s.label(f"L_ns_{name}")
        issue()
        if fallback:
            s(f"s_and_b32 s74, s75, {fbmask}")
            s(f"s_cbranch_scc1 L_nf_{name}")
            fallback()
            s.label(f"L_nf_{name}")
        s("s_sub_u32 s75, s75, 1")
        s("s_cmp_lg_u32 s75, 0")
        s(f"s_cbranch_scc1 L_poll_{name}")
        s("s_waitcnt vmcnt(0)")
        s.label(f"L_ok_{name}")
        s(f"s_mov_b64 exec, {full}")
        if st is not None and s.diag:
            s(f"s_sub_u32 s{76+2*(st+1)}, s{76+2*(st+1)}, s75")
            s(f"s_mul_i32 s{76+2*(st+1)}, s{76+2*(st+1)}, 100")
            s(f"s_add_u32 s{76+2*(st+1)}, s{76+2*(st+1)}, s76")

def build(diag=False, W=4, NQ=10, mask='bh', prepoll=False, s1=(1, 4), nsmall0=2, qfl='sc1', ofl='sc1', prio=2, inter=True, smallpos='pre', stag=False, tlb=True, tlbfl='', probe=False, xpos='first', tailprio=False, s2=(1, 4, 24), pre2=0, W2=None, W2at=4, WK=None, psched=None, cw=0, pq='sc1 nt', p1='sc1 nt', p2='sc1', ph='sc1', xs='', xlds=True, b2one=True, optouch='', stouch=0, hm=0x9E3779B1, hs=27, vm=None, rspread=True, cw2=0, bfirst=False, fk='nt', fv='nt', fw='nt', fs='nt', lead=None, WS=3, outfl='', nset=2, N0=18, N1=24, sprio=3, lq='', lo=''):
    g = G(diag); A = g
    A("s_cmp_ge_u32 s2, 256")
    A("s_cbranch_scc1 L_end")
    A("s_load_dwordx16 s[16:31], s[0:1], 0")
    A("s_load_dwordx8 s[32:39], s[0:1], 64")
    A("s_load_dwordx4 s[40:43], s[0:1], 96")
    if diag or probe: A("s_memrealtime s[76:77]")
    A("v_lshrrev_b32 v1, 6, v0")
    A("v_and_b32 v0, 63, v0")
    A("v_readfirstlane_b32 s3, v1")
    A("s_and_b32 s5, s2, 7")
    A("s_lshr_b32 s6, s2, 3")
    A("s_lshr_b32 s7, s6, 4")
    A("s_lshl_b32 s8, s5, 1")
    A("s_add_u32 s7, s7, s8")
    A("s_getreg_b32 s8, hwreg(HW_REG_XCC_ID, 0, 4)")
    A("s_xor_b32 s5, s5, s8")
    A("s_bfe_u32 s44, s6, 0x10003")
    A("s_and_b32 s45, s6, 7")
    A("s_lshl_b32 s46, s7, 1")
    A("s_add_u32 s46, s46, s44")
    A("v_lshrrev_b32 v2, 4, v0")
    A("v_and_b32 v3, 15, v0")
    A(f"s_mov_b32 s75, {g.spin}")
    A("v_bfe_u32 v9, v0, 3, 1")
    if cw2:
        A("s_cmp_lg_u32 s3, 9")
        A("s_cbranch_scc1 L_nocw2")
        A("s_getpc_b64 s[8:9]")
        g.label("L_pc3")
        A(f"s_sub_u32 s8, s8, (L_pc3 - {KNAME})")
        A("s_subb_u32 s9, s9, 0")
        A("s_lshl_b32 s10, s6, 9")
        A("v_lshl_add_u32 v4, v0, 6, s10")
        A(f"v_min_u32 v4, (L_end - {KNAME}), v4")
        A("s_mov_b64 exec, 0xff")
        A("global_load_dword v167, v4, s[8:9]")
        A("s_mov_b64 exec, -1")
        g.label("L_nocw2")
    X1, W1 = 24, 44
    def service_issue():
        A(f"s_setprio {sprio}")
        A("s_movk_i32 s8, 1152")
        A("v_mul_u32_u24 v4, s8, v9")
        A("v_lshlrev_b32 v5, 4, v3")
        A("s_mov_b32 s50, 2304"); A("s_mov_b32 s51, 0x20000"); A("s_mov_b32 s55, 0x20000")
        A("s_cmp_eq_u32 s3, 1")
        A("s_cbranch_scc1 L_s1a")
        XR, WD = 24, 40
        A("v_mad_u32_u24 v4, v2, 36, v4")
        A("s_mul_i32 s9, s45, 144")
        A(f"s_mov_b32 s8, {18*8192}")
        A("v_mad_u32_u24 v5, v2, s8, v5")
        A(f"s_mul_i32 s10, s45, {72*8192}")
        A("s_lshl_b32 s11, s46, 8")
        A("s_add_u32 s10, s10, s11")
        A(f"s_mov_b32 s54, {576*8192}")
        A("s_waitcnt lgkmcnt(0)")
        A("s_mov_b64 s[48:49], s[16:17]")
        A("s_mov_b64 s[52:53], s[22:23]")
        if diag: A("s_memrealtime s[88:89]")
        def s0x():
            A(f"buffer_load_dwordx4 v[{XR}:{XR+3}], v4, s[48:51], s9 offen {xs}")
            A(f"buffer_load_dwordx4 v[{XR+4}:{XR+7}], v4, s[48:51], s9 offen offset:16 {xs}")
            A(f"buffer_load_dword v{XR+8}, v4, s[48:51], s9 offen offset:32 {xs}")
        if xlds:
            A("s_mov_b64 s[56:57], s[36:37]"); A("s_movk_i32 s58, 1152"); A("s_mov_b32 s59, 0x20000")
            A(f"s_movk_i32 m0, {XB}")
            A("v_lshlrev_b32 v6, 4, v0")
            for k in range(3): A(f"buffer_load_dwordx4 v6, s[48:51], 0 offen offset:{1024*k} lds")
            A(f"s_movk_i32 m0, {GWB}")
            A("s_nop 0")
            for k in range(2): A(f"buffer_load_dwordx4 v6, s[56:59], 0 offen offset:{1024*k} lds")
        elif xpos == 'first': s0x()
        for t in range(N0):
            A(f"buffer_load_dwordx4 v[{WD+4*t}:{WD+4*t+3}], v5, s[52:55], s10 offen {fw}")
            A("s_add_u32 s10, s10, 8192")
        A("s_mov_b32 s12, s10")
        if xpos == 'last': s0x()
        A("v_mov_b32 v6, 0")
        A(f"ds_write_b32 v6, v6 offset:{QFLAG}")
        A("s_branch L_s0b")
        g.label("L_s1a")
        X1, W1 = 24, 44
        A("s_and_b32 s8, s45, 3")
        A("s_lshr_b32 s9, s6, 2")
        A("s_and_b32 s9, s9, 3")
        A("s_movk_i32 s10, 72")
        A("v_mad_u32_u24 v4, v2, s10, v4")
        A("s_mul_i32 s10, s8, 288")
        A(f"s_mov_b32 s11, {36*9216}")
        A("v_mad_u32_u24 v5, v2, s11, v5")
        A(f"s_mul_i32 s11, s8, {144*9216}")
        A("s_mul_i32 s12, s7, 576"); A("s_add_u32 s11, s11, s12")
        A("s_mul_i32 s12, s9, 144"); A("s_add_u32 s11, s11, s12")
        A(f"s_mov_b32 s54, {576*9216}")
        A("s_mov_b32 s14, 0x01ff01ff"); A("s_mov_b32 s15, 0x01ff01ff")
        A("s_waitcnt lgkmcnt(0)")
        A("s_mov_b64 s[48:49], s[16:17]")
        A("s_mov_b64 s[52:53], s[28:29]")
        if diag: A("s_memrealtime s[88:89]")
        def stouches():
            A("s_lshl_b32 s12, s44, 4"); A("s_add_u32 s12, s12, s7"); A("s_lshl_b32 s12, s12, 23"); A("s_add_u32 s12, s12, 0x700000")
            A(f"s_mul_i32 s13, s46, {128*1152}")
            A(f"s_mul_i32 s72, s46, {144*1152}")
            A("s_load_dword s66, s[20:21], s12")
            A("s_load_dword s66, s[24:25], s13")
            A("s_load_dword s66, s[32:33], s72")
            A(f"s_load_dword s66, s[42:43], {0x80000}")
            A(f"s_mov_b32 s73, {OP}")
            A("s_load_dword s66, s[42:43], s73")
            A("s_load_dword s66, s[38:39], 0")
            A("s_load_dword s66, s[40:41], 0")
            A("s_load_dword s66, s[30:31], 0")
            A("s_load_dword s66, s[34:35], 0")
        if stouch == 1: stouches()
        if tlb:
            A("s_cmp_lg_u32 s45, 0")
            A("s_cbranch_scc1 L_notouch")
            A("s_lshl_b32 s12, s44, 4"); A("s_add_u32 s12, s12, s7"); A("s_lshl_b32 s12, s12, 23"); A("s_add_u32 s12, s12, 0x700000")
            A(f"s_mul_i32 s13, s46, {128*1152}")
            A(f"s_mul_i32 s72, s46, {144*1152}")
            A("s_lshl_b32 s73, s46, 5")
            A("s_mov_b64 exec, 1")
            A("v_mov_b32 v160, s12"); A("v_mov_b32 v161, s13"); A("v_mov_b32 v162, s72"); A("v_mov_b32 v163, s73"); A(f"v_mov_b32 v164, {OP}"); A("v_mov_b32 v166, 0")
            for (off, base) in ((160, 20), (161, 24), (162, 32), (164, 42), (163, 38), (166, 40), (163, 30), (163, 34)):
                A(f"global_load_dword v165, v{off}, s[{base}:{base+1}]{tlbfl}")
            A("s_mov_b64 exec, -1")
            g.label("L_notouch")
        def s1x():
            for k in range(4):
                A(f"buffer_load_dwordx4 v[{X1+4*k}:{X1+4*k+3}], v4, s[48:51], s10 offen offset:{16*k} {xs}")
            A(f"buffer_load_dwordx2 v[{X1+16}:{X1+17}], v4, s[48:51], s10 offen offset:64 {xs}")
        if xpos == 'first' and not xlds: s1x()
        A("s_mov_b64 exec, s[14:15]")
        for t in range(N1):
            A(f"buffer_load_dwordx4 v[{W1+4*t}:{W1+4*t+3}], v5, s[52:55], s11 offen {fw}")
            A("s_add_u32 s11, s11, 9216")
        A("s_mov_b64 exec, -1")
        if xpos == 'last': s1x()
        if stouch == 2: stouches()
        A("s_branch L_s1b")


    if bfirst:
        A("s_cmp_lt_u32 s3, 2")
        A("s_cbranch_scc1 L_svc")
    else:
        A("s_cmp_gt_u32 s3, 1")
        A("s_cbranch_scc1 L_bulk")
        service_issue()
    g.label("L_bulk")
    VD, QF, KF, S, P, AS, OA, DA, DB, T = 24, 88, 104, 120, 136, 144, 152, 80, 76, 164
    WO, PL = 88, 24
    W2R = [104, 108, 112, 116, 156, 160]
    aRED0, aPUBR, aL16, aG0, aGA, aGD, aH, aFR, aFS, aBP0, aBP1, aOUT, vB2 = (S+k for k in range(13))
    GG = S + 14
    A("s_sub_u32 s4, s3, 2")
    if psched: A("s_setprio 2")
    if prio == 1: A("s_setprio 1")
    if isinstance(prio, (list, tuple)):
        for lv in (1, 2):
            m = sum(1 << w for w in range(8) if prio[w] >= lv)
            A(f"s_bitcmp1_b32 {m:#x}, s4")
            A(f"s_cbranch_scc0 L_prio{lv}")
            A(f"s_setprio {lv}")
            g.label(f"L_prio{lv}")
    if prio == 2:
        A("s_setprio 1")
        A("s_cmp_lt_u32 s4, 4")
        A("s_cbranch_scc1 L_prio")
        A("s_setprio 2")
        g.label("L_prio")
    A("s_lshl_b32 s11, s44, 4")
    A("s_add_u32 s11, s11, s7")
    A("s_lshl_b32 s8, s11, 23")
    A("s_lshl_b32 s9, s45, 17")
    A("s_add_u32 s8, s8, s9")
    A("s_add_u32 s8, s8, 0x700000")
    if mask == 'h':
        A(f"s_mul_i32 s11, s2, {hm:#x}"); A(f"s_bfe_u32 s11, s11, {0x50000+hs:#x}")
    for j in range(4):
        A(f"s_add_u32 s9, s4, {8*j}")
        A("s_xor_b32 s9, s9, s11")
        A(f"s_lshl_b32 s{64+j}, s9, 12")
    A("v_xor_b32 v4, v3, v2")
    A("v_lshlrev_b32 v4, 4, v4")
    A("v_lshl_add_u32 v4, v2, 8, v4")
    A("v_xor_b32 v5, 64, v4")
    A("v_xor_b32 v6, 0x80, v4")
    A("v_xor_b32 v7, 0xc0, v4")
    A("v_lshlrev_b32 v8, 4, v3")
    A("v_lshl_add_u32 v8, v2, 10, v8")
    A("s_lshl_b32 s10, s4, 14")
    A(f"s_add_u32 s10, s10, {KB}")
    A("s_mov_b32 s50, 0x20000"); A("s_mov_b32 s51, 0x20000"); A("s_mov_b32 s54, 0x20000"); A("s_mov_b32 s55, 0x20000")
    A("s_mov_b32 m0, s10")
    A("s_waitcnt lgkmcnt(0)")
    A("s_add_u32 s48, s18, s8"); A("s_addc_u32 s49, s19, 0")
    A("s_add_u32 s52, s20, s8"); A("s_addc_u32 s53, s21, 0")
    if diag: A("s_memrealtime s[98:99]")
    def setup_mid():
        A("s_load_dword s47, s[42:43], 0")
        g.selectors(S)
        A("v_xor_b32 v12, v3, v2")
        A("v_lshlrev_b32 v12, 4, v12")
        A("v_lshl_add_u32 v12, v3, 8, v12")
        A("v_add_u32 v12, s10, v12")
        A("v_xor_b32 v13, 64, v12")
        A("v_xor_b32 v14, 0x80, v12")
        A("v_xor_b32 v15, 0xc0, v12")
        A("v_lshlrev_b32 v10, 8, v9")
        A("v_lshl_add_u32 v10, v2, 4, v10")
        A("v_lshlrev_b32 v11, 5, v9")
        g.srd(56, 24, 4096*1152)
        A("s_mov_b64 s[60:61], s[32:33]")
        A("s_cmp_lt_u32 s4, 6")
        A(f"s_cselect_b32 s62, {4608*1152}, 0")
        A("s_mov_b32 s63, 0x20000")
        if lead is not None:
            A(f"s_bitcmp1_b32 {lead:#x}, s4")
            A("s_cselect_b64 vcc, -1, 0")
        A("s_barrier")
    def vload(idx):
        j, r = idx // 4, idx % 4
        d = VD + 16*j + 4*r
        A(f"buffer_load_dwordx4 v[{d}:{d+3}], v8, s[52:55], s{64+j} offen offset:{256*r} {fv}")
    def qk_tile(j):
        for jj in range(4):
            A(f"ds_read_b128 v[{KF+4*jj}:{KF+4*jj+3}], v{12+jj} offset:{4096*j}")
        for jj in range(4):
            A(f"s_waitcnt lgkmcnt({3-jj})")
            c = "0" if jj == 0 else f"v[{S+4*j}:{S+4*j+3}]"
            A(f"v_mfma_f32_16x16x32_bf16 v[{S+4*j}:{S+4*j+3}], v[{KF+4*jj}:{KF+4*jj+3}], v[{QF+4*jj}:{QF+4*jj+3}], {c}")
    def c_q01():
        A("s_waitcnt lgkmcnt(0)")
        g.tag()
        g.stamp(1)
        A("v_mov_b32 v4, 0")
        g.label("L_qspin")
        A(f"ds_read_b32 v5, v4 offset:{QFLAG}")
        for jj in range(4):
            A(f"ds_read_b128 v[{QF+4*jj}:{QF+4*jj+3}], v10 offset:{QB+64*jj}")
        A("s_waitcnt lgkmcnt(4)")
        A("v_readfirstlane_b32 s72, v5")
        A("s_cmp_eq_u32 s72, 1")
        A("s_cbranch_scc1 L_qok")
        A("s_sleep 2")
        A("s_sub_u32 s75, s75, 1")
        A("s_cmp_lg_u32 s75, 0")
        A("s_cbranch_scc1 L_qspin")
        g.label("L_qok")
        g.stamp(2)
        qk_tile(0); qk_tile(1)
    def c_q23():
        qk_tile(2); qk_tile(3)
        A("s_nop 3")
    def c_round():
        for j in range(4):
            for h in range(2):
                a = S + 4*j + 2*h
                A(f"v_cvt_pk_bf16_f32 v{T}, v{a}, v{a+1}")
                A(f"v_lshlrev_b32 v{a}, 16, v{T}")
                A(f"v_and_b32 v{a+1}, 0xffff0000, v{T}")
                A(f"v_mul_f32 v{a}, {SCALE:#x}, v{a}")
                A(f"v_mul_f32 v{a+1}, {SCALE:#x}, v{a+1}")
                A(f"v_cvt_pk_bf16_f32 v{T}, v{a}, v{a+1}")
                A(f"v_lshlrev_b32 v{a}, 16, v{T}")
                A(f"v_and_b32 v{a+1}, 0xffff0000, v{T}")
    def c_soft():
        A(f"v_max3_f32 v{T}, v{S}, v{S+1}, v{S+2}")
        for k in range(3, 15, 2):
            A(f"v_max3_f32 v{T}, v{T}, v{S+k}, v{S+k+1}")
        A(f"v_max_f32 v{T}, v{T}, v{S+15}")
        g.swap_reduce("v_max_f32", T, T+1, 16)
        g.swap_reduce("v_max_f32", T, T+1, 32)
        A("s_lshl_b32 s11, s4, 2")
        A(f"v_add_u32 v{T+3}, s11, v11")
        A(f"s_mov_b32 s72, {LOG2E:#x}")
        A(f"v_mul_f32 v{T+1}, {LOG2E^0x80000000:#x}, v{T}")
        for k in range(16):
            A(f"v_fma_f32 v{S+k}, v{S+k}, s72, v{T+1}")
        for k in range(16):
            A(f"v_exp_f32 v{S+k}, v{S+k}")
        A("s_nop 0")
        for k in range(8):
            A(f"v_cvt_pk_bf16_f32 v{P+k}, v{S+2*k}, v{S+2*k+1}")
        A(f"v_add_f32 v{T+2}, v{S}, v{S+1}")
        for k in range(2, 16):
            A(f"v_add_f32 v{T+2}, v{T+2}, v{S+k}")
        g.swap_reduce("v_add_f32", T+2, T+1, 16)
        g.swap_reduce("v_add_f32", T+2, T+1, 32)
        A("s_mov_b64 exec, 0x101")
        A(f"ds_write_b32 v{T+3}, v{T} offset:{MW}")
        A(f"ds_write_b32 v{T+3}, v{T+2} offset:{LW}")
        A("s_mov_b64 exec, -1")
        g.stamp(3)
    def c_addr():
        g.srd(48, 42, WS_BYTES)
        A("s_lshl_b32 s72, s4, 10")
        A(f"v_lshlrev_b32 v{aL16}, 4, v0")
        A(f"v_add_u32 v{aRED0}, s72, v{aL16}")
        A("s_and_b32 s72, s4, 1")
        A("s_lshl_b32 s73, s72, 9")
        A(f"v_and_b32 v{aPUBR}, 1, v0")
        A(f"v_lshlrev_b32 v{aPUBR}, 8, v{aPUBR}")
        A(f"v_bfe_u32 v4, v0, 1, 4")
        A(f"v_lshl_add_u32 v{aPUBR}, v4, 4, v{aPUBR}")
        A(f"v_add_u32 v{aPUBR}, s73, v{aPUBR}")
        A("s_lshl_b32 s12, s7, 1"); A("s_add_u32 s12, s12, s72"); A("s_lshl_b32 s12, s12, 1"); A("s_add_u32 s12, s12, s44")
        A("s_lshl_b32 s12, s12, 3"); A("s_add_u32 s12, s12, s45"); A(f"s_mul_i32 s12, s12, {OREC}"); A(f"s_add_u32 s12, s12, {OPT}")
        A("s_lshl_b32 s13, s72, 5")
        A("v_mov_b32 v7, s13")
        A(f"s_movk_i32 s72, {OREC}")
        A(f"v_and_b32 v4, 3, v0")
        A(f"v_lshlrev_b32 v4, 4, v4")
        A(f"v_lshrrev_b32 v5, 2, v0")
        A(f"v_mad_u32_u24 v{aG0}, v5, s72, v4")
        A(f"s_mul_i32 s14, s46, {16*OREC}")
        A(f"s_add_u32 s14, s14, {OPT}")
        A("s_lshl_b32 s15, s4, 6")
        A("s_add_u32 s15, s15, s14")
        A(f"v_lshlrev_b32 v{aBP0}, 7, v9")
        A(f"v_lshl_add_u32 v{aBP0}, v2, 2, v{aBP0}")
        A(f"v_add_u32 v{aBP1}, 64, v{aBP0}")
        A("s_mul_i32 s72, s4, 48")
        A(f"v_mul_u32_u24 v{aH}, 12, v2")
        A("s_movk_i32 s73, 288")
        A(f"v_mad_u32_u24 v{aH}, v9, s73, v{aH}")
        A(f"v_add_u32 v{aH}, s72, v{aH}")
        A(f"v_lshrrev_b32 v5, 3, v0")
        A(f"v_lshlrev_b32 v{aFS}, 12, v5")
        A(f"v_and_b32 v6, 7, v0")
        A(f"v_lshl_add_u32 v{aFS}, v6, 4, v{aFS}")
        A("v_cmp_lt_u32 vcc, 17, v0")
        A("v_add_u32 v5, 46, v0")
        A("s_nop 0")
        A("v_cndmask_b32 v4, v0, v5, vcc")
        A("v_lshrrev_b32 v5, 1, v4")
        A(f"v_lshlrev_b32 v{aFR}, 4, v5")
        A("v_and_b32 v5, 1, v4")
        A(f"v_lshl_add_u32 v{aFR}, v5, 8, v{aFR}")
        A(f"v_and_b32 v{aFR}, 0x3ff, v{aFR}")
        A(f"s_mul_i32 s16, s45, {5*4096}")
        A("s_lshl_b32 s73, s46, 7"); A("s_add_u32 s16, s16, s73"); A(f"s_add_u32 s16, s16, {OP}")
        g.srd(68, 34, 1152)
        if rspread:
            A("s_lshl_b32 s6, s45, 2"); A("s_sub_u32 s6, s46, s6"); A("s_and_b32 s6, s6, 31")
        else: A("s_mov_b32 s6, s46")
        if b2one:
            A("s_cmp_eq_u32 s4, 4"); A("s_cselect_b32 s70, s70, 0")
            A("s_cmp_lt_u32 s6, 5"); A("s_cselect_b32 s70, s70, 0")
        A("s_lshl_b32 s72, s6, 6")
        A("v_lshl_add_u32 v5, v6, 3, s72")
        A("v_cmp_lt_u32 vcc, 0x8f, v5")
        A("v_subrev_u32 v6, 0x90, v5")
        A("v_mov_b32 v4, 0")
        A("v_cndmask_b32 v5, v5, v6, vcc")
        A("v_mov_b32 v6, 8")
        A(f"v_cndmask_b32 v{aGA}, v4, v6, vcc")
        A("s_mul_i32 s21, s45, 144")
        A(f"buffer_load_dwordx2 v[{vB2}:{vB2+1}], v5, s[68:71], s21 offen {xs}")
        A(f"v_mul_u32_u24 v6, 0x90, v{aGA}")
        A(f"v_add_u32 v{aOUT}, v5, v6")
        A("s_mul_i32 s17, s45, 5"); A("s_add_u32 s17, s17, s6"); A("s_lshl_b32 s17, s17, 12"); A(f"s_add_u32 s17, s17, {OP}")
        A(f"v_lshrrev_b32 v{aGD}, 5, v0")
        A(f"v_lshlrev_b32 v{aGD}, 3, v{aGD}")
        A(f"s_movk_i32 s72, {4*1152}")
        A("v_lshlrev_b32 v4, 4, v3")
        A("v_mad_u32_u24 v5, v2, s72, v4")
        A(f"s_movk_i32 s72, {6*1152}")
        A("v_mad_u32_u24 v6, v2, s72, v4")
        A("s_lshl_b32 s18, s46, 3"); A("s_add_u32 s18, s18, s4"); A(f"s_mul_i32 s18, s18, {16*1152}")
        A("s_mul_i32 s73, s45, 144"); A("s_add_u32 s18, s18, s73")
        A("s_mul_i32 s19, s46, 6"); A("s_add_u32 s19, s19, s4"); A(f"s_mul_i32 s19, s19, {24*1152}")
        A("s_add_u32 s19, s19, s73")
        A(f"s_add_u32 s20, s19, {3*1152}")
        A("s_mov_b32 s22, 0x01ff01ff"); A("s_mov_b32 s23, 0x01ff01ff")
    def small(k):
        if k < 4: A(f"buffer_load_dwordx4 v[{WO+4*k}:{WO+4*k+3}], v5, s[56:59], s18 offen offset:{1152*k} {fs}")
        else:
            t = k - 4
            A(f"buffer_load_dwordx4 v[{W2R[t]}:{W2R[t]+3}], v6, s[60:63], s{19 + t//3} offen offset:{1152*(t%3)} {fs}")
    wcnt = [0]
    def wwait(w, ok=True):
        A(f"s_waitcnt vmcnt({w-1})")
        if lead is not None and ok:
            wcnt[0] += 1
            A(f"s_cbranch_vccz L_w{wcnt[0]}")
            A(f"s_waitcnt vmcnt({WS-1})")
            g.label(f"L_w{wcnt[0]}")
    n = 0
    for j in range(4):
        if j > 0:
            A(f"s_add_u32 m0, s10, {4096*j}")
            if n < W: A("s_nop 0")
        for t4 in range(4):
            if n >= W: wwait(W)
            if n == W: g.stamp(12)
            A(f"buffer_load_dwordx4 v{4+t4}, s[48:51], s{64+j} offen offset:{1024*t4} {fk} lds")
            n += 1
            if n == W:
                if bfirst:
                    A("s_branch L_bulk2")
                    g.label("L_svc")
                    service_issue()
                    g.label("L_bulk2")
                setup_mid()
    chunks = {NQ: c_q01, NQ+1: c_q23, NQ+2: c_round, NQ+3: c_soft, NQ+4: c_addr}
    assert NQ >= W and NQ + 4 <= 15
    WL = W if W2 is None else W2
    assert NQ >= WL
    for idx in range(16):
        wwait(W if idx < W2at else WL, idx <= NQ + 4)
        vload(idx)
        if psched and idx in psched: A(f"s_setprio {psched[idx]}")
        if idx in chunks: chunks[idx]()
    g.stamp(4)
    if prio: A("s_setprio 0")
    if nsmall0:
        A("s_mov_b64 exec, s[22:23]")
        for k in range(nsmall0): small(k)
        A("s_mov_b64 exec, -1")
    issued = [nsmall0]
    def pv_after(t):
        if inter and t > 15 - WL and issued[0] < 10 and t < 15:
            A("s_mov_b64 exec, s[22:23]")
            small(issued[0]); issued[0] += 1
            A("s_mov_b64 exec, -1")
    g.gemv_chain(16, P, VD, AS, OA, lambda t: None if t <= 15 - WL else 15 - t + issued[0], pv_after)
    def rest_small():
        if issued[0] < 10:
            A("s_mov_b64 exec, s[22:23]")
            while issued[0] < 10:
                small(issued[0]); issued[0] += 1
            A("s_mov_b64 exec, -1")
    if smallpos == 'pre': rest_small()
    A("s_mov_b64 s[68:69], s[40:41]"); A("s_lshl_b32 s13, s7, 2"); A("s_add_u32 s13, s13, 128")
    A("s_mov_b64 s[64:65], s[42:43]")
    A("s_cmp_ge_u32 s4, 6")
    A("s_cselect_b32 s70, 256, 0"); A("s_mov_b32 s71, 0x20000")
    A(f"s_cselect_b32 s66, {WS_BYTES}, 0")
    A("s_mov_b32 s67, 0x20000")
    A("s_nop 1")
    A(f"ds_write_b128 v{aRED0}, v[{OA}:{OA+3}] offset:{RED0}")
    A("s_waitcnt lgkmcnt(0)")
    g.stamp(5)
    A("s_barrier")
    if smallpos == 'post': rest_small()
    A(f"ds_read_b64 v[{GG}:{GG+1}], v{aGD} offset:{GB}")
    A("s_cmp_lt_u32 s4, 6")
    A("s_cbranch_scc1 L_nopub")
    F, OR, LR, ST = PL, PL+8, PL+40, PL+48
    def ystore():
        A("s_mov_b64 s[8:9], exec")
        A("s_mov_b32 exec_lo, -1"); A("s_mov_b32 exec_hi, 0xff")
        A(f"buffer_store_dwordx4 v[{ST}:{ST+3}], v{aL16}, s[64:67], s12 offen sc1")
        A("s_mov_b32 s66, 0")
        A("s_mov_b64 exec, s[8:9]")
    if tailprio: A("s_setprio 3")
    A(f"ds_read_b128 v[{F}:{F+3}], v7 offset:{MW}")
    A(f"ds_read_b128 v[{F+4}:{F+7}], v7 offset:{MW+16}")
    for w in range(8):
        A(f"ds_read_b128 v[{OR+4*w}:{OR+4*w+3}], v{aPUBR} offset:{RED0+1024*w}")
    A(f"ds_read_b128 v[{LR}:{LR+3}], v7 offset:{LW}")
    A(f"ds_read_b128 v[{LR+4}:{LR+7}], v7 offset:{LW+16}")
    A(f"s_mov_b32 s72, {LOG2E:#x}")
    A("s_waitcnt lgkmcnt(10)")
    A(f"v_max3_f32 v{T+1}, v{F}, v{F+1}, v{F+2}")
    A(f"v_max3_f32 v{T}, v{F+3}, v{F+4}, v{F+5}")
    A(f"v_max3_f32 v{T+1}, v{T+1}, v{F+6}, v{F+7}")
    A(f"v_max_f32 v{T+1}, v{T+1}, v{T}")
    A(f"v_mul_f32 v{T}, {LOG2E^0x80000000:#x}, v{T+1}")
    for w in range(8): A(f"v_fma_f32 v{F+w}, v{F+w}, s72, v{T}")
    for w in range(8): A(f"v_exp_f32 v{F+w}, v{F+w}")
    A("s_waitcnt lgkmcnt(9)")
    for k in range(4): A(f"v_mul_f32 v{ST+k}, v{F}, v{OR+k}")
    for w in range(1, 8):
        A(f"s_waitcnt lgkmcnt({9-w})")
        for k in range(4): A(f"v_fmac_f32 v{ST+k}, v{F+w}, v{OR+4*w+k}")
    g.tag4(ST, [ST, ST+1, ST+2, ST+3])
    A("s_waitcnt lgkmcnt(0)")
    A("s_mov_b32 exec_lo, 0"); A("s_mov_b32 exec_hi, 0xff")
    A(f"v_mul_f32 v{ST+2}, v{F}, v{LR}")
    for k in range(1, 8): A(f"v_fmac_f32 v{ST+2}, v{F+k}, v{LR+k}")
    A(f"v_mov_b32 v{ST}, v{T+1}")
    A(f"v_mov_b32 v{ST+1}, v1")
    A(f"v_mov_b32 v{ST+3}, v1")
    A("s_mov_b32 exec_lo, -1")
    A(f"buffer_store_dwordx4 v[{ST}:{ST+3}], v{aL16}, s[48:51], s12 offen {lo}")
    A("s_mov_b64 exec, -1")
    for k in range(4): A(f"v_mov_b32 v{DB+k}, 0")
    A("s_cmp_eq_u32 s5, 0")
    A("s_cbranch_scc1 L_now2")
    ystore()
    A("s_branch L_now2")
    g.label("L_nopub")
    A(f"ds_read2_b32 v[{P}:{P+1}], v{aH} offset0:{HB//4} offset1:{HB//4+1}")
    A(f"ds_read_b32 v{P+2}, v{aH} offset:{HB+8}")
    A("s_waitcnt lgkmcnt(0)")
    g.gemv_chain(6, P, W2R, AS, DB, lambda t: 0 if t == 0 else None)
    A("s_nop 7")
    for k in range(4): A(f"v_mul_f32 v{DB+k}, v{GG+1}, v{DB+k}")
    g.label("L_now2")
    A("v_mov_b32 v7, 0")
    g.stamp(6)
    def issue1():
        A(f"buffer_load_dwordx4 v[{PL}:{PL+3}], v{aG0}, s[48:51], s15 offen {p1}")
        A(f"buffer_load_dwordx4 v[{PL+4}:{PL+7}], v{aG0}, s[48:51], s14 offen offset:512 {p1}")
    def check1():
        A(f"v_cmpx_eq_u32 vcc, s47, v{PL+5}")
        A(f"v_cmpx_eq_u32 vcc, s47, v{PL+7}")
        g.check4(PL, PL+8)
    g.poll("1", issue1, check1, "-1", s1[0], s1[1], 16, fallback=ystore)
    A(f"buffer_load_dword v{T+2}, v7, s[68:71], s13 offen {ph}")
    A("s_nop 2")
    g.stamp(7)
    Ms, Ls = PL+4, PL+6
    m, w_, t_, u_ = PL+8, PL+9, PL+10, PL+11
    g.dpp("v_max_f32", m, Ms, "row_ror:4")
    A("s_nop 1")
    g.dpp("v_max_f32", m, m, "row_ror:8")
    g.swap_reduce("v_max_f32", m, u_, 16)
    A(f"v_sub_f32 v{w_}, v{Ms}, v{m}")
    A(f"v_mul_f32 v{w_}, {LOG2E:#x}, v{w_}")
    A(f"v_exp_f32 v{w_}, v{w_}")
    g.clean(range(PL, PL+4))
    A(f"v_mul_f32 v{t_}, v{w_}, v{Ls}")
    for k in range(4): A(f"v_mul_f32 v{PL+k}, v{w_}, v{PL+k}")
    for ctl in ("row_ror:4", "row_ror:8"):
        for r in (t_, PL, PL+1, PL+2, PL+3):
            g.dpp("v_add_f32", r, r, ctl)
    A(f"v_mov_b32 v{u_}, v{t_}")
    A("s_nop 0")
    A(f"v_permlane16_swap_b32 v{PL}, v{PL+2}")
    A(f"v_permlane16_swap_b32 v{PL+1}, v{PL+3}")
    A(f"v_permlane16_swap_b32 v{t_}, v{u_}")
    A(f"v_add_f32 v{PL}, v{PL}, v{PL+2}")
    A(f"v_add_f32 v{PL+1}, v{PL+1}, v{PL+3}")
    A(f"v_add_f32 v{t_}, v{t_}, v{u_}")
    A(f"v_rcp_f32 v{t_}, v{t_}")
    A("s_nop 0")
    A(f"v_mul_f32 v{PL}, v{t_}, v{PL}")
    A(f"v_mul_f32 v{PL+1}, v{t_}, v{PL+1}")
    A(f"v_cvt_pk_bf16_f32 v{PL}, v{PL}, v{PL+1}")
    A(f"ds_bpermute_b32 v{P}, v{aBP0}, v{PL}")
    A(f"ds_bpermute_b32 v{P+1}, v{aBP1}, v{PL}")
    A("s_waitcnt lgkmcnt(0)")
    g.gemv_chain(4, P, WO, AS, DA, lambda t: None)
    A("s_nop 7")
    for k in range(4): A(f"v_fmac_f32 v{DB+k}, v{GG}, v{DA+k}")
    A(f"ds_write_b128 v{aRED0}, v[{DB}:{DB+3}] offset:{RED1}")
    A("s_waitcnt lgkmcnt(0)")
    g.stamp(8)
    A("s_barrier")
    A("s_cmp_ge_u32 s4, 1")
    A("s_cbranch_scc1 L_final")
    RA = PL+8
    for w in range(8):
        A(f"ds_read_b128 v[{RA+4*w}:{RA+4*w+3}], v{aFR} offset:{RED1+1024*w}")
    A("s_mov_b32 exec_hi, 0xff")
    A("s_waitcnt lgkmcnt(6)")
    for e in range(4): A(f"v_add_f32 v{PL+e}, v{RA+e}, v{RA+4+e}")
    for w in range(2, 8):
        A(f"s_waitcnt lgkmcnt({7-w})")
        for e in range(4): A(f"v_add_f32 v{PL+e}, v{PL+e}, v{RA+4*w+e}")
    g.tag4(PL, [PL, PL+1, PL+2, PL+3])
    A(f"buffer_store_dwordx4 v[{PL}:{PL+3}], v{aFS}, s[48:51], s16 offen {ofl}")
    if probe:
        A("s_cmp_ge_u32 s2, 8"); A("s_cbranch_scc1 L_end")
        A("s_memrealtime s[76:77]"); A("s_movk_i32 s70, 256")
        A("s_lshl_b32 s12, s2, 2"); A("s_add_u32 s12, s12, 32"); A("v_mov_b32 v4, 0"); A("s_waitcnt lgkmcnt(0)"); A("v_mov_b32 v5, s76")
        A("s_mov_b64 exec, 1")
        A("buffer_store_dword v5, v4, s[68:71], s12 offen")
    if diag:
        g.stamp(9)
        g.label("L_dump")
        g.dump_stamps(13)
    A("s_endpgm")
    g.label("L_final")
    A("s_cmp_lt_u32 s4, 6")
    A("s_cbranch_scc1 L_nohelp")
    A("s_waitcnt vmcnt(0)")
    A(f"v_readfirstlane_b32 s10, v{T+2}")
    A("s_cmp_eq_u32 s10, 0")
    A("s_cbranch_scc1 L_nohelp")
    ystore()
    g.label("L_nohelp")
    if diag: A("s_mov_b32 s94, 0")
    A("s_cmp_lg_u32 s4, 4")
    A("s_cbranch_scc1 " + ("L_dump" if diag else "L_end"))
    A("s_cmp_ge_u32 s6, 5")
    A("s_cbranch_scc1 " + ("L_dump" if diag else "L_end"))
    FIN = PL + 44 if stag else PL
    def issue2():
        for k in range(4):
            A(f"buffer_load_dwordx4 v[{PL+4*k}:{PL+4*k+3}], v{aL16}, s[48:51], s17 offen offset:{1024*k} {p2}")
    def check2():
        for k in range(4): g.check4(PL+4*k, PL+20)
    if pre2: A(f's_sleep {pre2}')
    if not stag: issue2()
    if stag: issue2()
    A(f"ds_read_b64 v[{PL+18}:{PL+19}], v{aGA} offset:{GB}")
    g.srd(56, 38, 2304)
    A("s_cmp_eq_u32 s6, 4")
    A("s_cselect_b64 s[10:11], 0xf, 0xff")
    A("s_waitcnt lgkmcnt(0)")
    BI = PL + 52
    A(f"v_lshlrev_b32 v{BI}, 16, v{vB2}"); A(f"v_and_b32 v{BI+1}, 0xffff0000, v{vB2}")
    A(f"v_lshlrev_b32 v{BI+2}, 16, v{vB2+1}"); A(f"v_and_b32 v{BI+3}, 0xffff0000, v{vB2+1}")
    for e in range(4): A(f"v_mul_f32 v{BI+e}, v{PL+19}, v{BI+e}")
    if not stag:
        g.poll("2", issue2, check2, "-1", s2[0], s2[1], s2[2], first_issue=False)
        g.stamp(10)
        g.clean(range(PL, PL+16))
        for k in range(1, 4):
            for e in range(4): A(f"v_add_f32 v{PL+e}, v{PL+e}, v{PL+4*k+e}")
    else:
        SETS = [PL, PL+24, 88, 104][:nset]
        def iss(base):
            for k in range(4):
                A(f"buffer_load_dwordx4 v[{base+4*k}:{base+4*k+3}], v{aL16}, s[48:51], s17 offen offset:{1024*k} {p2}")
        def chk(base, lab):
            for k in range(4): g.check4(base+4*k, PL+20)
            A("s_nop 1")
            A("s_cmp_eq_u64 exec, -1")
            A("s_mov_b64 exec, -1")
            A(f"s_cbranch_scc1 {lab}")
        for q in range(1, nset-1):
            A(f"s_sleep {stag}")
            iss(SETS[q])
        g.label("L_p2")
        for q in range(nset):
            A(f"s_sleep {stag}")
            iss(SETS[(q + nset - 1) % nset])
            A(f"s_waitcnt vmcnt({4*(nset-1)})")
            chk(SETS[q], f"L_p2s{q}")
        A("s_sub_u32 s75, s75, 1")
        A("s_cmp_lg_u32 s75, 0")
        A("s_cbranch_scc1 L_p2")
        for q in range(nset-1, -1, -1):
            SX = SETS[q]
            g.label(f"L_p2s{q}")
            g.clean(range(SX, SX+16))
            for e in range(4): A(f"v_add_f32 v{SX+e}, v{SX+e}, v{SX+4+e}")
            for e in range(4): A(f"v_add_f32 v{SX+8+e}, v{SX+8+e}, v{SX+12+e}")
            for e in range(4): A(f"v_add_f32 v{FIN+e}, v{SX+e}, v{SX+8+e}")
            if q: A("s_branch L_p2c")
        g.label("L_p2c")
        g.stamp(10)
    for e in range(4): g.dpp("v_add_f32", FIN+e, FIN+e, "row_ror:8")
    for which in (16, 32):
        for e in range(4): A(f"v_mov_b32 v{FIN+4+e}, v{FIN+e}")
        for e in range(4): A(f"v_permlane{which}_swap_b32 v{FIN+e}, v{FIN+4+e}")
        for e in range(4): A(f"v_add_f32 v{FIN+e}, v{FIN+e}, v{FIN+4+e}")
    for e in range(4): A(f"v_add_f32 v{FIN+e}, v{FIN+e}, v{BI+e}")
    A(f"v_cvt_pk_bf16_f32 v{FIN}, v{FIN}, v{FIN+1}")
    A(f"v_cvt_pk_bf16_f32 v{FIN+1}, v{FIN+2}, v{FIN+3}")
    A("s_mov_b64 exec, s[10:11]")
    A(f"buffer_store_dwordx2 v[{FIN}:{FIN+1}], v{aOUT}, s[56:59], s21 offen {outfl}")
    A("s_or_b32 s8, s45, s6")
    A("s_cmp_lg_u32 s8, 0")
    A("s_cbranch_scc1 L_fin2")
    A("s_mov_b64 exec, 1")
    A(f"buffer_store_dword v1, v7, s[48:51], 0 offen sc1")
    g.label("L_fin2")
    if diag:
        g.stamp(9)
        g.dump_stamps(13)
    A("s_endpgm")

    g.label("L_s0b")
    A("v_mov_b32 v149, v5")
    XR, WD, AS, D, GX, GW = 24, 40, 112, 120, 124, 134
    A("v_and_b32 v6, 31, v0")
    A("v_mul_u32_u24 v8, 36, v6")
    A("v_lshrrev_b32 v7, 5, v0")
    A("s_movk_i32 s8, 1152")
    A("v_mad_u32_u24 v11, v7, s8, v8")
    if not xlds:
        g.srd(56, 36, 1152)
        A(f"buffer_load_dwordx4 v[{GX}:{GX+3}], v11, s[48:51], 0 offen {xs}")
        A(f"buffer_load_dwordx4 v[{GX+4}:{GX+7}], v11, s[48:51], 0 offen offset:16 {xs}")
        A(f"buffer_load_dword v{GX+8}, v11, s[48:51], 0 offen offset:32 {xs}")
        A(f"buffer_load_dwordx4 v[{GW}:{GW+3}], v8, s[56:59], 0 offen {xs}")
        A(f"buffer_load_dwordx4 v[{GW+4}:{GW+7}], v8, s[56:59], 0 offen offset:16 {xs}")
        A(f"buffer_load_dword v{GW+8}, v8, s[56:59], 0 offen offset:32 {xs}")
    g.selectors(144)
    g.srd(60, 42, WS_BYTES)
    A("v_lshlrev_b32 v10, 13, v7")
    A("v_lshl_add_u32 v10, v6, 4, v10")
    A("s_lshl_b32 s10, s7, 14"); A("s_lshl_b32 s11, s45, 10"); A("s_add_u32 s11, s11, s10")
    A("s_lshl_b32 s8, s44, 9"); A("s_add_u32 s11, s11, s8"); A(f"s_add_u32 s11, s11, {QP}")
    A("s_lshl_b32 s8, s44, 13"); A("s_add_u32 s64, s10, s8"); A(f"s_add_u32 s64, s64, {QP}")
    A("s_add_u32 s65, s64, 4096")
    A("v_lshlrev_b32 v12, 4, v0")
    A("v_lshlrev_b32 v13, 9, v0")
    A("v_lshlrev_b32 v14, 4, v3")
    A("v_and_b32 v15, 1, v2")
    A("v_lshl_add_u32 v14, v15, 3, v14")
    A("v_lshl_add_u32 v14, v7, 8, v14")
    g.srd(68, 40, 256)
    A("s_lshl_b32 s13, s7, 2"); A("s_add_u32 s13, s13, 128")
    A("s_cmp_eq_u32 s5, 0")
    A("s_cbranch_scc1 L_placed")
    A("v_mov_b32 v150, 0"); A("v_mov_b32 v5, 1")
    A("buffer_store_dword v5, v150, s[68:71], s13 offen sc1")
    A("s_waitcnt vmcnt(0)")
    g.label("L_placed")
    if probe:
        A("s_cmp_ge_u32 s2, 8"); A("s_cbranch_scc1 L_np0")
        A("s_lshl_b32 s12, s2, 2"); A("v_mov_b32 v4, 0"); A("v_mov_b32 v5, s76")
        A("s_mov_b64 exec, 1")
        A("buffer_store_dword v5, v4, s[68:71], s12 offen")
        A("s_mov_b64 exec, -1")
        A("s_waitcnt vmcnt(0)")
        g.label("L_np0")
    A("s_waitcnt lgkmcnt(0)" + (f" vmcnt({N0})" if xlds else ""))
    A("s_barrier")
    NG = 0 if xlds else 6
    if xlds:
        A(f"s_add_u32 s9, s9, {XB}")
        A("v_add_u32 v4, s9, v4")
        for k in range(4): A(f"ds_read2_b32 v[{XR+2*k}:{XR+2*k+1}], v4 offset0:{2*k} offset1:{2*k+1}")
        A(f"ds_read_b32 v{XR+8}, v4 offset:32")
        for k in range(9): A(f"ds_read_b32 v{GX+k}, v11 offset:{XB+4*k}")
        A("s_waitcnt lgkmcnt(9)")
        for k in range(5): A(f"ds_read_b32 v{GW+k}, v8 offset:{GWB+4*k}")
        A("s_waitcnt lgkmcnt(5)")
        for k in range(5, 9): A(f"ds_read_b32 v{GW+k}, v8 offset:{GWB+4*k}")
        A("s_waitcnt lgkmcnt(0)")
    A("s_load_dword s47, s[42:43], 0")
    if not xlds: A("s_waitcnt vmcnt(24)" if xpos == 'first' else "s_waitcnt vmcnt(6)")
    g.stamp(3)
    def s0_after(t):
        if t + N0 < 18:
            A(f"buffer_load_dwordx4 v[{WD+4*(t+N0)}:{WD+4*(t+N0)+3}], v149, s[52:55], s12 offen {fw}")
            A("s_add_u32 s12, s12, 8192")
    g.gemv_chain(18, XR, WD, AS, D, lambda t: N0 + min(t, 18 - N0) - t - 1 + NG, s0_after)
    A("s_waitcnt lgkmcnt(0)")
    g.tag()
    g.tag4(AS, [D, D+1, D+2, D+3])
    def ys0():
        A("s_mov_b64 s[72:73], exec")
        A("s_mov_b64 exec, -1")
        A(f"buffer_store_dwordx4 v[{AS}:{AS+3}], v10, s[60:63], s11 offen sc1")
        A("s_mov_b64 exec, s[72:73]")
    def helpcheck(name, ys):
        A("v_mov_b32 v4, 0")
        A(f"buffer_load_dword v5, v4, s[68:71], s13 offen {ph}")
        A("s_waitcnt vmcnt(0)")
        A("v_readfirstlane_b32 s8, v5")
        A("s_cmp_eq_u32 s8, 0")
        A(f"s_cbranch_scc1 L_nh_{name}")
        ys()
        g.label(f"L_nh_{name}")
    A(f"buffer_store_dwordx4 v[{AS}:{AS+3}], v10, s[60:63], s11 offen {lq}")
    A("s_cmp_eq_u32 s5, 0")
    A("s_cbranch_scc1 L_q_placed")
    ys0()
    A("s_waitcnt vmcnt(0)")
    g.label("L_q_placed")
    g.stamp(1)
    A("s_waitcnt vmcnt(1)")
    acc, t0, t1, t2, t3 = 144, 145, 146, 147, 148
    A(f"v_mov_b32 v{acc}, 0")
    for k in range(9):
        A(f"v_lshlrev_b32 v{t0}, 16, v{GX+k}")
        A(f"v_and_b32 v{t1}, 0xffff0000, v{GX+k}")
        A(f"v_lshlrev_b32 v{t2}, 16, v{GW+k}")
        A(f"v_and_b32 v{t3}, 0xffff0000, v{GW+k}")
        A(f"v_mul_f32 v{t0}, v{t0}, v{t2}")
        A(f"v_mul_f32 v{t1}, v{t1}, v{t3}")
        A(f"v_cvt_pk_bf16_f32 v{t0}, v{t0}, v{t1}")
        A(f"v_lshlrev_b32 v{t1}, 16, v{t0}")
        A(f"v_and_b32 v{t0}, 0xffff0000, v{t0}")
        A(f"v_add_f32 v{acc}, v{acc}, v{t1}")
        A(f"v_add_f32 v{acc}, v{acc}, v{t0}")
    for ctl in ("quad_perm:[1,0,3,2]", "quad_perm:[2,3,0,1]", "row_half_mirror", "row_mirror"):
        A("s_nop 1")
        g.dpp("v_add_f32", acc, acc, ctl)
    g.swap_reduce("v_add_f32", acc, t0, 16)
    g.bf16r(acc, acc)
    A(f"v_mul_f32 v{acc}, {LOG2E^0x80000000:#x}, v{acc}")
    A(f"v_exp_f32 v{acc}, v{acc}")
    A("s_nop 0")
    A(f"v_add_f32 v{acc}, 1.0, v{acc}")
    A(f"v_rcp_f32 v{acc}, v{acc}")
    A("s_nop 0")
    g.bf16r(acc, acc)
    A(f"v_sub_f32 v{acc+1}, 1.0, v{acc}")
    g.bf16r(acc+1, acc+1)
    A("v_lshlrev_b32 v7, 3, v7")
    A("s_mov_b32 exec_lo, 1"); A("s_mov_b32 exec_hi, 1")
    A(f"ds_write_b64 v7, v[{acc}:{acc+1}] offset:{GB}")
    if prepoll:
        A("s_mov_b64 s[14:15], 0xffff")
        A("s_mov_b64 exec, s[14:15]")
        g.poll("pq", lambda: A(f"buffer_load_dwordx4 v[{WD}:{WD+3}], v13, s[60:63], s64 offen offset:496 sc1"), lambda: g.check4(WD, t0), "s[14:15]", 4, 0, 64, fallback=ys0, fbmask=15)
    A("s_mov_b64 exec, -1")
    g.stamp(4)
    def issueq():
        for rb in range(8):
            A(f"buffer_load_dwordx4 v[{WD+4*rb}:{WD+4*rb+3}], v12, s[60:63], s{64+rb//4} offen offset:{1024*(rb%4)} {pq}")
    def checkq():
        for rb in range(8): g.check4(WD+4*rb, t0)
    g.poll("q", issueq, checkq, "-1", 4, 0, 64, fallback=ys0, fbmask=15)
    g.stamp(2)
    g.clean(range(WD, WD+32))
    for rb in range(1, 8):
        for e in range(4): A(f"v_add_f32 v{WD+e}, v{WD+e}, v{WD+4*rb+e}")
    A(f"v_cvt_pk_bf16_f32 v{WD}, v{WD}, v{WD+1}")
    A(f"v_cvt_pk_bf16_f32 v{WD+1}, v{WD+2}, v{WD+3}")
    A(f"ds_write_b64 v14, v[{WD}:{WD+1}] offset:{QB}")
    A("v_mov_b32 v5, 1")
    A("v_mov_b32 v4, 0")
    A("s_waitcnt lgkmcnt(0)")
    A(f"ds_write_b32 v4, v5 offset:{QFLAG}")
    helpcheck("q", ys0)
    A("s_waitcnt lgkmcnt(0)")
    g.stamp(5)
    g.dump_stamps(7)
    A("s_endpgm")
    g.label("L_s1b")
    WD, AS, D, B1 = W1, 140, 148, 152
    NT = 0
    if cw & 1:
        A("s_getpc_b64 s[72:73]")
        g.label("L_pc")
        A(f"s_sub_u32 s72, s72, (L_pc - {KNAME})")
        A("s_subb_u32 s73, s73, 0")
        for k in range(1, 7):
            A(f"s_load_dword s{66+ (k%2)}, s[72:73], {2048*k}")
    if cw & 2:
        A("s_cmp_lg_u32 s45, 0")
        A("s_cbranch_scc1 L_nocw")
        A("s_getpc_b64 s[72:73]")
        g.label("L_pc2")
        A(f"s_sub_u32 s72, s72, (L_pc2 - {KNAME})")
        A("s_subb_u32 s73, s73, 0")
        A("v_lshlrev_b32 v160, 7, v0")
        A("global_load_dword v161, v160, s[72:73]")
        A("v_add_u32 v160, 0x2000, v160")
        A("s_mov_b32 exec_hi, 0")
        A("global_load_dword v161, v160, s[72:73]")
        A("s_mov_b64 exec, -1")
        A("s_waitcnt vmcnt(0)")
        g.label("L_nocw")
    g.srd(56, 30, 9216)
    g.srd(60, 42, WS_BYTES)
    g.srd(68, 40, 256)
    A("s_load_dword s47, s[42:43], 0")
    A("v_and_b32 v6, 31, v0")
    A("v_lshrrev_b32 v7, 5, v0")
    A("v_lshlrev_b32 v10, 4, v0")
    A("s_mul_i32 s13, s46, 18")
    A("v_add_u32 v8, s13, v6")
    A("v_lshlrev_b32 v8, 4, v8")
    A("v_cmp_lt_u32 vcc, 8, v6")
    A("v_add_u32 v12, 0xf7, v6")
    A("v_lshlrev_b32 v13, 10, v0")
    A("v_cndmask_b32 v12, v6, v12, vcc")
    A("v_lshlrev_b32 v12, 4, v12")
    A("v_lshl_add_u32 v12, v7, 9, v12")
    A("s_movk_i32 s12, 288")
    A("v_mul_u32_u24 v14, s12, v7")
    A("v_lshl_add_u32 v14, v6, 4, v14")
    A("s_lshl_b32 s64, s7, 14"); A(f"s_add_u32 s64, s64, {HP}")
    A("s_and_b32 s12, s6, 15"); A("s_lshl_b32 s12, s12, 10"); A("s_add_u32 s65, s64, s12")
    A("s_lshl_b32 s12, s44, 13"); A("s_add_u32 s64, s64, s12")
    A("s_lshl_b32 s13, s7, 2"); A("s_add_u32 s13, s13, 128")
    g.selectors(156)
    A("s_barrier")
    if xlds:
        A("v_add_u32 v4, s10, v4")
        for k in range(9): A(f"ds_read_b64 v[{X1+2*k}:{X1+2*k+1}], v4 offset:{XB+8*k}")
        A("s_waitcnt lgkmcnt(0)")
    else: A(f"s_waitcnt vmcnt({24+NT})" if xpos == 'first' else "s_waitcnt vmcnt(0)")
    def s1_after(t):
        if t + N1 < 36:
            q = (t + N1) % 24
            A("s_mov_b64 exec, s[14:15]")
            A(f"buffer_load_dwordx4 v[{W1+4*q}:{W1+4*q+3}], v5, s[52:55], s11 offen {fw}")
            A("s_add_u32 s11, s11, 9216")
            A("s_mov_b64 exec, -1")
    g.gemv_chain(36, X1, [W1 + 4*(t % 24) for t in range(36)], AS, D, lambda t: (N1 + min(t, 36 - N1) - t - 1), s1_after)
    A("s_waitcnt lgkmcnt(0)")
    g.tag()
    g.tag4(AS, [D, D+1, D+2, D+3])
    def ys1():
        A("s_mov_b64 s[72:73], exec")
        A("s_mov_b64 exec, -1")
        A(f"buffer_store_dwordx4 v[{AS}:{AS+3}], v10, s[60:63], s65 offen sc1")
        A("s_mov_b64 exec, s[72:73]")
    A(f"buffer_store_dwordx4 v[{AS}:{AS+3}], v10, s[60:63], s65 offen {lq}")
    A("s_cmp_eq_u32 s5, 0")
    A("s_cbranch_scc1 L_h_placed")
    ys1()
    g.label("L_h_placed")
    g.stamp(1)
    A("s_mov_b32 s14, 0x0003ffff"); A("s_mov_b32 s15, 0x0003ffff")
    A("s_mov_b64 exec, s[14:15]")
    A(f"buffer_load_dwordx4 v[{B1}:{B1+3}], v8, s[56:59], 0 offen {xs}")
    if prepoll:
        A("s_mov_b64 s[10:11], 0xff")
        A("s_mov_b64 exec, s[10:11]")
        g.poll("ph", lambda: A(f"buffer_load_dwordx4 v[{WD}:{WD+3}], v13, s[60:63], s64 offen offset:896 sc1"), lambda: g.check4(WD, 156), "s[10:11]", 8, 0, 64, fallback=ys1, fbmask=15)
        A("s_mov_b64 exec, s[14:15]")
    g.stamp(3)
    def issueh():
        for rb in range(4):
            for k in range(2):
                d = WD + 8*rb + 4*k
                A(f"buffer_load_dwordx4 v[{d}:{d+3}], v12, s[60:63], s64 offen offset:{1024*rb+256*k} {pq}")
    def checkh():
        for k in range(8): g.check4(WD+4*k, 156)
    g.poll("h", issueh, checkh, "s[14:15]", 4, 0, 64, fallback=ys1, fbmask=15)
    g.stamp(2)
    g.clean(range(WD, WD+32))
    for rb in range(1, 4):
        for e in range(8): A(f"v_add_f32 v{WD+e}, v{WD+e}, v{WD+8*rb+e}")
    for d in range(4):
        a, b = WD + 2*d, WD + 2*d + 1
        t0, t1 = 160, 161
        A(f"v_cvt_pk_bf16_f32 v{a}, v{a}, v{b}")
        A(f"v_lshlrev_b32 v{t0}, 16, v{B1+d}")
        A(f"v_and_b32 v{t1}, 0xffff0000, v{B1+d}")
        A(f"v_and_b32 v{b}, 0xffff0000, v{a}")
        A(f"v_lshlrev_b32 v{a}, 16, v{a}")
        A(f"v_add_f32 v{a}, v{a}, v{t0}")
        A(f"v_add_f32 v{b}, v{b}, v{t1}")
        A(f"v_cvt_pk_bf16_f32 v{a}, v{a}, v{b}")
        A(f"v_and_b32 v{b}, 0xffff0000, v{a}")
        A(f"v_lshlrev_b32 v{a}, 16, v{a}")
        A(f"v_max_f32 v{a}, 0, v{a}")
        A(f"v_max_f32 v{b}, 0, v{b}")
        A(f"v_mul_f32 v{a}, v{a}, v{a}")
        A(f"v_mul_f32 v{b}, v{b}, v{b}")
        A(f"v_cvt_pk_bf16_f32 v{156+d}, v{a}, v{b}")
    A(f"ds_write_b128 v14, v[156:159] offset:{HB}")
    A("s_mov_b64 exec, -1")
    if optouch:
        A("s_cmp_ge_u32 s46, 5"); A("s_cbranch_scc1 L_not")
        A("s_mul_i32 s12, s45, 5"); A("s_add_u32 s12, s12, s46"); A("s_lshl_b32 s12, s12, 12"); A(f"s_add_u32 s12, s12, {OP}")
        if optouch == 'ld':
            A("v_lshlrev_b32 v15, 7, v0")
            A("s_mov_b32 exec_hi, 0")
            A("buffer_load_dword v161, v15, s[60:63], s12 offen sc1")
            A("s_mov_b64 exec, -1")
        else:
            A("v_mov_b32 v160, 0"); A("v_mov_b32 v161, 0"); A("v_mov_b32 v162, 0"); A("v_mov_b32 v163, 0")
            for k in range(4): A(f"buffer_store_dwordx4 v[160:163], v10, s[60:63], s12 offen offset:{1024*k} sc1")
        g.label("L_not")
    helpcheck("h", ys1)
    A("s_waitcnt lgkmcnt(0)")
    g.stamp(4); g.stamp(5)
    g.dump_stamps(7)
    g.label("L_end")
    A("s_endpgm")
    body = "\n".join(g.L)
    s = HEADER
    s += f"; @launch grid=(256,1,1) block=(640,1,1) lds={LDS_BYTES}\n"
    s += DOC
    s += f""".amdgcn_target "amdgcn-amd-amdhsa--gfx950"
.text
.globl {KNAME}
.p2align 8
.type {KNAME},@function
{KNAME}:
{body}
.section .rodata,"a"
.p2align 6
.amdhsa_kernel {KNAME}
  .amdhsa_next_free_vgpr 168
  .amdhsa_next_free_sgpr 102
  .amdhsa_accum_offset 168
  .amdhsa_group_segment_fixed_size 0
  .amdhsa_kernarg_size 112
  .amdhsa_user_sgpr_count 2
  .amdhsa_user_sgpr_kernarg_segment_ptr 1
  .amdhsa_system_sgpr_workgroup_id_x 1
  .amdhsa_float_denorm_mode_32 3
.end_amdhsa_kernel
"""
    return s

if __name__ == "__main__":
    B = dict(tlb=False, mask='h', tailprio=True, stag=0, cw2=1)
    open("k22.s", "w").write(build(False, **B))
    open("k22d.s", "w").write(build(True, **B))
```
